```python
import torch

def _softmax(x, axis=-1):
    return torch.softmax(x, dim=axis)
def _gelu(x):
    return torch.nn.functional.gelu(x, approximate="tanh")
def _silu(x):
    return torch.nn.functional.silu(x)
def _sigmoid(x):
    return torch.sigmoid(x)
def _layernorm(x, axis=-1, eps=1e-5):
    m = x.mean(dim=axis, keepdim=True)
    v = x.var(dim=axis, keepdim=True, unbiased=False)
    return (x - m) / torch.sqrt(v + eps)
def _scatter_add(tgt, idx, src, axis=0):
    return tgt.clone().index_add_(axis, idx, src)
def _segment_sum(src, seg, n):
    out = torch.zeros((n,) + src.shape[1:], dtype=src.dtype)
    return out.index_add_(0, seg, src)
def _pad(x, pw):
    flat = tuple(v for pair in reversed(pw) for v in pair)
    return torch.nn.functional.pad(x, flat)

kernel_name = 'sequential_preLN__linear_attn_block__dense_activation_mish__prompt'

def setup_inputs():

    _w = (lambda a: (lambda t: t.to(torch.bfloat16) if t.is_floating_point() else t)(torch.as_tensor(a)))
    def _A_setup():
        B, S, D = 1, 2048, 512
        return {
            "x": _w((lambda *s: torch.randn(*s, dtype=torch.bfloat16) * 0.05)(B, S, D)),
            "wqkv": _w((lambda *s: torch.randn(*s, dtype=torch.bfloat16) * 0.05)(D, 3 * D)),
            "wo": _w((lambda *s: torch.randn(*s, dtype=torch.bfloat16) * 0.05)(D, D)),
        }
    _A_in = _A_setup()

    def _B_setup():
        B, S, D, F = 1, 2048, 512, 1792
        return {
            "x": _w((lambda *s: torch.randn(*s, dtype=torch.bfloat16) * 0.05)(B, S, D)),
            "w1": _w((lambda *s: torch.randn(*s, dtype=torch.bfloat16) * 0.8)(D, F) * (D ** -0.5)),
            "b1": _w((lambda *s: torch.randn(*s, dtype=torch.bfloat16) * 0.2)(F)),
            "w2": _w((lambda *s: torch.randn(*s, dtype=torch.bfloat16) * 0.1)(F, D) * (F ** -0.5)),
        }
    _B_in = _B_setup()

    return {
        "A_x": _A_in["x"],
        "A_wqkv": _A_in["wqkv"],
        "A_wo": _A_in["wo"],
        "B_x": _B_in["x"],
        "B_w1": _B_in["w1"],
        "B_b1": _B_in["b1"],
        "B_w2": _B_in["w2"],
    }

def reference(A_x, A_wqkv, A_wo, B_x, B_w1, B_b1, B_w2):
    def _A_ref(x, wqkv, wo):
        B, S, D = x.shape
        H = 32; Dh = D // H
        qkv = (lambda x, *d: x.permute(*d))((x @ wqkv).reshape(B, S, 3, H, Dh), 2, 0, 3, 1, 4)
        q, k, v = qkv[0], qkv[1], qkv[2]
        phi = lambda t: torch.where(t > 0, t + 1, torch.exp(t)) + 1e-6
        pq, pk = phi(q), phi(k)
        kv = torch.einsum("bhsd,bhse->bhde", pk, v)
        z = torch.einsum("bhsd->bhd", pk)
        num = torch.einsum("bhqd,bhde->bhqe", pq, kv)
        den = torch.einsum("bhqd,bhd->bhq", pq, z)[..., None] + 1e-6
        o = num / den
        return (lambda x, *d: x.permute(*d))(o, 0, 2, 1, 3).reshape(B, S, D) @ wo

    def _B_ref(x, w1, b1, w2):
        h = torch.einsum("bsd,df->bsf", x, w1) + b1
        sp = torch.log1p(torch.exp(-torch.abs(h))) + torch.where(h > 0, h, torch.zeros_like(h))
        act = h * torch.tanh(sp)
        return torch.einsum("bsf,fd->bsd", act, w2)

    x = A_x
    h = x + _A_ref(_layernorm(x, axis=-1), A_wqkv, A_wo)
    h2 = h + _B_ref(_layernorm(h, axis=-1), B_w1, B_b1, B_w2)
    return h2
```

```python
import re

TRANS = ("v_exp_f32", "v_log_f32", "v_rcp_f32", "v_rsq_f32", "v_sqrt_f32", "v_sin_f32", "v_cos_f32")


def regs_of(tok):
    tok = tok.strip()
    m = re.fullmatch(r"-?\|?([vas])(\d+)\|?", tok)
    if m:
        return [(m.group(1), int(m.group(2)))]
    m = re.fullmatch(r"-?\|?([vas])\[(\d+):(\d+)\]\|?", tok)
    if m:
        return [(m.group(1), i) for i in range(int(m.group(2)), int(m.group(3)) + 1)]
    if tok == "vcc":
        return [("s", 106), ("s", 107)]
    if tok == "vcc_lo":
        return [("s", 106)]
    if tok == "vcc_hi":
        return [("s", 107)]
    if tok == "exec":
        return [("s", 126), ("s", 127)]
    if tok == "m0":
        return [("s", 124)]
    return []


def split_ops(s):
    out, depth, cur = [], 0, ""
    for ch in s:
        if ch == "[":
            depth += 1
        if ch == "]":
            depth -= 1
        if ch == "," and depth == 0:
            out.append(cur.strip())
            cur = ""
        else:
            cur += ch
    if cur.strip():
        out.append(cur.strip())
    return out


class I:
    pass


def parse(line):
    t = line.split(";")[0].strip()
    if not t or t.endswith(":") or t.startswith("."):
        return None
    p = t.split(None, 1)
    op = p[0]
    rest = p[1] if len(p) > 1 else ""
    ops = split_ops(rest)
    mods = ""
    if ops:
        lp = ops[-1].split(None, 1)
        ops[-1] = lp[0]
        if len(lp) > 1:
            mods = lp[1]
    i = I()
    i.op, i.ops, i.mods = op, ops, mods
    i.dst, i.src = [], []
    i.kind = "other"
    i.A = i.B = i.C = []
    R = [regs_of(o) for o in ops]
    if op.startswith("v_mfma"):
        i.kind = "mfma"
        i.dst = R[0]
        i.A, i.B, i.C = R[1], R[2], R[3]
        i.src = R[1] + R[2] + R[3]
        i.passes = 8 if "32x32" in op else 4
    elif op.startswith("v_"):
        i.kind = "valu"
        if op.startswith("v_permlane") and "swap" in op:
            i.dst = R[0] + R[1]
            i.src = R[0] + R[1]
        elif op.startswith("v_cmp"):
            i.dst = R[0]
            i.src = sum(R[1:], [])
        elif op.startswith(("v_add_co", "v_sub_co", "v_addc_co", "v_subb_co")):
            i.dst = R[0] + R[1]
            i.src = sum(R[2:], [])
        elif op == "v_nop":
            pass
        else:
            i.dst = R[0]
            i.src = sum(R[1:], [])
            if op.startswith(("v_fmac", "v_dot2c", "v_mac")):
                i.src = i.src + R[0]
            if op.startswith("v_cndmask") and len(ops) == 3:
                i.src = i.src + [("s", 106), ("s", 107)]
    elif op.startswith(("buffer_", "global_")):
        i.kind = "vmem"
        lds = (" lds" in (" " + mods)) or "_lds_" in op
        if "load" in op and not lds:
            i.dst = R[0]
            i.src = sum(R[1:], [])
        elif "atomic" in op and "sc0" in mods and op.startswith("global_") and len(ops) == 4:
            i.dst = R[0]
            i.src = sum(R[1:], [])
        elif "atomic" in op and "sc0" in mods and op.startswith("buffer_"):
            i.dst = R[0]
            i.src = sum(R, [])
        else:
            i.src = sum(R, [])
        if lds:
            i.src = i.src + [("s", 124)]
            i.ldsdma = True
        i.wide = ("store" in op) and ("x3" in op or "x4" in op)
        if i.wide:
            i.data = R[0] if op.startswith("buffer_") else R[1]
    elif op.startswith("ds_"):
        i.kind = "ds"
        if op.startswith(("ds_read", "ds_bpermute", "ds_permute", "ds_swizzle")):
            i.dst = R[0]
            i.src = sum(R[1:], [])
        else:
            i.src = sum(R, [])
    elif op.startswith("s_"):
        i.kind = "salu"
        if op.startswith(("s_cmp", "s_cbranch", "s_branch", "s_waitcnt", "s_barrier", "s_nop", "s_endpgm",
                          "s_setprio", "s_sleep", "s_bitcmp")):
            i.src = sum(R, [])
        else:
            i.dst = R[0] if R else []
            i.src = sum(R[1:], [])
            if "saveexec" in op:
                i.dst = i.dst + [("s", 126), ("s", 127)]
    return i


def need(p, c):
    n = 0
    pd = set(p.dst)
    if p.kind == "valu":
        pv = {r for r in pd if r[0] in "va"}
        ps = {r for r in pd if r[0] == "s"}
        if c.kind == "mfma" and pv & set(c.src):
            n = max(n, 2)
        if c.kind == "valu":
            if p.op.startswith(TRANS) and not c.op.startswith(TRANS) and pv & set(c.src):
                n = max(n, 1)
            if p.op.startswith("v_dot") and pv & (set(c.src) | set(c.dst)):
                if not (c.op == p.op and not (pv & set(c.src[:len(c.src) - len(c.dst)]))):
                    n = max(n, 3)
            if c.op.startswith(("v_readfirstlane", "v_readlane")) and pv & set(c.src):
                n = max(n, 1)
            if c.op.startswith("v_permlane") and pv & set(c.src):
                n = max(n, 2)
            if ("dpp" in c.op or "row_" in c.mods or "quad_perm" in c.mods) and pv & set(c.src):
                n = max(n, 2)
            if ps & set(c.src):
                n = max(n, 4 if c.op.startswith(("v_readlane", "v_writelane")) else 2)
        if c.kind in ("vmem", "ds"):
            if ps & set(c.src):
                n = max(n, 5)
            if (p.op.startswith(TRANS)) and pv & set(c.src):
                n = max(n, 1)
            if p.op.startswith("v_dot") and pv & set(c.src):
                n = max(n, 3)
        if c.kind == "mfma" and p.op.startswith("v_dot") and pv & set(c.src):
            n = max(n, 3)
        if c.kind == "salu" and ps & set(c.src):
            n = max(n, 1)
    if p.kind == "mfma":
        big = {4: 8, 8: 12}[p.passes]
        if c.kind == "mfma":
            if pd & (set(c.A) | set(c.B)):
                n = max(n, big)
            if pd & set(c.C):
                if not (list(p.dst) == list(c.C) and p.passes == c.passes):
                    n = max(n, big - 2)
            elif pd & set(c.dst):
                n = max(n, big)
        elif c.kind in ("valu", "vmem", "ds"):
            if pd & (set(c.src) | set(c.dst)):
                n = max(n, big)
        if c.kind == "valu" and set(p.C) & set(c.dst):
            n = max(n, {4: 3, 8: 7}[p.passes])
    if p.kind == "vmem" and getattr(p, "wide", False):
        if set(p.data) & set(c.dst):
            n = max(n, 2 if c.kind in ("valu", "mfma") else 1)
    if p.kind == "salu" and ("s", 124) in pd and getattr(c, "ldsdma", False):
        n = max(n, 1)
    return n


def fix(lines):
    out = []
    hist = []
    for line in lines:
        for sub in line.split("\n"):
            c = parse(sub)
            if c is None:
                out.append(sub)
                continue
            req = 0
            for p, age in hist:
                r = need(p, c) - age
                if r > req:
                    req = r
            if req > 0:
                k = req
                while k > 0:
                    m = min(k, 8)
                    out.append("s_nop %d" % (m - 1))
                    k -= m
                hist = [[p, a + req] for p, a in hist]
            out.append(sub)
            w = 1
            if c.op == "s_nop":
                w = int(c.ops[0]) + 1
            hist = [[p, a + w] for p, a in hist if a + w < 24]
            hist.append([c, 0])
    return out
```

```python
import sys, struct
sys.path.insert(0, "tools")
import hz

OUT = sys.argv[1]
OPTS = set(sys.argv[2:])
STAMP = "stamp" in OPTS

WS_PQ = 0x000000
WS_KV = 0x200000
WS_Z = 0x208000
WS_H = 0x400000
WS_ST = 0x600000
WS_ACT = 0x800000
WS_STAMP = 0x8000000


def f32(x):
    return "0x%08x" % struct.unpack("<I", struct.pack("<f", x))[0]


LOG2E = 1.4426950408889634
LN2 = 0.6931471805599453


class K:
    def __init__(self, name):
        self.name = name
        self.L = []
        self.nv = 1
        self.maxv = 0

    def e(self, s):
        self.L.append(s)

    def alloc(self, n=1, align=1):
        if n >= 2 and align < 2:
            align = 2
        self.nv = (self.nv + align - 1) // align * align
        r = self.nv
        self.nv += n
        return r


def vr(n, c=1):
    p = "v"
    if n >= 256:
        p = "a"
        n -= 256
    if c == 1:
        return "%s%d" % (p, n)
    return "%s[%d:%d]" % (p, n, n + c - 1)


def sr(n, c=1):
    return "s%d" % n if c == 1 else "s[%d:%d]" % (n, n + c - 1)


def head(k, nwg):
    e = k.e
    e(".globl %s\n.p2align 8\n.type %s,@function\n%s:" % (k.name, k.name, k.name))
    e("s_cmp_ge_u32 s2, %d" % nwg)
    e("s_cbranch_scc1 L_done_%s" % k.name)
    if STAMP:
        e("s_memrealtime s[96:97]")


def tail(k, slot, srd_ws):
    e = k.e
    if STAMP:
        e("s_waitcnt vmcnt(0)")
        e("s_barrier")
        e("s_memrealtime s[98:99]")
        e("s_waitcnt lgkmcnt(0)")
        e("v_mov_b32 v4, s96\nv_mov_b32 v5, s97\nv_mov_b32 v6, s98\nv_mov_b32 v7, s99")
        e("s_lshl_b32 s95, s2, 4\ns_add_u32 s95, s95, %d" % (WS_STAMP + slot * 4096))
        e("v_mov_b32 v8, 0")
        e("v_cmp_eq_u32 vcc, 0, v0\ns_and_saveexec_b64 s[92:93], vcc\ns_cbranch_execz L_done_%s" % k.name)
        e("buffer_store_dwordx4 v[4:7], v8, %s, s95 offen" % sr(srd_ws, 4))
    e("L_done_%s:\ns_endpgm" % k.name)


def srd(k, base, karg_off, size):
    k.e("s_load_dwordx2 %s, s[0:1], %d" % (sr(base, 2), karg_off))
    k.e("s_mov_b32 s%d, 0x%x" % (base + 2, size))
    k.e("s_mov_b32 s%d, 0x20000" % (base + 3))


def interleave(main, fill, per=1, start=0):
    out = []
    fi = 0
    for i, m in enumerate(main):
        out.append(m)
        if i >= start:
            for _ in range(per):
                if fi < len(fill):
                    out.append(fill[fi])
                    fi += 1
    out += fill[fi:]
    return out


def mfma32(d, a, b, c=None):
    cs = vr(d, 4) if c is None else (c if isinstance(c, str) else vr(c, 4))
    return "v_mfma_f32_16x16x32_bf16 %s, %s, %s, %s" % (vr(d, 4), vr(a, 4), vr(b, 4), cs)


def mfma16(d, a, b, c):
    cs = c if isinstance(c, str) else vr(c, 4)
    return "v_mfma_f32_16x16x16_bf16 %s, %s, %s, %s" % (vr(d, 4), vr(a, 2), vr(b, 2), cs)


def k1():
    k = K("k1_kernel")
    e = k.e
    S = 5
    SX, SW, SWS, SDB = 8, 12, 16, 20
    s_w, s_rb, s_cg, s_ph, s_t, s_zf = 24, 25, 26, 27, 28, 29
    s_ox, s_ow, s_m0x, s_m0w = 30, 31, 32, 33
    s_t2 = 34
    head(k, 256)
    srd(k, SX, 0, 2048 * 1024)
    srd(k, SW, 8, 512 * 3072)
    srd(k, SDB, 64, 256)
    srd(k, SWS, 72, 0x10000000)
    e("s_and_b32 s%d, s2, 7" % s_t)
    e("s_lshr_b32 s%d, s2, 3" % s_t2)
    e("s_lshr_b32 s%d, s%d, 1" % (s_rb, s_t))
    e("s_lshl_b32 s%d, s%d, 3" % (s_rb, s_rb))
    e("s_and_b32 s%d, s%d, 7" % (s_ph, s_t2))
    e("s_add_u32 s%d, s%d, s%d" % (s_rb, s_rb, s_ph))
    e("s_and_b32 s%d, s%d, 1" % (s_cg, s_t))
    e("s_lshl_b32 s%d, s%d, 2" % (s_cg, s_cg))
    e("s_lshr_b32 s%d, s%d, 3" % (s_t2, s_t2))
    e("s_add_u32 s%d, s%d, s%d" % (s_cg, s_cg, s_t2))
    e("s_lshl_b32 s%d, s%d, 1" % (s_t2, s_t2))
    e("s_add_u32 s%d, s%d, s%d" % (s_ph, s_ph, s_t2))
    e("s_mov_b32 s%d, 0" % s_zf)
    lane, t0, t1, t2 = k.alloc(), k.alloc(), k.alloc(), k.alloc()
    vx0, vx1, vw0, vw1 = k.alloc(), k.alloc(), k.alloc(), k.alloc()
    e("v_lshrrev_b32 %s, 6, v0" % vr(t0))
    e("v_and_b32 %s, 63, v0" % vr(lane))
    e("v_readfirstlane_b32 s%d, %s" % (s_w, vr(t0)))
    e("v_lshrrev_b32 %s, 3, v0" % vr(t0))
    e("v_lshrrev_b32 %s, 6, v0" % vr(t1))
    e("v_lshl_add_u32 %s, %s, 3, %s" % (vr(t0), vr(t1), vr(t0)))
    e("v_lshrrev_b32 %s, 4, %s" % (vr(t1), vr(lane)))
    e("v_and_b32 %s, 7, v0" % vr(t2))
    e("v_xor_b32 %s, %s, %s" % (vr(t1), vr(t1), vr(t2)))
    e("v_lshlrev_b32 %s, 4, %s" % (vr(t1), vr(t1)))
    e("v_lshl_add_u32 %s, %s, 10, %s" % (vr(vx0), vr(t0), vr(t1)))
    e("v_xor_b32 %s, 64, %s" % (vr(vx1), vr(vx0)))
    e("v_add_u32 %s, %d, %s" % (vr(vx1), 8192 - 1024, vr(vx1)))
    e("v_bfe_u32 %s, v0, 4, 1" % vr(t1))
    e("v_lshlrev_b32 %s, 1, %s" % (vr(t1), vr(t1)))
    e("v_xor_b32 %s, %s, %s" % (vr(t1), vr(t1), vr(t2)))
    e("v_lshlrev_b32 %s, 4, %s" % (vr(t1), vr(t1)))
    e("v_mul_u32_u24 %s, 3072, %s" % (vr(vw0), vr(t0)))
    e("v_add_u32 %s, %s, %s" % (vr(vw0), vr(vw0), vr(t1)))
    e("v_xor_b32 %s, 64, %s" % (vr(vw1), vr(vw0)))
    e("v_add_u32 %s, %d, %s" % (vr(vw1), 8 * 3072, vr(vw1)))
    s_xb, s_wb = 35, 36
    e("s_lshl_b32 s%d, s%d, 16" % (s_xb, s_rb))
    e("s_lshl_b32 s%d, s%d, 7" % (s_wb, s_cg))
    e("s_lshl_b32 s%d, s%d, 11" % (s_m0x, s_w))
    e("s_mul_i32 s%d, s%d, 6144" % (s_m0w, s_w))
    e("s_add_u32 s%d, s%d, 8192" % (s_m0w, s_m0w))
    vT, vdo = k.alloc(), k.alloc()
    e("v_mov_b32 %s, 1" % vr(vT))
    e("s_lshl_b32 s%d, s%d, 2" % (s_t, s_cg))
    e("v_mov_b32 %s, s%d" % (vr(vdo), s_t))
    e("s_waitcnt lgkmcnt(0)")
    e("s_cmp_lg_u32 s%d, 0" % s_w)
    e("s_cbranch_scc1 L_k1_a")
    e("s_mov_b64 exec, 1")
    e("buffer_atomic_add %s, %s, %s, 0 offen sc0" % (vr(vT), vr(vdo), sr(SDB, 4)))
    e("s_mov_b64 exec, -1")
    e("L_k1_a:")

    def dma(c):
        o = []
        slot = (c % S) * 32768
        o.append("s_add_u32 s%d, s%d, %d" % (s_t, s_ph, c))
        o.append("s_and_b32 s%d, s%d, 7" % (s_t, s_t))
        o.append("s_lshl_b32 s%d, s%d, 7" % (s_ox, s_t))
        o.append("s_add_u32 s%d, s%d, s%d" % (s_ox, s_ox, s_xb))
        o.append("s_mul_i32 s%d, s%d, %d" % (s_ow, s_t, 64 * 3072))
        o.append("s_add_u32 s%d, s%d, s%d" % (s_ow, s_ow, s_wb))
        o.append("s_add_u32 m0, s%d, %d" % (s_m0x, slot))
        o.append("buffer_load_dwordx4 %s, %s, s%d offen lds" % (vr(vx0), sr(SX, 4), s_ox))
        o.append("buffer_load_dwordx4 %s, %s, s%d offen offset:1024 lds" % (vr(vx1), sr(SX, 4), s_ox))
        o.append("s_add_u32 m0, s%d, %d" % (s_m0w, slot))
        for sg in range(3):
            o.append("buffer_load_dwordx4 %s, %s, s%d offen offset:%d lds" % (vr(vw0), sr(SW, 4), s_ow, sg * 1024))
        o.append("s_add_u32 m0, s%d, %d" % (s_m0w, slot + 3072))
        for sg in range(3):
            o.append("buffer_load_dwordx4 %s, %s, s%d offen offset:%d lds" % (vr(vw1), sr(SW, 4), s_ow, sg * 1024))
        return o

    for c in range(S):
        for x in dma(c):
            e(x)
    vA = [[k.alloc() for _ in range(5)] for _ in range(3)]
    g, i15 = k.alloc(), k.alloc()
    e("v_lshrrev_b32 %s, 4, %s" % (vr(g), vr(lane)))
    e("v_and_b32 %s, 15, v0" % vr(i15))
    e("v_lshrrev_b32 %s, 1, %s" % (vr(t0), vr(i15)))
    e("v_xor_b32 %s, %s, %s" % (vr(t0), vr(t0), vr(g)))
    e("v_lshlrev_b32 %s, 4, %s" % (vr(t0), vr(t0)))
    e("v_lshl_add_u32 %s, %s, 7, %s" % (vr(vA[0][0]), vr(i15), vr(t0)))
    e("v_xor_b32 %s, 64, %s" % (vr(vA[0][1]), vr(vA[0][0])))
    e("v_add_u32 %s, s%d, %s" % (vr(vA[0][2]), s_m0x, vr(vA[0][0])))
    e("v_add_u32 %s, s%d, %s" % (vr(vA[0][3]), s_m0x, vr(vA[0][1])))
    e("v_bfe_u32 %s, v0, 3, 2" % vr(t0))
    e("v_xor_b32 %s, s%d, %s" % (vr(t0), s_w, vr(t0)))
    e("v_lshlrev_b32 %s, 5, %s" % (vr(t0), vr(t0)))
    e("v_and_b32 %s, 3, v0" % vr(t1))
    e("v_lshl_add_u32 %s, %s, 3, %s" % (vr(t0), vr(t1), vr(t0)))
    e("v_bfe_u32 %s, v0, 2, 2" % vr(t1))
    e("v_lshl_add_u32 %s, %s, 7, %s" % (vr(t0), vr(t1), vr(t0)))
    e("v_mul_u32_u24 %s, 3072, %s" % (vr(t1), vr(g)))
    e("v_add3_u32 %s, %s, %s, %s" % (vr(vA[0][4]), vr(t0), vr(t1), "s%d" % 37))
    idx = len(k.L) - 1
    k.L.insert(idx, "s_movk_i32 s37, 8192")
    for st in (1, 2):
        for q in range(5):
            e("v_add_u32 %s, 0x%x, %s" % (vr(vA[st][q]), 65536 * st, vr(vA[0][q])))
    aq = k.alloc(16, 4)
    ak = k.alloc(16, 4)
    av = k.alloc(16, 4)
    cs = k.alloc(12, 4)
    stq, sts = k.alloc(4, 4), k.alloc(4, 4)
    ones = k.alloc(4, 4)
    FR = [dict(x=k.alloc(16, 4), xs=k.alloc(4, 4), w=k.alloc(12, 4)) for _ in range(2)]
    for r in range(aq, sts + 4):
        e("v_mov_b32 %s, 0" % vr(r))
    for r in range(4):
        e("v_mov_b32 %s, 0x3f803f80" % vr(ones + r))
    e("s_cmp_lg_u32 s%d, 0" % s_w)
    e("s_cbranch_scc1 L_k1_b")
    e("s_waitcnt vmcnt(%d)" % (8 * S))
    e("v_readfirstlane_b32 s%d, %s" % (s_t, vr(vT)))
    e("s_cmp_lg_u32 s%d, 0" % s_t)
    e("s_cbranch_scc1 L_k1_b")
    e("s_mov_b32 s%d, 1" % s_zf)
    e("v_lshlrev_b32 %s, 4, %s" % (vr(t0), vr(lane)))
    e("s_lshl_b32 s%d, s%d, 12" % (s_t, s_cg))
    e("s_add_u32 s%d, s%d, 0x%x" % (s_t, s_t, WS_KV))
    for q in range(4):
        e("buffer_store_dwordx4 %s, %s, %s, s%d offen offset:%d sc1" % (vr(aq, 4), vr(t0), sr(SWS, 4), s_t, q * 1024))
    e("v_lshlrev_b32 %s, 2, %s" % (vr(t1), vr(lane)))
    e("s_lshl_b32 s%d, s%d, 8" % (s_t, s_cg))
    e("s_add_u32 s%d, s%d, 0x%x" % (s_t, s_t, WS_Z))
    e("buffer_store_dword %s, %s, %s, s%d offen sc1" % (vr(aq), vr(t1), sr(SWS, 4), s_t))
    e("s_nop 1")
    e("L_k1_b:")

    def reads(it, ks, F):
        slot = it % S
        A = vA[slot // 2]
        so = (slot % 2) * 32768
        o = []
        for sg in range(3):
            for hf in range(2):
                o.append("ds_read_b64_tr_b16 %s, %s offset:%d" % (vr(F["w"] + sg * 4 + hf * 2, 2), vr(A[4]), so + ks * 12288 + sg * 1024 + hf * 512))
            if sg == 0:
                o.append("ds_read_b128 %s, %s offset:%d" % (vr(F["x"], 4), vr(A[ks]), so))
        for rt in range(1, 4):
            o.append("ds_read_b128 %s, %s offset:%d" % (vr(F["x"] + 4 * rt, 4), vr(A[ks]), so + rt * 2048))
        o.append("ds_read_b128 %s, %s offset:%d" % (vr(F["xs"], 4), vr(A[2 + ks]), so))
        return o

    def mf(F, last=False):
        o = []
        st = [mfma32(stq, F["xs"], F["xs"]), mfma32(sts, ones, F["xs"])]
        if last:
            o += st
        o.append(mfma32(cs + 0, F["w"] + 0, ones))
        o.append(mfma32(cs + 4, ones, F["w"] + 4))
        o.append(mfma32(cs + 8, ones, F["w"] + 8))
        for rt in range(4):
            if not last:
                o.append(mfma32(aq + 4 * rt, F["w"] + 0, F["x"] + 4 * rt))
            o.append(mfma32(ak + 4 * rt, F["x"] + 4 * rt, F["w"] + 4))
            o.append(mfma32(av + 4 * rt, F["x"] + 4 * rt, F["w"] + 8))
        if last:
            for rt in range(4):
                o.append(mfma32(aq + 4 * rt, F["w"] + 0, F["x"] + 4 * rt))
        else:
            o += st
        return o

    vF = k.alloc()
    issued = S
    for it in range(8):
        outstanding = issued - (it + 1)
        e("s_waitcnt vmcnt(%d)" % (8 * outstanding))
        e("s_barrier")
        r0 = reads(it, 0, FR[0])
        extra = []
        if it >= 1 and issued < 8:
            extra = dma(issued)
            issued += 1
        if it == 4:
            e("s_cmp_lg_u32 s%d, 1" % s_zf)
            e("s_cbranch_scc1 L_k1_c")
            e("s_mov_b64 exec, 1")
            e("v_mov_b32 %s, 1" % vr(vT))
            e("buffer_store_dword %s, %s, %s, 0 offen offset:128 sc1" % (vr(vT), vr(vdo), sr(SDB, 4)))
            e("s_mov_b64 exec, -1")
            e("L_k1_c:")
        if it == 7:
            extra = ["buffer_load_dword %s, %s, %s, 0 offen offset:128 sc1" % (vr(vF), vr(vdo), sr(SDB, 4))]
        if it == 0:
            for x in r0:
                e(x)
        else:
            for x in r0[:3]:
                e(x)
            for x in interleave(mf(FR[1]), r0[3:] + extra, per=2):
                e(x)
        r1 = reads(it, 1, FR[1])
        for x in r1[:2]:
            e(x)
        e("s_waitcnt lgkmcnt(2)")
        for x in interleave(mf(FR[0]), r1[2:], per=1):
            e(x)
        e("s_waitcnt lgkmcnt(0)")
    m = mf(FR[1], last=True)
    ST = 3 * 32768
    for x in m[:6]:
        e(x)
    e("v_and_b32 %s, 3, v0" % vr(t0))
    e("v_cmp_eq_u32 s[40:41], 1, %s" % vr(t0))
    e("v_cmp_eq_u32 s[42:43], 2, %s" % vr(t0))
    e("v_cmp_eq_u32 s[44:45], 3, %s" % vr(t0))
    for x in m[6:10]:
        e(x)
    e("v_cndmask_b32 %s, %s, %s, s[40:41]" % (vr(t0), vr(stq), vr(stq + 1)))
    e("v_cndmask_b32 %s, %s, %s, s[42:43]" % (vr(t0), vr(t0), vr(stq + 2)))
    e("v_cndmask_b32 %s, %s, %s, s[44:45]" % (vr(t0), vr(t0), vr(stq + 3)))
    e(m[10])
    e("v_mul_f32 %s, %s, %s" % (vr(t1), f32(-1.0 / 512), vr(sts)))
    e("v_mul_f32 %s, %s, %s" % (vr(t0), f32(1.0 / 512), vr(t0)))
    e(m[11])
    e("v_fma_f32 %s, -%s, %s, %s" % (vr(t0), vr(t1), vr(t1), vr(t0)))
    e("v_max_f32 %s, 0, %s" % (vr(t0), vr(t0)))
    e(m[12])
    e("v_add_f32 %s, %s, %s" % (vr(t0), f32(1e-5), vr(t0)))
    e("v_rsq_f32 %s, %s" % (vr(t0), vr(t0)))
    e(m[13])
    e("v_lshlrev_b32 %s, 2, %s" % (vr(t2), vr(i15)))
    e("v_mul_f32 %s, %s, %s" % (vr(t0), f32(LOG2E), vr(t0)))
    e("s_lshl_b32 s%d, s%d, 6" % (s_t, s_w))
    e("s_add_u32 s%d, s%d, %d" % (s_t, s_t, ST))
    e("v_add_u32 %s, s%d, %s" % (vr(t2), s_t, vr(t2)))
    e("s_mov_b32 exec_lo, 0x00f0000f")
    e("s_mov_b32 exec_hi, 0xf0000f00")
    e("ds_write_b32 %s, %s" % (vr(t2), vr(t1)))
    e("ds_write_b32 %s, %s offset:256" % (vr(t2), vr(t0)))
    e("s_mov_b64 exec, -1")
    for x in m[14:]:
        e(x)
    va, vb = vA[0][0], vA[0][1]
    e("v_lshlrev_b32 %s, 4, %s" % (vr(va), vr(g)))
    e("v_add_u32 %s, %d, %s" % (vr(va), ST, vr(va)))
    e("v_lshlrev_b32 %s, 2, %s" % (vr(vb), vr(i15)))
    e("v_add_u32 %s, %d, %s" % (vr(vb), ST, vr(vb)))
    e("s_waitcnt lgkmcnt(0)")
    e("s_barrier")
    NM = FR[0]["x"]
    RL = FR[0]["xs"]
    assert FR[0]["w"] == FR[0]["xs"] + 4
    QN = k.alloc(8, 2)
    for rt in range(4):
        e("ds_read_b128 %s, %s offset:%d" % (vr(NM + 4 * rt, 4), vr(va), rt * 64))
        e("ds_read_b128 %s, %s offset:%d" % (vr(RL + 4 * rt, 4), vr(va), 256 + rt * 64))
    for rt in range(4):
        e("ds_read2_b32 %s, %s offset0:%d offset1:%d" % (vr(QN + 2 * rt, 2), vr(vb), rt * 16, 64 + rt * 16))
    cst = k.alloc(2, 2)
    ceps = k.alloc(2, 2)
    e("v_mov_b32 %s, %s" % (vr(cst), f32(LN2)))
    e("v_mov_b32 %s, %s" % (vr(cst + 1), f32(1.000001)))
    e("v_mov_b32 %s, %s" % (vr(ceps), f32(1e-6)))
    e("v_mov_b32 %s, %s" % (vr(ceps + 1), f32(1e-6)))
    PK = FR[1]["x"]
    PV = PK + 8
    tm = k.alloc(8, 2)

    def phi(a, dst):
        E, U = tm, tm + 2
        e("v_exp_f32_e64 %s, %s clamp" % (vr(E), vr(a)))
        e("v_exp_f32_e64 %s, %s clamp" % (vr(E + 1), vr(a + 1)))
        e("v_pk_fma_f32 %s, %s, %s, %s op_sel:[0,0,1] op_sel_hi:[1,0,1]" % (vr(U, 2), vr(a, 2), vr(cst, 2), vr(cst, 2)))
        e("v_pk_add_f32 %s, %s, %s" % (vr(E, 2), vr(E, 2), vr(ceps, 2)))
        e("v_max_f32 %s, %s, %s" % (vr(U), vr(U), vr(E)))
        e("v_max_f32 %s, %s, %s" % (vr(U + 1), vr(U + 1), vr(E + 1)))
        e("v_cvt_pk_bf16_f32 %s, %s, %s" % (vr(dst), vr(U), vr(U + 1)))

    for rt in range(4):
        e("s_waitcnt lgkmcnt(%d)" % (4 + 2 * (3 - rt)))
        for hp in range(2):
            o = 4 * rt + 2 * hp
            e("v_pk_fma_f32 %s, %s, %s, %s" % (vr(ak + o, 2), vr(NM + o, 2), vr(cs + 4, 2), vr(ak + o, 2)))
            e("v_pk_fma_f32 %s, %s, %s, %s" % (vr(av + o, 2), vr(NM + o, 2), vr(cs + 8, 2), vr(av + o, 2)))
            e("v_pk_mul_f32 %s, %s, %s" % (vr(ak + o, 2), vr(ak + o, 2), vr(RL + o, 2)))
            e("v_pk_mul_f32 %s, %s, %s" % (vr(av + o, 2), vr(av + o, 2), vr(RL + o, 2)))
            phi(ak + o, PK + 2 * rt + hp)
            e("v_cvt_pk_bf16_f32 %s, %s, %s" % (vr(PV + 2 * rt + hp), vr(av + o), vr(av + o + 1)))
    kv, zz = stq, sts
    e(mfma32(kv, PV, PK, "0"))
    e(mfma32(zz, ones, PK, "0"))
    e(mfma32(kv, PV + 4, PK + 4))
    e(mfma32(zz, ones, PK + 4))
    e("v_lshlrev_b32 %s, 8, %s" % (vr(t0), vr(g)))
    e("v_lshl_add_u32 %s, %s, 2, %s" % (vr(t0), vr(i15), vr(t0)))
    e("s_lshl_b32 s%d, s%d, 2" % (s_t, s_cg))
    e("s_add_u32 s%d, s%d, s%d" % (s_t, s_t, s_w))
    e("s_lshl_b32 s%d, s%d, 10" % (s_ox, s_t))
    e("s_add_u32 s%d, s%d, 0x%x" % (s_ox, s_ox, WS_KV))
    e("s_lshl_b32 s%d, s%d, 6" % (s_ow, s_t))
    e("s_add_u32 s%d, s%d, 0x%x" % (s_ow, s_ow, WS_Z))
    e("L_k1_poll:")
    e("s_waitcnt vmcnt(0)")
    e("v_readfirstlane_b32 s%d, %s" % (s_t2, vr(vF)))
    e("s_cmp_lg_u32 s%d, 0" % s_t2)
    e("s_cbranch_scc1 L_k1_go")
    e("s_sleep 1")
    e("buffer_load_dword %s, %s, %s, 0 offen offset:128 sc1" % (vr(vF), vr(vdo), sr(SDB, 4)))
    e("s_branch L_k1_poll")
    e("L_k1_go:")
    e("v_pk_mul_f32 %s, %s, %s op_sel_hi:[1,0]" % (vr(kv, 2), vr(kv, 2), vr(cst, 2)))
    e("v_pk_mul_f32 %s, %s, %s op_sel_hi:[1,0]" % (vr(kv + 2, 2), vr(kv + 2, 2), vr(cst, 2)))
    for r in range(4):
        e("buffer_atomic_add_f32 %s, %s, %s, s%d offen offset:%d" % (vr(kv + r), vr(t0), sr(SWS, 4), s_ox, r * 64))
    e("s_mov_b64 exec, 0xffff")
    e("buffer_atomic_add_f32 %s, %s, %s, s%d offen" % (vr(zz), vr(t0), sr(SWS, 4), s_ow))
    e("s_mov_b64 exec, -1")
    e("s_waitcnt lgkmcnt(0)")
    e("v_lshlrev_b32 %s, 4, %s" % (vr(t1), vr(lane)))
    e("s_lshr_b32 s%d, s%d, 1" % (s_ox, s_t))
    e("s_lshl_b32 s%d, s%d, 10" % (s_ox, s_ox))
    e("s_and_b32 s%d, s%d, 1" % (s_t, s_t))
    e("s_lshl_b32 s%d, s%d, 3" % (s_t, s_t))
    e("s_add_u32 s%d, s%d, s%d" % (s_ox, s_ox, s_t))
    e("s_add_u32 s%d, s%d, s%d" % (s_ox, s_ox, s_xb))
    if WS_PQ:
        e("s_add_u32 s%d, s%d, 0x%x" % (s_ox, s_ox, WS_PQ))
    PQ = ak
    for rt in range(4):
        for hp in range(2):
            o = 4 * rt + 2 * hp
            e("v_pk_fma_f32 %s, %s, %s, %s op_sel_hi:[1,0,1]" % (vr(aq + o, 2), vr(cs + 2 * hp, 2), vr(QN + 2 * rt, 2), vr(aq + o, 2)))
            e("v_pk_mul_f32 %s, %s, %s op_sel:[0,1] op_sel_hi:[1,1]" % (vr(aq + o, 2), vr(aq + o, 2), vr(QN + 2 * rt, 2)))
            phi(aq + o, PQ + 2 * rt + hp)
        e("buffer_store_dwordx2 %s, %s, %s, s%d offen" % (vr(PQ + 2 * rt, 2), vr(t1), sr(SWS, 4), s_ox))
        if rt < 3:
            e("s_add_u32 s%d, s%d, 16384" % (s_ox, s_ox))
    tail(k, 0, SWS)
    k.lds = S * 32768
    return k


def tr_addr(k, dst4, t0, t1, s_base):
    e = k.e
    e("v_bfe_u32 %s, v0, 2, 4" % vr(t0))
    e("v_lshlrev_b32 %s, 7, %s" % (vr(t0), vr(t0)))
    e("v_and_b32 %s, 3, v0" % vr(t1))
    e("v_lshl_add_u32 %s, %s, 3, %s" % (vr(t0), vr(t1), vr(t0)))
    e("v_bfe_u32 %s, v0, 3, 2" % vr(t1))
    e("v_lshl_add_u32 %s, %s, 5, %s" % (vr(t0), vr(t1), vr(t0)))
    e("v_add_u32 %s, s%d, %s" % (vr(dst4), s_base, vr(t0)))
    for nt in range(1, 4):
        e("v_xor_b32 %s, %d, %s" % (vr(dst4 + nt), nt * 32, vr(dst4)))


def dma_off(k, dst, t0, t1):
    e = k.e
    e("v_bfe_u32 %s, v0, 4, 2" % vr(t0))
    e("v_lshlrev_b32 %s, 1, %s" % (vr(t0), vr(t0)))
    e("v_and_b32 %s, 7, v0" % vr(t1))
    e("v_xor_b32 %s, %s, %s" % (vr(t0), vr(t0), vr(t1)))
    e("v_lshlrev_b32 %s, 4, %s" % (vr(t0), vr(t0)))
    e("v_bfe_u32 %s, v0, 3, 3" % vr(t1))
    e("v_lshl_add_u32 %s, %s, 10, %s" % (vr(dst), vr(t1), vr(t0)))


def rowmajor_off(k, dst, t0, t1):
    e = k.e
    e("v_bfe_u32 %s, v0, 4, 1" % vr(t0))
    e("v_lshlrev_b32 %s, 5, %s" % (vr(t0), vr(t0)))
    e("v_bfe_u32 %s, v0, 5, 1" % vr(t1))
    e("v_lshl_add_u32 %s, %s, 4, %s" % (vr(t0), vr(t1), vr(t0)))
    e("v_and_b32 %s, 15, v0" % vr(t1))
    e("v_lshl_add_u32 %s, %s, 10, %s" % (vr(dst), vr(t1), vr(t0)))


def xg_reduce(k, regs, tmp):
    e = k.e
    for sw in ("v_permlane16_swap_b32", "v_permlane32_swap_b32"):
        for j, r in enumerate(regs):
            e("v_mov_b32 %s, %s" % (vr(tmp + j), vr(r)))
        for j, r in enumerate(regs):
            e("%s %s, %s" % (sw, vr(r), vr(tmp + j)))
        for j, r in enumerate(regs):
            e("v_add_f32 %s, %s, %s" % (vr(r), vr(r), vr(tmp + j)))


def k2():
    k = K("k2_kernel")
    e = k.e
    SX, SW, SWS = 8, 12, 16
    s_w, s_rb, s_cb, s_t, s_t2, s_o, s_o2 = 24, 25, 26, 27, 28, 29, 30
    head(k, 256)
    srd(k, SWS, 72, 0x10000000)
    srd(k, SW, 16, 512 * 1024)
    srd(k, SX, 0, 2048 * 1024)
    e("s_and_b32 s%d, s2, 7" % s_rb)
    e("s_lshl_b32 s%d, s%d, 2" % (s_rb, s_rb))
    e("s_bfe_u32 s%d, s2, 0x20003" % s_t)
    e("s_add_u32 s%d, s%d, s%d" % (s_rb, s_rb, s_t))
    e("s_lshr_b32 s%d, s2, 5" % s_cb)
    t0, t1, t2, t3 = k.alloc(), k.alloc(), k.alloc(), k.alloc()
    l16, vkv, vz, vd, vxo = k.alloc(), k.alloc(), k.alloc(), k.alloc(), k.alloc()
    e("v_lshrrev_b32 %s, 6, v0" % vr(t0))
    e("v_and_b32 %s, 63, v0" % vr(l16))
    e("v_readfirstlane_b32 s%d, %s" % (s_w, vr(t0)))
    e("v_lshlrev_b32 %s, 4, %s" % (vr(l16), vr(l16)))
    e("v_bfe_u32 %s, v0, 4, 2" % vr(t0))
    e("v_lshlrev_b32 %s, 4, %s" % (vr(t0), vr(t0)))
    e("v_and_b32 %s, 15, v0" % vr(t1))
    e("v_lshl_add_u32 %s, %s, 6, %s" % (vr(vkv), vr(t1), vr(t0)))
    e("v_and_b32 %s, 3, v0" % vr(t1))
    e("v_lshl_add_u32 %s, %s, 6, %s" % (vr(vz), vr(t1), vr(t0)))
    for c in range(4):
        e("v_cmp_eq_u32 s[%d:%d], %d, %s" % (40 + 2 * c, 41 + 2 * c, c, vr(t1)))
    dma_off(k, vd, t0, t1)
    rowmajor_off(k, vxo, t0, t1)
    KVF = k.alloc(32, 4)
    ZF = k.alloc(8, 4)
    PQ = k.alloc(64, 4)
    XR = k.alloc(8, 4)
    e("s_lshl_b32 s%d, s%d, 13" % (s_o, s_w))
    e("s_add_u32 s%d, s%d, 0x%x" % (s_o, s_o, WS_KV))
    e("s_add_u32 s%d, s%d, 4096" % (s_o2, s_o))
    e("s_lshl_b32 s%d, s%d, 9" % (s_t, s_w))
    e("s_add_u32 s%d, s%d, 0x%x" % (s_t, s_t, WS_Z))
    s_pq = [32, 33, 34, 35]
    for u in range(4):
        e("s_add_u32 s%d, s%d, %d" % (s_t2, s_w, u + 1))
        e("s_and_b32 s%d, s%d, 3" % (s_t2, s_t2))
        e("s_lshl_b32 s%d, s%d, 14" % (s_pq[u], s_t2))
    e("s_lshl_b32 s%d, s%d, 16" % (s_t2, s_rb))
    e("s_lshl_b32 s36, s%d, 12" % s_w)
    e("s_add_u32 s%d, s%d, s36" % (s_t2, s_t2))
    if WS_PQ:
        e("s_add_u32 s%d, s%d, 0x%x" % (s_t2, s_t2, WS_PQ))
    for u in range(4):
        e("s_add_u32 s%d, s%d, s%d" % (s_pq[u], s_pq[u], s_t2))
    s_wo, s_lb = 37, 38
    e("s_lshl_b32 s%d, s%d, 17" % (s_wo, s_w))
    e("s_lshl_b32 s36, s%d, 7" % s_cb)
    e("s_add_u32 s%d, s%d, s36" % (s_wo, s_wo))
    e("s_lshl_b32 s%d, s%d, 14" % (s_lb, s_w))
    e("s_mov_b32 m0, s%d" % s_lb)
    s_xo = 39
    e("s_lshl_b32 s%d, s%d, 16" % (s_xo, s_rb))
    e("s_add_u32 s%d, s%d, s36" % (s_xo, s_xo))
    e("s_add_u32 s%d, s%d, s%d" % (s_xo, s_xo, s_lb))
    e("s_waitcnt lgkmcnt(0)")
    n = 0
    for q in range(2):
        e("buffer_load_dwordx4 %s, %s, %s, s%d offen offset:%d" % (vr(ZF + 4 * q, 4), vr(vz), sr(SWS, 4), s_t, q * 256))
    for hh in range(8):
        e("buffer_load_dwordx4 %s, %s, %s, s%d offen offset:%d" % (vr(KVF + 4 * hh, 4), vr(vkv), sr(SWS, 4), s_o if hh < 4 else s_o2, (hh & 3) * 1024))

    def ldpq(u):
        for hp in range(4):
            e("buffer_load_dwordx4 %s, %s, %s, s%d offen offset:%d" % (vr(PQ + 16 * u + 4 * hp, 4), vr(l16), sr(SWS, 4), s_pq[u], hp * 1024))
    ldpq(0)
    for i in range(16):
        e("buffer_load_dwordx4 %s, %s, s%d offen lds" % (vr(vd), sr(SW, 4), s_wo))
        if i < 15:
            e("s_add_u32 m0, m0, 1024")
            e("s_add_u32 s%d, s%d, 8192" % (s_wo, s_wo))
    ldpq(1)
    ldpq(2)
    ldpq(3)
    for P in range(2):
        e("buffer_load_dwordx4 %s, %s, %s, s%d offen offset:%d" % (vr(XR + 4 * P, 4), vr(vxo), sr(SX, 4), s_xo, P * 64))
    TA = k.alloc(4)
    tr_addr(k, TA, t0, t1, s_lb)
    RED = 65536
    vrw = k.alloc(3)
    vrr = k.alloc()
    for u in range(3):
        e("s_add_u32 s%d, s%d, %d" % (s_t2, s_w, u + 1))
        e("s_and_b32 s%d, s%d, 3" % (s_t2, s_t2))
        e("s_mul_i32 s%d, s%d, 12288" % (s_t2, s_t2))
        e("s_add_u32 s%d, s%d, %d" % (s_t2, s_t2, RED + u * 4096))
        e("v_add_u32 %s, s%d, %s" % (vr(vrw + u), s_t2, vr(l16)))
    e("s_mul_i32 s%d, s%d, 12288" % (s_t2, s_w))
    e("s_add_u32 s%d, s%d, %d" % (s_t2, s_t2, RED))
    e("v_add_u32 %s, s%d, %s" % (vr(vrr), s_t2, vr(l16)))
    EPS = k.alloc(4, 4)
    for r in range(4):
        e("v_mov_b32 %s, %s" % (vr(EPS + r), f32(1e-6)))
    ZA = k.alloc(16, 4)
    KVB = k.alloc(16, 2)
    e("s_waitcnt vmcnt(42)")
    for q in range(2):
        e("v_cvt_pk_bf16_f32 %s, %s, %s" % (vr(t0), vr(ZF + 4 * q), vr(ZF + 4 * q + 1)))
        e("v_cvt_pk_bf16_f32 %s, %s, %s" % (vr(t1), vr(ZF + 4 * q + 2), vr(ZF + 4 * q + 3)))
        for c in range(4):
            e("v_cndmask_b32 %s, 0, %s, s[%d:%d]" % (vr(ZA + 8 * q + 2 * c), vr(t0), 40 + 2 * c, 41 + 2 * c))
            e("v_cndmask_b32 %s, 0, %s, s[%d:%d]" % (vr(ZA + 8 * q + 2 * c + 1), vr(t1), 40 + 2 * c, 41 + 2 * c))
    for hh in range(8):
        e("s_waitcnt vmcnt(%d)" % (41 - hh))
        e("v_cvt_pk_bf16_f32 %s, %s, %s" % (vr(KVB + 2 * hh), vr(KVF + 4 * hh), vr(KVF + 4 * hh + 1)))
        e("v_cvt_pk_bf16_f32 %s, %s, %s" % (vr(KVB + 2 * hh + 1), vr(KVF + 4 * hh + 2), vr(KVF + 4 * hh + 3)))
    NUM = KVF
    DEN = ZF
    WF = 256
    ACC = k.alloc(64, 4)

    def attn_m(u):
        o = []
        for q in range(2):
            o.append(mfma32(DEN + 4 * q, ZA + 8 * q, PQ + 16 * u + 8 * q, EPS))
            o.append(mfma32(DEN + 4 * q, ZA + 8 * q + 4, PQ + 16 * u + 8 * q + 4))
        for hh in range(8):
            o.append(mfma16(NUM + 4 * hh, KVB + 2 * hh, PQ + 16 * u + 2 * hh, "0"))
        return o

    def attn_v(u):
        o = []
        for r in range(8):
            o.append("v_rcp_f32 %s, %s" % (vr(DEN + r), vr(DEN + r)))
        for hh in range(8):
            for r in range(4):
                o.append("v_mul_f32 %s, %s, %s" % (vr(NUM + 4 * hh + r), vr(NUM + 4 * hh + r), vr(DEN + hh)))
            o.append("v_cvt_pk_bf16_f32 %s, %s, %s" % (vr(PQ + 16 * u + 2 * hh), vr(NUM + 4 * hh), vr(NUM + 4 * hh + 1)))
            o.append("v_cvt_pk_bf16_f32 %s, %s, %s" % (vr(PQ + 16 * u + 2 * hh + 1), vr(NUM + 4 * hh + 2), vr(NUM + 4 * hh + 3)))
        return o

    def wo_m(u):
        o = []
        for ks in range(4):
            for nt in range(4):
                o.append(mfma32(ACC + 16 * u + 4 * nt, WF + 16 * ks + 4 * nt, PQ + 16 * u + 4 * ks, "0" if ks == 0 else None))
        return o

    def red_w(u):
        return ["ds_write_b128 %s, %s offset:%d" % (vr(vrw + u), vr(ACC + 16 * u + 4 * nt, 4), nt * 1024) for nt in range(4)]

    e("s_waitcnt vmcnt(30)")
    for x in attn_m(0):
        e(x)
    for x in attn_v(0):
        e(x)
    e("s_waitcnt vmcnt(10)")
    rd = []
    for ks in range(4):
        for nt in range(4):
            for hf in range(2):
                rd.append("ds_read_b64_tr_b16 %s, %s offset:%d" % (vr(WF + 16 * ks + 4 * nt + 2 * hf, 2), vr(TA + nt), ks * 4096 + hf * 2048))
    for x in interleave(attn_m(1), rd, per=3):
        e(x)
    e("s_waitcnt lgkmcnt(0)")
    for u in range(1, 4):
        for x in interleave(wo_m(u - 1), attn_v(u), per=4):
            e(x)
        if u < 3:
            e("s_waitcnt vmcnt(%d)" % (10 - 4 * u))
            for x in attn_m(u + 1):
                e(x)
        for x in red_w(u - 1):
            e(x)
    for x in wo_m(3):
        e(x)
    e("s_waitcnt vmcnt(0)")
    for P in range(2):
        e("v_permlane16_swap_b32 %s, %s" % (vr(XR + 4 * P), vr(XR + 4 * P + 2)))
        e("v_permlane16_swap_b32 %s, %s" % (vr(XR + 4 * P + 1), vr(XR + 4 * P + 3)))
    XF = NUM
    for j in range(8):
        e("v_lshlrev_b32 %s, 16, %s" % (vr(XF + 2 * j), vr(XR + j)))
        e("v_and_b32 %s, 0xffff0000, %s" % (vr(XF + 2 * j + 1), vr(XR + j)))
    e("s_waitcnt lgkmcnt(0)")
    e("s_barrier")
    RB = ACC
    for sl in range(3):
        for nt in range(4):
            e("ds_read_b128 %s, %s offset:%d" % (vr(RB + 16 * sl + 4 * nt, 4), vr(vrr), sl * 4096 + nt * 1024))
    for j in range(8):
        e("v_pk_add_f32 %s, %s, %s" % (vr(XF + 2 * j, 2), vr(XF + 2 * j, 2), vr(ACC + 48 + 2 * j, 2)))
    for sl in range(3):
        e("s_waitcnt lgkmcnt(%d)" % (8 - 4 * sl))
        for j in range(8):
            e("v_pk_add_f32 %s, %s, %s" % (vr(XF + 2 * j, 2), vr(XF + 2 * j, 2), vr(RB + 16 * sl + 2 * j, 2)))
    HB = XR
    for j in range(8):
        e("v_cvt_pk_bf16_f32 %s, %s, %s" % (vr(HB + j), vr(XF + 2 * j), vr(XF + 2 * j + 1)))
    e("s_lshl_b32 s%d, s%d, 16" % (s_o, s_rb))
    e("s_add_u32 s%d, s%d, s%d" % (s_o, s_o, s_lb))
    e("s_lshl_b32 s%d, s%d, 11" % (s_t, s_cb))
    e("s_add_u32 s%d, s%d, s%d" % (s_o, s_o, s_t))
    e("s_add_u32 s%d, s%d, 0x%x" % (s_o, s_o, WS_H))
    for P in range(2):
        e("buffer_store_dwordx4 %s, %s, %s, s%d offen offset:%d" % (vr(HB + 4 * P, 4), vr(l16), sr(SWS, 4), s_o, P * 1024))
    SS = k.alloc(2, 2)
    e("v_mov_b32 %s, 0x3f803f80" % vr(t2))
    e("v_dot2_f32_bf16 %s, %s, %s, 0" % (vr(SS), vr(HB), vr(t2)))
    e("v_dot2_f32_bf16 %s, %s, %s, 0" % (vr(SS + 1), vr(HB), vr(HB)))
    for j in range(1, 8):
        e("v_dot2_f32_bf16 %s, %s, %s, %s" % (vr(SS), vr(HB + j), vr(t2), vr(SS)))
        e("v_dot2_f32_bf16 %s, %s, %s, %s" % (vr(SS + 1), vr(HB + j), vr(HB + j), vr(SS + 1)))
    xg_reduce(k, [SS, SS + 1], t0)
    e("v_lshlrev_b32 %s, 2, %s" % (vr(t2), vr(l16)))
    e("s_lshl_b32 s%d, s%d, 12" % (s_o, s_rb))
    e("s_lshl_b32 s%d, s%d, 10" % (s_t, s_w))
    e("s_add_u32 s%d, s%d, s%d" % (s_o, s_o, s_t))
    e("s_lshl_b32 s%d, s%d, 3" % (s_t, s_cb))
    e("s_add_u32 s%d, s%d, s%d" % (s_o, s_o, s_t))
    e("s_add_u32 s%d, s%d, 0x%x" % (s_o, s_o, WS_ST))
    e("s_mov_b64 exec, 0xffff")
    e("buffer_store_dwordx2 %s, %s, %s, s%d offen" % (vr(SS, 2), vr(t2), sr(SWS, 4), s_o))
    e("s_mov_b64 exec, -1")
    tail(k, 1, SWS)
    k.lds = 65536 + 49152
    k.agpr = 64
    return k


def k3():
    k = K("k3_kernel")
    e = k.e
    SW, SB, SWS = 8, 12, 16
    s_w, s_rb, s_cb, s_t, s_t2, s_ph = 24, 25, 26, 27, 28, 29
    head(k, 256)
    srd(k, SWS, 72, 0x10000000)
    srd(k, SW, 32, 512 * 3584)
    srd(k, SB, 40, 3584)
    e("s_and_b32 s%d, s2, 7" % s_rb)
    e("s_lshl_b32 s%d, s%d, 1" % (s_rb, s_rb))
    e("s_bfe_u32 s%d, s2, 0x10003" % s_t)
    e("s_add_u32 s%d, s%d, s%d" % (s_rb, s_rb, s_t))
    e("s_lshr_b32 s%d, s2, 4" % s_cb)
    e("s_lshl_b32 s%d, s%d, 1" % (s_ph, s_t))
    e("s_add_u32 s%d, s%d, s%d" % (s_ph, s_ph, s_cb))
    t0, t1, t2, t3 = k.alloc(), k.alloc(), k.alloc(), k.alloc()
    l16 = k.alloc()
    VD = k.alloc(7)
    e("v_lshrrev_b32 %s, 6, v0" % vr(t0))
    e("v_and_b32 %s, 63, v0" % vr(l16))
    e("v_readfirstlane_b32 s%d, %s" % (s_w, vr(t0)))
    e("v_lshlrev_b32 %s, 4, %s" % (vr(l16), vr(l16)))
    e("s_movk_i32 s30, 3584 - 224")
    for m in range(7):
        e("v_add_u32 %s, %d, v0" % (vr(t0), 256 * m))
        e("v_mul_u32_u24 %s, 4682, %s" % (vr(t1), vr(t0)))
        e("v_lshrrev_b32 %s, 16, %s" % (vr(t1), vr(t1)))
        e("v_lshlrev_b32 %s, 4, %s" % (vr(t0), vr(t0)))
        e("v_mad_u32_u24 %s, %s, s30, %s" % (vr(VD + m), vr(t1), vr(t0)))
    s_wc, s_hb, s_m0 = 31, 32, 33
    e("s_mul_i32 s%d, s%d, 224" % (s_wc, s_cb))
    e("s_lshl_b32 s%d, s%d, 17" % (s_hb, s_rb))
    e("s_lshl_b32 s%d, s%d, 15" % (s_t, s_w))
    e("s_add_u32 s%d, s%d, s%d" % (s_hb, s_hb, s_t))
    e("s_add_u32 s%d, s%d, 0x%x" % (s_hb, s_hb, WS_H))
    e("s_lshl_b32 s%d, s%d, 10" % (s_m0, s_w))
    vst, vb0, vb1 = k.alloc(), k.alloc(), k.alloc()
    e("v_and_b32 %s, 15, v0" % vr(t0))
    e("v_bfe_u32 %s, v0, 4, 2" % vr(t1))
    e("v_lshlrev_b32 %s, 4, %s" % (vr(t2), vr(t1)))
    e("v_lshl_add_u32 %s, %s, 6, %s" % (vr(vst), vr(t0), vr(t2)))
    s_st = 34
    e("s_lshl_b32 s%d, s%d, 13" % (s_st, s_rb))
    e("s_lshl_b32 s%d, s%d, 11" % (s_t, s_w))
    e("s_add_u32 s%d, s%d, s%d" % (s_st, s_st, s_t))
    e("s_add_u32 s%d, s%d, 0x%x" % (s_st, s_st, WS_ST))
    s_d6, s_d7 = 35, 36
    e("s_and_b32 s%d, s%d, 1" % (s_t, s_cb))
    e("s_lshl_b32 s%d, s%d, 5" % (s_d6, s_t))
    e("s_cmp_eq_u32 s%d, 0" % s_t)
    e("s_cselect_b32 s%d, 192, 0" % s_d7)
    e("v_lshlrev_b32 %s, 3, %s" % (vr(t2), vr(t1)))
    e("v_add_u32 %s, s%d, %s" % (vr(vb0), s_d6, vr(t2)))
    e("v_add_u32 %s, s%d, %s" % (vr(vb1), s_d7, vr(t2)))
    STR = k.alloc(8, 4)
    BR = k.alloc(14, 2)
    HF = 256
    e("s_waitcnt lgkmcnt(0)")
    s_oh, s_ow = 37, 38
    nvm = 0
    need = {}
    for G in range(4):
        e("s_add_u32 s%d, s%d, %d" % (s_t, s_ph, G))
        e("s_and_b32 s%d, s%d, 3" % (s_t, s_t))
        e("s_lshl_b32 s%d, s%d, 12" % (s_oh, s_t))
        e("s_add_u32 s%d, s%d, s%d" % (s_oh, s_oh, s_hb))
        e("s_add_u32 s39, s%d, 16384" % s_oh)
        e("s_mul_i32 s%d, s%d, %d" % (s_ow, s_t, 128 * 3584))
        e("s_add_u32 s%d, s%d, s%d" % (s_ow, s_ow, s_wc))
        for q in range(4):
            t = 4 * G + q
            for m in (2 * q, 2 * q + 1):
                if m < 7:
                    e("s_add_u32 m0, s%d, %d" % (s_m0, G * 28672 + m * 4096))
                    e("buffer_load_dwordx4 %s, %s, s%d offen lds" % (vr(VD + m), sr(SW, 4), s_ow))
                    nvm += 1
            e("buffer_load_dwordx4 %s, %s, %s, s%d offen offset:%d" % (vr(HF + 8 * t, 4), vr(l16), sr(SWS, 4), s_oh, q * 1024))
            e("buffer_load_dwordx4 %s, %s, %s, s39 offen offset:%d" % (vr(HF + 8 * t + 4, 4), vr(l16), sr(SWS, 4), q * 1024))
            nvm += 2
            need[t] = nvm
        if G == 0:
            for rt in range(2):
                e("buffer_load_dwordx4 %s, %s, %s, s%d offen offset:%d" % (vr(STR + 4 * rt, 4), vr(vst), sr(SWS, 4), s_st, rt * 1024))
            nvm += 2
    total = nvm
    va6, va7, vac0, vac1 = k.alloc(), k.alloc(), k.alloc(), k.alloc()
    e("v_bfe_u32 %s, v0, 2, 4" % vr(t0))
    e("v_mul_u32_u24 %s, 224, %s" % (vr(t0), vr(t0)))
    e("v_and_b32 %s, 3, v0" % vr(t1))
    e("v_lshl_add_u32 %s, %s, 3, %s" % (vr(t0), vr(t1), vr(t0)))
    e("v_add_u32 %s, s%d, %s" % (vr(va6), s_d6, vr(t0)))
    e("v_add_u32 %s, s%d, %s" % (vr(va7), s_d7, vr(t0)))
    e("s_lshl_b32 s%d, s%d, 5" % (s_t, s_w))
    e("s_add_u32 s%d, s%d, s%d" % (s_t, s_t, s_d6))
    e("v_add_u32 %s, s%d, %s" % (vr(vac0), s_t, vr(t0)))
    e("s_add_u32 s%d, s%d, 128" % (s_t2, s_t))
    e("s_cmp_eq_u32 s%d, 2" % s_w)
    e("s_cselect_b32 s%d, s%d, s%d" % (s_t2, s_d7, s_t2))
    e("s_cmp_eq_u32 s%d, 3" % s_w)
    e("s_cselect_b32 s%d, s%d, s%d" % (s_t2, s_t, s_t2))
    e("v_add_u32 %s, s%d, %s" % (vr(vac1), s_t2, vr(t0)))
    hi = [k.alloc() for _ in range(4)]
    for a, b in zip(hi, (va6, va7, vac0, vac1)):
        e("v_add_u32 %s, %d, %s" % (vr(a), 57344, vr(b)))
    ACC = k.alloc(56, 4)
    CS = k.alloc(8, 4)
    ones = k.alloc(4, 4)
    WF = [k.alloc(36, 4) for _ in range(2)]
    for r in range(4):
        e("v_mov_b32 %s, 0x3f803f80" % vr(ones + r))

    def reads(t, F):
        A = (va6, va7, vac0, vac1) if t < 8 else hi
        base = (t % 8) * 7168
        o = []
        for u in range(9):
            a, off = (A[0], 32 * u) if u < 6 else (A[u - 5], 0)
            for hf in range(2):
                o.append("ds_read_b64_tr_b16 %s, %s offset:%d" % (vr(F + 4 * u + 2 * hf, 2), vr(a), base + off + hf * 3584))
        return o

    def mf(t, F):
        o = []
        z = "0" if t == 0 else None
        if t == 15:
            for c in range(2):
                o.append(mfma32(CS + 4 * c, F + 28 + 4 * c, ones, z))
        for u in range(7):
            for rt in range(2):
                o.append(mfma32(ACC + 8 * u + 4 * rt, F + 4 * u, HF + 8 * t + 4 * rt, z))
        if t != 15:
            for c in range(2):
                o.append(mfma32(CS + 4 * c, F + 28 + 4 * c, ones, z))
        return o

    for t in range(16):
        e("s_waitcnt vmcnt(%d)" % (total - need[t]))
        e("s_barrier")
        r = reads(t, WF[t & 1])
        if t == 0:
            for x in r:
                e(x)
        else:
            e("s_waitcnt lgkmcnt(0)")
            for x in interleave(mf(t - 1, WF[(t - 1) & 1]), r, per=2):
                e(x)
        if t == 2:
            for u in range(7):
                a, off = (vb0, 32 * u) if u < 6 else (vb1, 0)
                e("buffer_load_dwordx2 %s, %s, %s, s%d offen offset:%d" % (vr(BR + 2 * u, 2), vr(a), sr(SB, 4), s_wc, off))
            total += 7
    e("s_waitcnt lgkmcnt(0)")
    m = mf(15, WF[1])
    for x in m[:6]:
        e(x)
    for rt in range(2):
        e("v_add_f32 %s, %s, %s" % (vr(STR + 4 * rt), vr(STR + 4 * rt), vr(STR + 4 * rt + 2)))
        e("v_add_f32 %s, %s, %s" % (vr(STR + 4 * rt + 1), vr(STR + 4 * rt + 1), vr(STR + 4 * rt + 3)))
    CSB = 114688
    e("v_bfe_u32 %s, v0, 4, 2" % vr(t3))
    e("v_lshlrev_b32 %s, 4, %s" % (vr(t3), vr(t3)))
    e("v_add_u32 %s, %d, %s" % (vr(t3), CSB, vr(t3)))
    e("s_lshl_b32 s%d, s%d, 6" % (s_t, s_w))
    e("v_add_u32 %s, s%d, %s" % (vr(t2), s_t, vr(t3)))
    for x in m[6:10]:
        e(x)
    e("ds_write_b128 %s, %s" % (vr(t2), vr(CS, 4)))
    e("ds_write_b128 %s, %s offset:256" % (vr(t2), vr(CS + 4, 4)))
    for x in m[10:]:
        e(x)
    tmp4 = k.alloc(4)
    xg_reduce(k, [STR, STR + 1, STR + 4, STR + 5], tmp4)
    for rt in range(2):
        a, b = STR + 4 * rt, STR + 4 * rt + 1
        e("v_mul_f32 %s, %s, %s" % (vr(a), f32(-1.0 / 512), vr(a)))
        e("v_mul_f32 %s, %s, %s" % (vr(b), f32(1.0 / 512), vr(b)))
        e("v_fma_f32 %s, -%s, %s, %s" % (vr(b), vr(a), vr(a), vr(b)))
        e("v_max_f32 %s, 0, %s" % (vr(b), vr(b)))
        e("v_add_f32 %s, %s, %s" % (vr(b), f32(1e-5), vr(b)))
        e("v_rsq_f32 %s, %s" % (vr(b), vr(b)))
        e("v_mul_f32 %s, %s, %s" % (vr(b), f32(LOG2E), vr(b)))
        e("v_mul_f32 %s, %s, %s" % (vr(a), vr(a), vr(b)))
    e("s_waitcnt lgkmcnt(0)")
    e("s_barrier")
    CF = WF[0]
    BF = WF[1]
    for u in range(7):
        e("ds_read_b128 %s, %s offset:%d" % (vr(CF + 4 * u, 4), vr(t3), u * 64))
    e("s_waitcnt vmcnt(0)")
    cl = k.alloc(2, 2)
    e("v_mov_b32 %s, %s" % (vr(cl), f32(LOG2E)))
    for j in range(14):
        e("v_lshlrev_b32 %s, 16, %s" % (vr(BF + 2 * j), vr(BR + j)))
        e("v_and_b32 %s, 0xffff0000, %s" % (vr(BF + 2 * j + 1), vr(BR + j)))
        e("v_pk_mul_f32 %s, %s, %s op_sel_hi:[1,0]" % (vr(BF + 2 * j, 2), vr(BF + 2 * j, 2), vr(cl, 2)))
    s_a, s_a1 = 40, 41
    e("s_lshl_b32 s%d, s%d, 3" % (s_t, s_rb))
    e("s_lshl_b32 s%d, s%d, 1" % (s_t2, s_w))
    e("s_add_u32 s%d, s%d, s%d" % (s_t, s_t, s_t2))
    e("s_mul_i32 s%d, s%d, %d" % (s_t, s_t, 56 * 1024))
    e("s_add_u32 s%d, s%d, 0x%x" % (s_t, s_t, WS_ACT))
    e("s_add_u32 s%d, s%d, s%d" % (s_t2, s_wc, s_d6))
    e("s_lshl_b32 s%d, s%d, 4" % (s_t2, s_t2))
    e("s_add_u32 s%d, s%d, s%d" % (s_a, s_t, s_t2))
    e("s_add_u32 s%d, s%d, s%d" % (s_t2, s_wc, s_d7))
    e("s_and_b32 s42, s%d, 32" % s_t2)
    e("s_sub_u32 s%d, s%d, s42" % (s_t2, s_t2))
    e("s_lshl_b32 s%d, s%d, 4" % (s_t2, s_t2))
    e("s_lshr_b32 s42, s42, 2")
    e("s_add_u32 s%d, s%d, s42" % (s_t2, s_t2))
    e("s_add_u32 s%d, s%d, s%d" % (s_a1, s_t, s_t2))
    e("s_waitcnt lgkmcnt(0)")
    tm = k.alloc(8, 2)
    OB = k.alloc(8, 4)
    for rt in range(2):
        S2 = STR + 4 * rt
        for u in range(7):
            ob = OB + 4 * ((u >> 1) & 1) + 2 * (u & 1)
            for hp in range(2):
                a = ACC + 8 * u + 4 * rt + 2 * hp
                C, E = tm + 4 * hp, tm + 4 * hp + 2
                e("v_pk_fma_f32 %s, %s, %s, %s op_sel_hi:[1,0,1]" % (vr(C, 2), vr(CF + 4 * u + 2 * hp, 2), vr(S2, 2), vr(BF + 4 * u + 2 * hp, 2)))
                e("v_pk_fma_f32 %s, %s, %s, %s op_sel:[0,1,0] op_sel_hi:[1,1,1]" % (vr(a, 2), vr(a, 2), vr(S2, 2), vr(C, 2)))
                e("v_exp_f32 %s, %s" % (vr(E), vr(a)))
                e("v_exp_f32 %s, %s" % (vr(E + 1), vr(a + 1)))
            for hp in range(2):
                a = ACC + 8 * u + 4 * rt + 2 * hp
                C, E = tm + 4 * hp, tm + 4 * hp + 2
                e("v_pk_fma_f32 %s, %s, -0.5, -1.0 op_sel_hi:[1,0,0]" % (vr(C, 2), vr(E, 2)))
                e("v_pk_fma_f32 %s, %s, %s, -1.0 op_sel_hi:[1,1,0]" % (vr(C, 2), vr(E, 2), vr(C, 2)))
                e("v_rcp_f32 %s, %s" % (vr(C), vr(C)))
                e("v_rcp_f32 %s, %s" % (vr(C + 1), vr(C + 1)))
            for hp in range(2):
                a = ACC + 8 * u + 4 * rt + 2 * hp
                C, E = tm + 4 * hp, tm + 4 * hp + 2
                e("v_pk_fma_f32 %s, %s, %s, %s" % (vr(a, 2), vr(C, 2), vr(a, 2), vr(a, 2)))
                e("v_cvt_pk_bf16_f32 %s, %s, %s" % (vr(ob + hp), vr(a), vr(a + 1)))
            if u & 1:
                e("buffer_store_dwordx4 %s, %s, %s, s%d offen offset:%d" % (vr(ob - 2, 4), vr(l16), sr(SWS, 4), s_a, (u >> 1) * 1024))
            if u == 6:
                e("buffer_store_dwordx2 %s, %s, %s, s%d offen" % (vr(ob, 2), vr(l16), sr(SWS, 4), s_a1))
        if rt == 0:
            e("s_add_u32 s%d, s%d, %d" % (s_a, s_a, 56 * 1024))
            e("s_add_u32 s%d, s%d, %d" % (s_a1, s_a1, 56 * 1024))
    tail(k, 2, SWS)
    k.lds = 114688 + 512
    k.agpr = 128
    return k


def k4():
    k = K("k4_kernel")
    e = k.e
    SW, SO, SWS = 8, 12, 16
    s_w, s_rb, s_cb, s_t, s_t2, s_ks = 24, 25, 26, 27, 28, 29
    R = 7
    head(k, 256)
    srd(k, SWS, 72, 0x10000000)
    srd(k, SW, 48, 1792 * 1024)
    srd(k, SO, 56, 2048 * 1024)
    e("s_and_b32 s%d, s2, 7" % s_rb)
    e("s_lshl_b32 s%d, s%d, 2" % (s_rb, s_rb))
    e("s_bfe_u32 s%d, s2, 0x20003" % s_t)
    e("s_add_u32 s%d, s%d, s%d" % (s_rb, s_rb, s_t))
    e("s_lshr_b32 s%d, s2, 5" % s_cb)
    e("s_lshl_b32 s%d, s%d, 1" % (s_t, s_t))
    e("s_add_u32 s%d, s%d, s%d" % (s_t, s_t, s_cb))
    e("s_and_b32 s%d, s%d, 7" % (s_t, s_t))
    e("s_mul_i32 s%d, s%d, 7" % (s_t, s_t))
    e("s_lshr_b32 s%d, s%d, 2" % (s_ks, s_t))
    t0, t1, t2 = k.alloc(), k.alloc(), k.alloc()
    l16, vd, vxo = k.alloc(), k.alloc(), k.alloc()
    VA = k.alloc(4)
    VD = k.alloc(4)
    e("v_lshrrev_b32 %s, 6, v0" % vr(t0))
    e("v_and_b32 %s, 63, v0" % vr(l16))
    e("v_readfirstlane_b32 s%d, %s" % (s_w, vr(t0)))
    e("v_lshlrev_b32 %s, 4, %s" % (vr(l16), vr(l16)))
    dma_off(k, VD, t0, t1)
    for i in range(1, 4):
        e("v_add_u32 %s, %d, %s" % (vr(VD + i), i * (8192 - 1024), vr(VD)))
    for u in range(4):
        e("s_add_u32 s%d, s%d, %d" % (s_t2, s_w, u + 1))
        e("s_and_b32 s%d, s%d, 3" % (s_t2, s_t2))
        e("s_mul_i32 s%d, s%d, %d" % (s_t2, s_t2, 56 * 1024))
        e("v_add_u32 %s, s%d, %s" % (vr(VA + u), s_t2, vr(l16)))
    s_ab, s_wb, s_lb, s_oa, s_ow = 30, 31, 32, 33, 34
    e("s_mul_i32 s%d, s%d, %d" % (s_ab, s_rb, 4 * 56 * 1024))
    e("s_mul_i32 s%d, s%d, %d" % (s_t, s_w, 14 * 1024))
    e("s_add_u32 s%d, s%d, s%d" % (s_ab, s_ab, s_t))
    e("s_add_u32 s%d, s%d, 0x%x" % (s_ab, s_ab, WS_ACT))
    e("s_mul_i32 s%d, s%d, %d" % (s_wb, s_w, 14 * 32768))
    e("s_lshl_b32 s%d, s%d, 7" % (s_t, s_cb))
    e("s_add_u32 s%d, s%d, s%d" % (s_wb, s_wb, s_t))
    e("s_mul_i32 s%d, s%d, %d" % (s_lb, s_w, R * 4096))
    AF = 256
    HR = k.alloc(8, 4)
    e("s_waitcnt lgkmcnt(0)")

    def issue(t):
        sl = t % R
        o = []
        o.append("s_lshl_b32 s%d, s%d, 10" % (s_oa, s_ks))
        o.append("s_add_u32 s%d, s%d, s%d" % (s_oa, s_oa, s_ab))
        o.append("s_lshl_b32 s%d, s%d, 15" % (s_ow, s_ks))
        o.append("s_add_u32 s%d, s%d, s%d" % (s_ow, s_ow, s_wb))
        o.append("s_add_u32 m0, s%d, %d" % (s_lb, sl * 4096))
        o.append("s_add_u32 s%d, s%d, 1" % (s_ks, s_ks))
        o.append("s_cmp_eq_u32 s%d, 14" % s_ks)
        o.append("s_cselect_b32 s%d, 0, s%d" % (s_ks, s_ks))
        for i in range(4):
            o.append("buffer_load_dwordx4 %s, %s, s%d offen offset:%d lds" % (vr(VD + i), sr(SW, 4), s_ow, i * 1024))
            o.append("buffer_load_dwordx4 %s, %s, %s, s%d offen" % (vr(AF + 16 * sl + 4 * i, 4), vr(VA + i), sr(SWS, 4), s_oa))
        return o

    for t in range(R):
        for x in issue(t):
            e(x)
    s_o = 35
    e("s_lshl_b32 s%d, s%d, 16" % (s_o, s_rb))
    e("s_lshl_b32 s%d, s%d, 14" % (s_t, s_w))
    e("s_add_u32 s%d, s%d, s%d" % (s_o, s_o, s_t))
    e("s_lshl_b32 s%d, s%d, 7" % (s_t2, s_cb))
    e("s_add_u32 s36, s%d, s%d" % (s_o, s_t2))
    e("s_lshl_b32 s%d, s%d, 11" % (s_t, s_cb))
    e("s_add_u32 s%d, s%d, s%d" % (s_o, s_o, s_t))
    e("s_add_u32 s%d, s%d, 0x%x" % (s_o, s_o, WS_H))
    for P in range(2):
        e("buffer_load_dwordx4 %s, %s, %s, s%d offen offset:%d" % (vr(HR + 4 * P, 4), vr(l16), sr(SWS, 4), s_o, P * 1024))
    rowmajor_off(k, vxo, t0, t1)
    TA = k.alloc(4)
    tr_addr(k, TA, t0, t1, s_lb)
    RED = 4 * R * 4096
    vrw = k.alloc(3)
    vrr = k.alloc()
    for u in range(3):
        e("s_add_u32 s%d, s%d, %d" % (s_t2, s_w, u + 1))
        e("s_and_b32 s%d, s%d, 3" % (s_t2, s_t2))
        e("s_mul_i32 s%d, s%d, 12288" % (s_t2, s_t2))
        e("s_add_u32 s%d, s%d, %d" % (s_t2, s_t2, RED + u * 4096))
        e("v_add_u32 %s, s%d, %s" % (vr(vrw + u), s_t2, vr(l16)))
    e("s_mul_i32 s%d, s%d, 12288" % (s_t2, s_w))
    e("s_add_u32 s%d, s%d, %d" % (s_t2, s_t2, RED))
    e("v_add_u32 %s, s%d, %s" % (vr(vrr), s_t2, vr(l16)))
    ACC = k.alloc(64, 4)
    WF = [k.alloc(16, 4) for _ in range(2)]

    def reads(t):
        sl = t % R
        F = WF[t & 1]
        return ["ds_read_b64_tr_b16 %s, %s offset:%d" % (vr(F + 4 * nt + 2 * hf, 2), vr(TA + nt), sl * 4096 + hf * 2048)
                for nt in range(4) for hf in range(2)]

    def mf(t):
        sl = t % R
        F = WF[t & 1]
        z = "0" if t == 0 else None
        return [mfma32(ACC + 16 * u + 4 * nt, F + 4 * nt, AF + 16 * sl + 4 * u, z) for u in range(4) for nt in range(4)]

    order = [("k", t) for t in range(R)] + [("h", 0)]

    def outstanding_after(t):
        i = order.index(("k", t))
        return sum(8 if o[0] == "k" else 2 for o in order[i + 1:])

    for t in range(14):
        e("s_waitcnt vmcnt(%d)" % outstanding_after(t))
        r = reads(t)
        if t == 0:
            for x in r:
                e(x)
        else:
            e("s_waitcnt lgkmcnt(0)")
            for x in interleave(mf(t - 1), r, per=1):
                e(x)
            if t - 1 + R < 14:
                for x in issue(t - 1 + R):
                    e(x)
                order.append(("k", t - 1 + R))
    e("s_waitcnt lgkmcnt(0)")
    m = mf(13)
    for u in range(4):
        for x in m[4 * u:4 * u + 4]:
            e(x)
        if u >= 2:
            for nt in range(4):
                e("ds_write_b128 %s, %s offset:%d" % (vr(vrw + u - 2), vr(ACC + 16 * (u - 2) + 4 * nt, 4), nt * 1024))
    XF = k.alloc(16, 2)
    for j in range(8):
        e("v_lshlrev_b32 %s, 16, %s" % (vr(XF + 2 * j), vr(HR + j)))
        e("v_and_b32 %s, 0xffff0000, %s" % (vr(XF + 2 * j + 1), vr(HR + j)))
    for nt in range(4):
        e("ds_write_b128 %s, %s offset:%d" % (vr(vrw + 2), vr(ACC + 32 + 4 * nt, 4), nt * 1024))
    cl = k.alloc(2, 2)
    e("v_mov_b32 %s, %s" % (vr(cl), f32(LN2)))
    e("s_waitcnt lgkmcnt(0)")
    e("s_barrier")
    for sl in range(3):
        for nt in range(4):
            e("ds_read_b128 %s, %s offset:%d" % (vr(ACC + 16 * sl + 4 * nt, 4), vr(vrr), sl * 4096 + nt * 1024))
    for sl in range(3):
        e("s_waitcnt lgkmcnt(%d)" % (8 - 4 * sl))
        for j in range(8):
            e("v_pk_add_f32 %s, %s, %s" % (vr(ACC + 48 + 2 * j, 2), vr(ACC + 48 + 2 * j, 2), vr(ACC + 16 * sl + 2 * j, 2)))
    for j in range(8):
        e("v_pk_fma_f32 %s, %s, %s, %s op_sel_hi:[1,0,1]" % (vr(XF + 2 * j, 2), vr(ACC + 48 + 2 * j, 2), vr(cl, 2), vr(XF + 2 * j, 2)))
        e("v_cvt_pk_bf16_f32 %s, %s, %s" % (vr(HR + j), vr(XF + 2 * j), vr(XF + 2 * j + 1)))
    for P in range(2):
        e("v_permlane16_swap_b32 %s, %s" % (vr(HR + 4 * P), vr(HR + 4 * P + 2)))
        e("v_permlane16_swap_b32 %s, %s" % (vr(HR + 4 * P + 1), vr(HR + 4 * P + 3)))
        e("buffer_store_dwordx4 %s, %s, %s, s36 offen offset:%d" % (vr(HR + 4 * P, 4), vr(vxo), sr(SO, 4), P * 64))
    tail(k, 3, SWS)
    k.lds = RED + 49152
    k.agpr = 16 * R
    return k


def main():
    ks = [k1(), k2(), k3(), k4()]
    L = []
    for k in ks:
        L.append("; @launch kernel=%s grid=(256,1,1) block=(256,1,1) lds=%d" % (k.name, k.lds))
    L.append('.amdgcn_target "amdgcn-amd-amdhsa--gfx950"')
    L.append(".text")
    for k in ks:
        assert k.nv <= 256, (k.name, k.nv)
        L += hz.fix(k.L)
    L.append('.section .rodata,"a"')
    for k in ks:
        ag = getattr(k, "agpr", 0)
        acc = (k.nv + 3) // 4 * 4
        if ag:
            acc = 256
        L.append(".p2align 6\n.amdhsa_kernel %s" % k.name)
        L.append("  .amdhsa_next_free_vgpr %d\n  .amdhsa_next_free_sgpr 102\n  .amdhsa_accum_offset %d" % (acc + ag, acc))
        L.append("  .amdhsa_group_segment_fixed_size 0\n  .amdhsa_kernarg_size 80\n  .amdhsa_user_sgpr_count 2\n"
                 "  .amdhsa_user_sgpr_kernarg_segment_ptr 1\n  .amdhsa_system_sgpr_workgroup_id_x 1\n.end_amdhsa_kernel")
        print(k.name, "vgpr", k.nv, "agpr", ag, "lds", k.lds, "lines", len(k.L))
    open(OUT, "w").write("\n".join(L) + "\n")


main()
```

```python
import sys, struct
sys.path.insert(0, "tools")
import hz

OUT = sys.argv[1]
OPTS = set(sys.argv[2:])
STAMP = "stamp" in OPTS
FINE = "fine" in OPTS

WS_PQ = 0x000000
WS_KV = 0x200000
WS_Z = 0x208000
WS_H = 0x400000
WS_ST = 0x600000
WS_ACT = 0x800000
WS_STAMP = 0x8000000


def f32(x):
    return "0x%08x" % struct.unpack("<I", struct.pack("<f", x))[0]


LOG2E = 1.4426950408889634
LN2 = 0.6931471805599453


class K:
    def __init__(self, name):
        self.name = name
        self.L = []
        self.nv = 1
        self.maxv = 0
        self.stamps = []

    def e(self, s):
        self.L.append(s)

    def stamp(self, name=""):
        if not FINE:
            return
        n = len(self.stamps)
        assert n < 14
        self.stamps.append(name)
        self.e("s_memtime s[%d:%d]" % (64 + 2 * n, 65 + 2 * n))

    def alloc(self, n=1, align=1):
        if n >= 2 and align < 2:
            align = 2
        self.nv = (self.nv + align - 1) // align * align
        r = self.nv
        self.nv += n
        return r


def vr(n, c=1):
    p = "v"
    if n >= 256:
        p = "a"
        n -= 256
    if c == 1:
        return "%s%d" % (p, n)
    return "%s[%d:%d]" % (p, n, n + c - 1)


def sr(n, c=1):
    return "s%d" % n if c == 1 else "s[%d:%d]" % (n, n + c - 1)


def head(k, nwg):
    e = k.e
    e(".globl %s\n.p2align 8\n.type %s,@function\n%s:" % (k.name, k.name, k.name))
    e("s_cmp_ge_u32 s2, %d" % nwg)
    e("s_cbranch_scc1 L_done_%s" % k.name)
    if STAMP:
        e("s_memrealtime s[96:97]")
    k.stamp("start")


def tail(k, slot, srd_ws):
    e = k.e
    if FINE:
        k.stamp("issued")
        e("s_waitcnt vmcnt(0)")
        k.stamp("drained")
        e("s_waitcnt lgkmcnt(0)")
        e("v_mov_b32 v4, 0")
        for n in range(len(k.stamps)):
            e("v_writelane_b32 v4, s%d, %d" % (64 + 2 * n, n))
        e("v_and_b32 v5, 63, v0\nv_lshrrev_b32 v6, 6, v0\nv_lshlrev_b32 v5, 2, v5\nv_lshl_add_u32 v5, v6, 6, v5")
        e("s_lshl_b32 s95, s2, 8\ns_add_u32 s95, s95, %d" % (WS_STAMP + 0x100000 + slot * 65536))
        e("s_mov_b64 exec, 0xffff")
        e("buffer_store_dword v4, v5, %s, s95 offen" % sr(srd_ws, 4))
        e("s_mov_b64 exec, -1")
        print(k.name, "stamps:", k.stamps)
    if STAMP:
        e("s_waitcnt vmcnt(0)")
        e("s_barrier")
        e("s_memrealtime s[98:99]")
        e("s_waitcnt lgkmcnt(0)")
        e("v_mov_b32 v4, s96\nv_mov_b32 v5, s97\nv_mov_b32 v6, s98\nv_mov_b32 v7, s99")
        e("s_lshl_b32 s95, s2, 4\ns_add_u32 s95, s95, %d" % (WS_STAMP + slot * 4096))
        e("v_mov_b32 v8, 0")
        e("v_cmp_eq_u32 vcc, 0, v0\ns_and_saveexec_b64 s[92:93], vcc\ns_cbranch_execz L_done_%s" % k.name)
        e("buffer_store_dwordx4 v[4:7], v8, %s, s95 offen" % sr(srd_ws, 4))
    e("L_done_%s:\ns_endpgm" % k.name)


def srd(k, base, karg_off, size):
    k.e("s_load_dwordx2 %s, s[0:1], %d" % (sr(base, 2), karg_off))
    k.e("s_mov_b32 s%d, 0x%x" % (base + 2, size))
    k.e("s_mov_b32 s%d, 0x20000" % (base + 3))


def interleave(main, fill, per=1, start=0):
    out = []
    fi = 0
    for i, m in enumerate(main):
        out.append(m)
        if i >= start:
            for _ in range(per):
                if fi < len(fill):
                    out.append(fill[fi])
                    fi += 1
    out += fill[fi:]
    return out


def mfma32(d, a, b, c=None):
    cs = vr(d, 4) if c is None else (c if isinstance(c, str) else vr(c, 4))
    return "v_mfma_f32_16x16x32_bf16 %s, %s, %s, %s" % (vr(d, 4), vr(a, 4), vr(b, 4), cs)


def mfma16(d, a, b, c):
    cs = c if isinstance(c, str) else vr(c, 4)
    return "v_mfma_f32_16x16x16_bf16 %s, %s, %s, %s" % (vr(d, 4), vr(a, 2), vr(b, 2), cs)


def k1():
    k = K("k1_kernel")
    e = k.e
    S = 5
    SX, SW, SWS, SDB = 8, 12, 16, 20
    s_w, s_rb, s_cg, s_ph, s_t, s_zf = 24, 25, 26, 27, 28, 29
    s_ox, s_ow, s_m0x, s_m0w = 30, 31, 32, 33
    s_t2 = 34
    head(k, 256)
    srd(k, SX, 0, 2048 * 1024)
    srd(k, SW, 8, 512 * 3072)
    srd(k, SDB, 64, 256)
    srd(k, SWS, 72, 0x10000000)
    e("s_and_b32 s%d, s2, 7" % s_t)
    e("s_lshr_b32 s%d, s2, 3" % s_t2)
    e("s_lshr_b32 s%d, s%d, 1" % (s_rb, s_t))
    e("s_lshl_b32 s%d, s%d, 3" % (s_rb, s_rb))
    e("s_and_b32 s%d, s%d, 7" % (s_ph, s_t2))
    e("s_add_u32 s%d, s%d, s%d" % (s_rb, s_rb, s_ph))
    e("s_and_b32 s%d, s%d, 1" % (s_cg, s_t))
    e("s_lshl_b32 s%d, s%d, 2" % (s_cg, s_cg))
    e("s_lshr_b32 s%d, s%d, 3" % (s_t2, s_t2))
    e("s_add_u32 s%d, s%d, s%d" % (s_cg, s_cg, s_t2))
    e("s_lshl_b32 s%d, s%d, 1" % (s_t2, s_t2))
    e("s_add_u32 s%d, s%d, s%d" % (s_ph, s_ph, s_t2))
    e("s_mov_b32 s%d, 0" % s_zf)
    lane, t0, t1, t2 = k.alloc(), k.alloc(), k.alloc(), k.alloc()
    vx0, vx1, vw0, vw1 = k.alloc(), k.alloc(), k.alloc(), k.alloc()
    e("v_lshrrev_b32 %s, 6, v0" % vr(t0))
    e("v_and_b32 %s, 63, v0" % vr(lane))
    e("v_readfirstlane_b32 s%d, %s" % (s_w, vr(t0)))
    e("v_lshrrev_b32 %s, 3, v0" % vr(t0))
    e("v_lshrrev_b32 %s, 6, v0" % vr(t1))
    e("v_lshl_add_u32 %s, %s, 3, %s" % (vr(t0), vr(t1), vr(t0)))
    e("v_lshrrev_b32 %s, 4, %s" % (vr(t1), vr(lane)))
    e("v_and_b32 %s, 7, v0" % vr(t2))
    e("v_xor_b32 %s, %s, %s" % (vr(t1), vr(t1), vr(t2)))
    e("v_lshlrev_b32 %s, 4, %s" % (vr(t1), vr(t1)))
    e("v_lshl_add_u32 %s, %s, 10, %s" % (vr(vx0), vr(t0), vr(t1)))
    e("v_xor_b32 %s, 64, %s" % (vr(vx1), vr(vx0)))
    e("v_add_u32 %s, %d, %s" % (vr(vx1), 8192 - 1024, vr(vx1)))
    e("v_bfe_u32 %s, v0, 4, 1" % vr(t1))
    e("v_lshlrev_b32 %s, 1, %s" % (vr(t1), vr(t1)))
    e("v_xor_b32 %s, %s, %s" % (vr(t1), vr(t1), vr(t2)))
    e("v_lshlrev_b32 %s, 4, %s" % (vr(t1), vr(t1)))
    e("v_mul_u32_u24 %s, 3072, %s" % (vr(vw0), vr(t0)))
    e("v_add_u32 %s, %s, %s" % (vr(vw0), vr(vw0), vr(t1)))
    e("v_xor_b32 %s, 64, %s" % (vr(vw1), vr(vw0)))
    e("v_add_u32 %s, %d, %s" % (vr(vw1), 8 * 3072, vr(vw1)))
    s_xb, s_wb = 35, 36
    e("s_lshl_b32 s%d, s%d, 16" % (s_xb, s_rb))
    e("s_lshl_b32 s%d, s%d, 7" % (s_wb, s_cg))
    e("s_lshl_b32 s%d, s%d, 11" % (s_m0x, s_w))
    e("s_mul_i32 s%d, s%d, 6144" % (s_m0w, s_w))
    e("s_add_u32 s%d, s%d, 8192" % (s_m0w, s_m0w))
    vT, vdo = k.alloc(), k.alloc()
    e("v_mov_b32 %s, 1" % vr(vT))
    e("s_lshl_b32 s%d, s%d, 2" % (s_t, s_cg))
    e("v_mov_b32 %s, s%d" % (vr(vdo), s_t))
    e("s_waitcnt lgkmcnt(0)")
    e("s_cmp_lg_u32 s%d, 0" % s_w)
    e("s_cbranch_scc1 L_k1_a")
    e("s_mov_b64 exec, 1")
    e("buffer_atomic_add %s, %s, %s, 0 offen sc0" % (vr(vT), vr(vdo), sr(SDB, 4)))
    e("s_mov_b64 exec, -1")
    e("L_k1_a:")

    def dma(c):
        o = []
        slot = (c % S) * 32768
        o.append("s_add_u32 s%d, s%d, %d" % (s_t, s_ph, c))
        o.append("s_and_b32 s%d, s%d, 7" % (s_t, s_t))
        o.append("s_lshl_b32 s%d, s%d, 7" % (s_ox, s_t))
        o.append("s_add_u32 s%d, s%d, s%d" % (s_ox, s_ox, s_xb))
        o.append("s_mul_i32 s%d, s%d, %d" % (s_ow, s_t, 64 * 3072))
        o.append("s_add_u32 s%d, s%d, s%d" % (s_ow, s_ow, s_wb))
        o.append("s_add_u32 m0, s%d, %d" % (s_m0x, slot))
        o.append("buffer_load_dwordx4 %s, %s, s%d offen lds" % (vr(vx0), sr(SX, 4), s_ox))
        o.append("buffer_load_dwordx4 %s, %s, s%d offen offset:1024 lds" % (vr(vx1), sr(SX, 4), s_ox))
        o.append("s_add_u32 m0, s%d, %d" % (s_m0w, slot))
        for sg in range(3):
            o.append("buffer_load_dwordx4 %s, %s, s%d offen offset:%d lds" % (vr(vw0), sr(SW, 4), s_ow, sg * 1024))
        o.append("s_add_u32 m0, s%d, %d" % (s_m0w, slot + 3072))
        for sg in range(3):
            o.append("buffer_load_dwordx4 %s, %s, s%d offen offset:%d lds" % (vr(vw1), sr(SW, 4), s_ow, sg * 1024))
        return o

    for c in range(S):
        for x in dma(c):
            e(x)
    k.stamp("dma_issued")
    vA = [[k.alloc() for _ in range(5)] for _ in range(3)]
    g, i15 = k.alloc(), k.alloc()
    e("v_lshrrev_b32 %s, 4, %s" % (vr(g), vr(lane)))
    e("v_and_b32 %s, 15, v0" % vr(i15))
    e("v_lshrrev_b32 %s, 1, %s" % (vr(t0), vr(i15)))
    e("v_xor_b32 %s, %s, %s" % (vr(t0), vr(t0), vr(g)))
    e("v_lshlrev_b32 %s, 4, %s" % (vr(t0), vr(t0)))
    e("v_lshl_add_u32 %s, %s, 7, %s" % (vr(vA[0][0]), vr(i15), vr(t0)))
    e("v_xor_b32 %s, 64, %s" % (vr(vA[0][1]), vr(vA[0][0])))
    e("v_add_u32 %s, s%d, %s" % (vr(vA[0][2]), s_m0x, vr(vA[0][0])))
    e("v_add_u32 %s, s%d, %s" % (vr(vA[0][3]), s_m0x, vr(vA[0][1])))
    e("v_bfe_u32 %s, v0, 3, 2" % vr(t0))
    e("v_xor_b32 %s, s%d, %s" % (vr(t0), s_w, vr(t0)))
    e("v_lshlrev_b32 %s, 5, %s" % (vr(t0), vr(t0)))
    e("v_and_b32 %s, 3, v0" % vr(t1))
    e("v_lshl_add_u32 %s, %s, 3, %s" % (vr(t0), vr(t1), vr(t0)))
    e("v_bfe_u32 %s, v0, 2, 2" % vr(t1))
    e("v_lshl_add_u32 %s, %s, 7, %s" % (vr(t0), vr(t1), vr(t0)))
    e("v_mul_u32_u24 %s, 3072, %s" % (vr(t1), vr(g)))
    e("v_add3_u32 %s, %s, %s, %s" % (vr(vA[0][4]), vr(t0), vr(t1), "s%d" % 37))
    idx = len(k.L) - 1
    k.L.insert(idx, "s_movk_i32 s37, 8192")
    for st in (1, 2):
        for q in range(5):
            e("v_add_u32 %s, 0x%x, %s" % (vr(vA[st][q]), 65536 * st, vr(vA[0][q])))
    aq = k.alloc(16, 4)
    ak = k.alloc(16, 4)
    av = k.alloc(16, 4)
    cs = k.alloc(12, 4)
    stq, sts = k.alloc(4, 4), k.alloc(4, 4)
    ones = k.alloc(4, 4)
    FR = [dict(x=k.alloc(16, 4), xs=k.alloc(4, 4), w=k.alloc(12, 4)) for _ in range(2)]
    for r in range(aq, sts + 4):
        e("v_mov_b32 %s, 0" % vr(r))
    for r in range(4):
        e("v_mov_b32 %s, 0x3f803f80" % vr(ones + r))
    e("s_cmp_lg_u32 s%d, 0" % s_w)
    e("s_cbranch_scc1 L_k1_b")
    e("s_waitcnt vmcnt(%d)" % (8 * S))
    e("v_readfirstlane_b32 s%d, %s" % (s_t, vr(vT)))
    e("s_cmp_lg_u32 s%d, 0" % s_t)
    e("s_cbranch_scc1 L_k1_b")
    e("s_mov_b32 s%d, 1" % s_zf)
    e("v_lshlrev_b32 %s, 4, %s" % (vr(t0), vr(lane)))
    e("s_lshl_b32 s%d, s%d, 12" % (s_t, s_cg))
    e("s_add_u32 s%d, s%d, 0x%x" % (s_t, s_t, WS_KV))
    for q in range(4):
        e("buffer_store_dwordx4 %s, %s, %s, s%d offen offset:%d sc1" % (vr(aq, 4), vr(t0), sr(SWS, 4), s_t, q * 1024))
    e("v_lshlrev_b32 %s, 2, %s" % (vr(t1), vr(lane)))
    e("s_lshl_b32 s%d, s%d, 8" % (s_t, s_cg))
    e("s_add_u32 s%d, s%d, 0x%x" % (s_t, s_t, WS_Z))
    e("buffer_store_dword %s, %s, %s, s%d offen sc1" % (vr(aq), vr(t1), sr(SWS, 4), s_t))
    e("s_nop 1")
    e("L_k1_b:")

    def reads(it, ks, F):
        slot = it % S
        A = vA[slot // 2]
        so = (slot % 2) * 32768
        o = []
        for sg in range(3):
            for hf in range(2):
                o.append("ds_read_b64_tr_b16 %s, %s offset:%d" % (vr(F["w"] + sg * 4 + hf * 2, 2), vr(A[4]), so + ks * 12288 + sg * 1024 + hf * 512))
            if sg == 0:
                o.append("ds_read_b128 %s, %s offset:%d" % (vr(F["x"], 4), vr(A[ks]), so))
        for rt in range(1, 4):
            o.append("ds_read_b128 %s, %s offset:%d" % (vr(F["x"] + 4 * rt, 4), vr(A[ks]), so + rt * 2048))
        o.append("ds_read_b128 %s, %s offset:%d" % (vr(F["xs"], 4), vr(A[2 + ks]), so))
        return o

    def mf(F, last=False):
        o = []
        st = [mfma32(stq, F["xs"], F["xs"]), mfma32(sts, ones, F["xs"])]
        if last:
            o += st
        o.append(mfma32(cs + 0, F["w"] + 0, ones))
        o.append(mfma32(cs + 4, ones, F["w"] + 4))
        o.append(mfma32(cs + 8, ones, F["w"] + 8))
        for rt in range(4):
            if not last:
                o.append(mfma32(aq + 4 * rt, F["w"] + 0, F["x"] + 4 * rt))
            o.append(mfma32(ak + 4 * rt, F["x"] + 4 * rt, F["w"] + 4))
            o.append(mfma32(av + 4 * rt, F["x"] + 4 * rt, F["w"] + 8))
        if last:
            for rt in range(4):
                o.append(mfma32(aq + 4 * rt, F["w"] + 0, F["x"] + 4 * rt))
        else:
            o += st
        return o

    vF = k.alloc()
    issued = S
    for it in range(8):
        outstanding = issued - (it + 1)
        e("s_waitcnt vmcnt(%d)" % (8 * outstanding))
        e("s_barrier")
        if it in (0, 1, 2, 4, 5, 7):
            k.stamp("it%d" % it)
        r0 = reads(it, 0, FR[0])
        extra = []
        if it >= 1 and issued < 8:
            extra = dma(issued)
            issued += 1
        if it == 4:
            e("s_cmp_lg_u32 s%d, 1" % s_zf)
            e("s_cbranch_scc1 L_k1_c")
            e("s_mov_b64 exec, 1")
            e("v_mov_b32 %s, 1" % vr(vT))
            e("buffer_store_dword %s, %s, %s, 0 offen offset:128 sc1" % (vr(vT), vr(vdo), sr(SDB, 4)))
            e("s_mov_b64 exec, -1")
            e("L_k1_c:")
        if it == 7:
            extra = ["buffer_load_dword %s, %s, %s, 0 offen offset:128 sc1" % (vr(vF), vr(vdo), sr(SDB, 4))]
        if it == 0:
            for x in r0:
                e(x)
        else:
            for x in r0[:3]:
                e(x)
            for x in interleave(mf(FR[1]), r0[3:] + extra, per=2):
                e(x)
        r1 = reads(it, 1, FR[1])
        for x in r1[:2]:
            e(x)
        e("s_waitcnt lgkmcnt(2)")
        for x in interleave(mf(FR[0]), r1[2:], per=1):
            e(x)
        e("s_waitcnt lgkmcnt(0)")
    k.stamp("loop_end")
    m = mf(FR[1], last=True)
    ST = 3 * 32768
    for x in m[:6]:
        e(x)
    e("v_and_b32 %s, 3, v0" % vr(t0))
    e("v_cmp_eq_u32 s[40:41], 1, %s" % vr(t0))
    e("v_cmp_eq_u32 s[42:43], 2, %s" % vr(t0))
    e("v_cmp_eq_u32 s[44:45], 3, %s" % vr(t0))
    for x in m[6:10]:
        e(x)
    e("v_cndmask_b32 %s, %s, %s, s[40:41]" % (vr(t0), vr(stq), vr(stq + 1)))
    e("v_cndmask_b32 %s, %s, %s, s[42:43]" % (vr(t0), vr(t0), vr(stq + 2)))
    e("v_cndmask_b32 %s, %s, %s, s[44:45]" % (vr(t0), vr(t0), vr(stq + 3)))
    e(m[10])
    e("v_mul_f32 %s, %s, %s" % (vr(t1), f32(-1.0 / 512), vr(sts)))
    e("v_mul_f32 %s, %s, %s" % (vr(t0), f32(1.0 / 512), vr(t0)))
    e(m[11])
    e("v_fma_f32 %s, -%s, %s, %s" % (vr(t0), vr(t1), vr(t1), vr(t0)))
    e("v_max_f32 %s, 0, %s" % (vr(t0), vr(t0)))
    e(m[12])
    e("v_add_f32 %s, %s, %s" % (vr(t0), f32(1e-5), vr(t0)))
    e("v_rsq_f32 %s, %s" % (vr(t0), vr(t0)))
    e(m[13])
    e("v_lshlrev_b32 %s, 2, %s" % (vr(t2), vr(i15)))
    e("v_mul_f32 %s, %s, %s" % (vr(t0), f32(LOG2E), vr(t0)))
    e("s_lshl_b32 s%d, s%d, 6" % (s_t, s_w))
    e("s_add_u32 s%d, s%d, %d" % (s_t, s_t, ST))
    e("v_add_u32 %s, s%d, %s" % (vr(t2), s_t, vr(t2)))
    e("s_mov_b32 exec_lo, 0x00f0000f")
    e("s_mov_b32 exec_hi, 0xf0000f00")
    e("ds_write_b32 %s, %s" % (vr(t2), vr(t1)))
    e("ds_write_b32 %s, %s offset:256" % (vr(t2), vr(t0)))
    e("s_mov_b64 exec, -1")
    for x in m[14:]:
        e(x)
    va, vb = vA[0][0], vA[0][1]
    e("v_lshlrev_b32 %s, 4, %s" % (vr(va), vr(g)))
    e("v_add_u32 %s, %d, %s" % (vr(va), ST, vr(va)))
    e("v_lshlrev_b32 %s, 2, %s" % (vr(vb), vr(i15)))
    e("v_add_u32 %s, %d, %s" % (vr(vb), ST, vr(vb)))
    e("s_waitcnt lgkmcnt(0)")
    e("s_barrier")
    k.stamp("stat_bar")
    NM = FR[0]["x"]
    RL = FR[0]["xs"]
    assert FR[0]["w"] == FR[0]["xs"] + 4
    QN = k.alloc(8, 2)
    for rt in range(4):
        e("ds_read_b128 %s, %s offset:%d" % (vr(NM + 4 * rt, 4), vr(va), rt * 64))
        e("ds_read_b128 %s, %s offset:%d" % (vr(RL + 4 * rt, 4), vr(va), 256 + rt * 64))
    for rt in range(4):
        e("ds_read2_b32 %s, %s offset0:%d offset1:%d" % (vr(QN + 2 * rt, 2), vr(vb), rt * 16, 64 + rt * 16))
    cst = k.alloc(2, 2)
    ceps = k.alloc(2, 2)
    e("v_mov_b32 %s, %s" % (vr(cst), f32(LN2)))
    e("v_mov_b32 %s, %s" % (vr(cst + 1), f32(1.000001)))
    e("v_mov_b32 %s, %s" % (vr(ceps), f32(1e-6)))
    e("v_mov_b32 %s, %s" % (vr(ceps + 1), f32(1e-6)))
    PK = FR[1]["x"]
    PV = PK + 8
    tm = k.alloc(8, 2)

    def phi(a, dst):
        E, U = tm, tm + 2
        e("v_exp_f32_e64 %s, %s clamp" % (vr(E), vr(a)))
        e("v_exp_f32_e64 %s, %s clamp" % (vr(E + 1), vr(a + 1)))
        e("v_pk_fma_f32 %s, %s, %s, %s op_sel:[0,0,1] op_sel_hi:[1,0,1]" % (vr(U, 2), vr(a, 2), vr(cst, 2), vr(cst, 2)))
        e("v_pk_add_f32 %s, %s, %s" % (vr(E, 2), vr(E, 2), vr(ceps, 2)))
        e("v_max_f32 %s, %s, %s" % (vr(U), vr(U), vr(E)))
        e("v_max_f32 %s, %s, %s" % (vr(U + 1), vr(U + 1), vr(E + 1)))
        e("v_cvt_pk_bf16_f32 %s, %s, %s" % (vr(dst), vr(U), vr(U + 1)))

    for rt in range(4):
        e("s_waitcnt lgkmcnt(%d)" % (4 + 2 * (3 - rt)))
        for hp in range(2):
            o = 4 * rt + 2 * hp
            e("v_pk_fma_f32 %s, %s, %s, %s" % (vr(ak + o, 2), vr(NM + o, 2), vr(cs + 4, 2), vr(ak + o, 2)))
            e("v_pk_fma_f32 %s, %s, %s, %s" % (vr(av + o, 2), vr(NM + o, 2), vr(cs + 8, 2), vr(av + o, 2)))
            e("v_pk_mul_f32 %s, %s, %s" % (vr(ak + o, 2), vr(ak + o, 2), vr(RL + o, 2)))
            e("v_pk_mul_f32 %s, %s, %s" % (vr(av + o, 2), vr(av + o, 2), vr(RL + o, 2)))
            phi(ak + o, PK + 2 * rt + hp)
            e("v_cvt_pk_bf16_f32 %s, %s, %s" % (vr(PV + 2 * rt + hp), vr(av + o), vr(av + o + 1)))
    kv, zz = stq, sts
    e(mfma32(kv, PV, PK, "0"))
    e(mfma32(zz, ones, PK, "0"))
    e(mfma32(kv, PV + 4, PK + 4))
    e(mfma32(zz, ones, PK + 4))
    e("v_lshlrev_b32 %s, 8, %s" % (vr(t0), vr(g)))
    e("v_lshl_add_u32 %s, %s, 2, %s" % (vr(t0), vr(i15), vr(t0)))
    e("s_lshl_b32 s%d, s%d, 2" % (s_t, s_cg))
    e("s_add_u32 s%d, s%d, s%d" % (s_t, s_t, s_w))
    e("s_lshl_b32 s%d, s%d, 10" % (s_ox, s_t))
    e("s_add_u32 s%d, s%d, 0x%x" % (s_ox, s_ox, WS_KV))
    e("s_lshl_b32 s%d, s%d, 6" % (s_ow, s_t))
    e("s_add_u32 s%d, s%d, 0x%x" % (s_ow, s_ow, WS_Z))
    e("L_k1_poll:")
    e("s_waitcnt vmcnt(0)")
    e("v_readfirstlane_b32 s%d, %s" % (s_t2, vr(vF)))
    e("s_cmp_lg_u32 s%d, 0" % s_t2)
    e("s_cbranch_scc1 L_k1_go")
    e("s_sleep 1")
    e("buffer_load_dword %s, %s, %s, 0 offen offset:128 sc1" % (vr(vF), vr(vdo), sr(SDB, 4)))
    e("s_branch L_k1_poll")
    e("L_k1_go:")
    k.stamp("flag_ok")
    e("v_pk_mul_f32 %s, %s, %s op_sel_hi:[1,0]" % (vr(kv, 2), vr(kv, 2), vr(cst, 2)))
    e("v_pk_mul_f32 %s, %s, %s op_sel_hi:[1,0]" % (vr(kv + 2, 2), vr(kv + 2, 2), vr(cst, 2)))
    for r in range(4):
        e("buffer_atomic_add_f32 %s, %s, %s, s%d offen offset:%d" % (vr(kv + r), vr(t0), sr(SWS, 4), s_ox, r * 64))
    e("s_mov_b64 exec, 0xffff")
    e("buffer_atomic_add_f32 %s, %s, %s, s%d offen" % (vr(zz), vr(t0), sr(SWS, 4), s_ow))
    e("s_mov_b64 exec, -1")
    e("s_waitcnt lgkmcnt(0)")
    e("v_lshlrev_b32 %s, 4, %s" % (vr(t1), vr(lane)))
    e("s_lshr_b32 s%d, s%d, 1" % (s_ox, s_t))
    e("s_lshl_b32 s%d, s%d, 10" % (s_ox, s_ox))
    e("s_and_b32 s%d, s%d, 1" % (s_t, s_t))
    e("s_lshl_b32 s%d, s%d, 3" % (s_t, s_t))
    e("s_add_u32 s%d, s%d, s%d" % (s_ox, s_ox, s_t))
    e("s_add_u32 s%d, s%d, s%d" % (s_ox, s_ox, s_xb))
    if WS_PQ:
        e("s_add_u32 s%d, s%d, 0x%x" % (s_ox, s_ox, WS_PQ))
    PQ = ak
    for rt in range(4):
        for hp in range(2):
            o = 4 * rt + 2 * hp
            e("v_pk_fma_f32 %s, %s, %s, %s op_sel_hi:[1,0,1]" % (vr(aq + o, 2), vr(cs + 2 * hp, 2), vr(QN + 2 * rt, 2), vr(aq + o, 2)))
            e("v_pk_mul_f32 %s, %s, %s op_sel:[0,1] op_sel_hi:[1,1]" % (vr(aq + o, 2), vr(aq + o, 2), vr(QN + 2 * rt, 2)))
            phi(aq + o, PQ + 2 * rt + hp)
        e("buffer_store_dwordx2 %s, %s, %s, s%d offen" % (vr(PQ + 2 * rt, 2), vr(t1), sr(SWS, 4), s_ox))
        if rt < 3:
            e("s_add_u32 s%d, s%d, 16384" % (s_ox, s_ox))
    tail(k, 0, SWS)
    k.lds = S * 32768
    return k


def tr_addr(k, dst4, t0, t1, s_base):
    e = k.e
    e("v_bfe_u32 %s, v0, 2, 4" % vr(t0))
    e("v_lshlrev_b32 %s, 7, %s" % (vr(t0), vr(t0)))
    e("v_and_b32 %s, 3, v0" % vr(t1))
    e("v_lshl_add_u32 %s, %s, 3, %s" % (vr(t0), vr(t1), vr(t0)))
    e("v_bfe_u32 %s, v0, 3, 2" % vr(t1))
    e("v_lshl_add_u32 %s, %s, 5, %s" % (vr(t0), vr(t1), vr(t0)))
    e("v_add_u32 %s, s%d, %s" % (vr(dst4), s_base, vr(t0)))
    for nt in range(1, 4):
        e("v_xor_b32 %s, %d, %s" % (vr(dst4 + nt), nt * 32, vr(dst4)))


def dma_off(k, dst, t0, t1):
    e = k.e
    e("v_bfe_u32 %s, v0, 4, 2" % vr(t0))
    e("v_lshlrev_b32 %s, 1, %s" % (vr(t0), vr(t0)))
    e("v_and_b32 %s, 7, v0" % vr(t1))
    e("v_xor_b32 %s, %s, %s" % (vr(t0), vr(t0), vr(t1)))
    e("v_lshlrev_b32 %s, 4, %s" % (vr(t0), vr(t0)))
    e("v_bfe_u32 %s, v0, 3, 3" % vr(t1))
    e("v_lshl_add_u32 %s, %s, 10, %s" % (vr(dst), vr(t1), vr(t0)))


def rowmajor_off(k, dst, t0, t1):
    e = k.e
    e("v_bfe_u32 %s, v0, 4, 1" % vr(t0))
    e("v_lshlrev_b32 %s, 5, %s" % (vr(t0), vr(t0)))
    e("v_bfe_u32 %s, v0, 5, 1" % vr(t1))
    e("v_lshl_add_u32 %s, %s, 4, %s" % (vr(t0), vr(t1), vr(t0)))
    e("v_and_b32 %s, 15, v0" % vr(t1))
    e("v_lshl_add_u32 %s, %s, 10, %s" % (vr(dst), vr(t1), vr(t0)))


def xg_reduce(k, regs, tmp):
    e = k.e
    for sw in ("v_permlane16_swap_b32", "v_permlane32_swap_b32"):
        for j, r in enumerate(regs):
            e("v_mov_b32 %s, %s" % (vr(tmp + j), vr(r)))
        for j, r in enumerate(regs):
            e("%s %s, %s" % (sw, vr(r), vr(tmp + j)))
        for j, r in enumerate(regs):
            e("v_add_f32 %s, %s, %s" % (vr(r), vr(r), vr(tmp + j)))


def k2():
    k = K("k2_kernel")
    e = k.e
    SX, SW, SWS = 8, 12, 16
    s_w, s_rb, s_cb, s_t, s_t2, s_o, s_o2 = 24, 25, 26, 27, 28, 29, 30
    head(k, 256)
    srd(k, SWS, 72, 0x10000000)
    srd(k, SW, 16, 512 * 1024)
    srd(k, SX, 0, 2048 * 1024)
    e("s_and_b32 s%d, s2, 7" % s_rb)
    e("s_lshl_b32 s%d, s%d, 2" % (s_rb, s_rb))
    e("s_bfe_u32 s%d, s2, 0x20003" % s_t)
    e("s_add_u32 s%d, s%d, s%d" % (s_rb, s_rb, s_t))
    e("s_lshr_b32 s%d, s2, 5" % s_cb)
    t0, t1, t2, t3 = k.alloc(), k.alloc(), k.alloc(), k.alloc()
    l16, vkv, vz, vd, vxo = k.alloc(), k.alloc(), k.alloc(), k.alloc(), k.alloc()
    e("v_lshrrev_b32 %s, 6, v0" % vr(t0))
    e("v_and_b32 %s, 63, v0" % vr(l16))
    e("v_readfirstlane_b32 s%d, %s" % (s_w, vr(t0)))
    e("v_lshlrev_b32 %s, 4, %s" % (vr(l16), vr(l16)))
    e("v_bfe_u32 %s, v0, 4, 2" % vr(t0))
    e("v_lshlrev_b32 %s, 4, %s" % (vr(t0), vr(t0)))
    e("v_and_b32 %s, 15, v0" % vr(t1))
    e("v_lshl_add_u32 %s, %s, 6, %s" % (vr(vkv), vr(t1), vr(t0)))
    e("v_and_b32 %s, 3, v0" % vr(t1))
    e("v_lshl_add_u32 %s, %s, 6, %s" % (vr(vz), vr(t1), vr(t0)))
    for c in range(4):
        e("v_cmp_eq_u32 s[%d:%d], %d, %s" % (40 + 2 * c, 41 + 2 * c, c, vr(t1)))
    dma_off(k, vd, t0, t1)
    rowmajor_off(k, vxo, t0, t1)
    KVF = k.alloc(32, 4)
    ZF = k.alloc(8, 4)
    PQ = k.alloc(64, 4)
    XR = k.alloc(8, 4)
    e("s_lshl_b32 s%d, s%d, 13" % (s_o, s_w))
    e("s_add_u32 s%d, s%d, 0x%x" % (s_o, s_o, WS_KV))
    e("s_add_u32 s%d, s%d, 4096" % (s_o2, s_o))
    e("s_lshl_b32 s%d, s%d, 9" % (s_t, s_w))
    e("s_add_u32 s%d, s%d, 0x%x" % (s_t, s_t, WS_Z))
    s_pq = [32, 33, 34, 35]
    for u in range(4):
        e("s_add_u32 s%d, s%d, %d" % (s_t2, s_w, u + 1))
        e("s_and_b32 s%d, s%d, 3" % (s_t2, s_t2))
        e("s_lshl_b32 s%d, s%d, 14" % (s_pq[u], s_t2))
    e("s_lshl_b32 s%d, s%d, 16" % (s_t2, s_rb))
    e("s_lshl_b32 s36, s%d, 12" % s_w)
    e("s_add_u32 s%d, s%d, s36" % (s_t2, s_t2))
    if WS_PQ:
        e("s_add_u32 s%d, s%d, 0x%x" % (s_t2, s_t2, WS_PQ))
    for u in range(4):
        e("s_add_u32 s%d, s%d, s%d" % (s_pq[u], s_pq[u], s_t2))
    s_wo, s_lb = 37, 38
    e("s_lshl_b32 s%d, s%d, 17" % (s_wo, s_w))
    e("s_lshl_b32 s36, s%d, 7" % s_cb)
    e("s_add_u32 s%d, s%d, s36" % (s_wo, s_wo))
    e("s_lshl_b32 s%d, s%d, 14" % (s_lb, s_w))
    e("s_mov_b32 m0, s%d" % s_lb)
    s_xo = 39
    e("s_lshl_b32 s%d, s%d, 16" % (s_xo, s_rb))
    e("s_add_u32 s%d, s%d, s36" % (s_xo, s_xo))
    e("s_add_u32 s%d, s%d, s%d" % (s_xo, s_xo, s_lb))
    e("s_waitcnt lgkmcnt(0)")
    n = 0
    for q in range(2):
        e("buffer_load_dwordx4 %s, %s, %s, s%d offen offset:%d" % (vr(ZF + 4 * q, 4), vr(vz), sr(SWS, 4), s_t, q * 256))
    for hh in range(8):
        e("buffer_load_dwordx4 %s, %s, %s, s%d offen offset:%d" % (vr(KVF + 4 * hh, 4), vr(vkv), sr(SWS, 4), s_o if hh < 4 else s_o2, (hh & 3) * 1024))

    def ldpq(u):
        for hp in range(4):
            e("buffer_load_dwordx4 %s, %s, %s, s%d offen offset:%d" % (vr(PQ + 16 * u + 4 * hp, 4), vr(l16), sr(SWS, 4), s_pq[u], hp * 1024))
    ldpq(0)
    for i in range(16):
        e("buffer_load_dwordx4 %s, %s, s%d offen lds" % (vr(vd), sr(SW, 4), s_wo))
        if i < 15:
            e("s_add_u32 m0, m0, 1024")
            e("s_add_u32 s%d, s%d, 8192" % (s_wo, s_wo))
    ldpq(1)
    ldpq(2)
    ldpq(3)
    for P in range(2):
        e("buffer_load_dwordx4 %s, %s, %s, s%d offen offset:%d" % (vr(XR + 4 * P, 4), vr(vxo), sr(SX, 4), s_xo, P * 64))
    k.stamp("ld_issued")
    TA = k.alloc(4)
    tr_addr(k, TA, t0, t1, s_lb)
    RED = 65536
    vrw = k.alloc(3)
    vrr = k.alloc()
    for u in range(3):
        e("s_add_u32 s%d, s%d, %d" % (s_t2, s_w, u + 1))
        e("s_and_b32 s%d, s%d, 3" % (s_t2, s_t2))
        e("s_mul_i32 s%d, s%d, 12288" % (s_t2, s_t2))
        e("s_add_u32 s%d, s%d, %d" % (s_t2, s_t2, RED + u * 4096))
        e("v_add_u32 %s, s%d, %s" % (vr(vrw + u), s_t2, vr(l16)))
    e("s_mul_i32 s%d, s%d, 12288" % (s_t2, s_w))
    e("s_add_u32 s%d, s%d, %d" % (s_t2, s_t2, RED))
    e("v_add_u32 %s, s%d, %s" % (vr(vrr), s_t2, vr(l16)))
    EPS = k.alloc(4, 4)
    for r in range(4):
        e("v_mov_b32 %s, %s" % (vr(EPS + r), f32(1e-6)))
    ZA = k.alloc(16, 4)
    KVB = k.alloc(16, 2)
    e("s_waitcnt vmcnt(42)")
    k.stamp("z_in")
    for q in range(2):
        e("v_cvt_pk_bf16_f32 %s, %s, %s" % (vr(t0), vr(ZF + 4 * q), vr(ZF + 4 * q + 1)))
        e("v_cvt_pk_bf16_f32 %s, %s, %s" % (vr(t1), vr(ZF + 4 * q + 2), vr(ZF + 4 * q + 3)))
        for c in range(4):
            e("v_cndmask_b32 %s, 0, %s, s[%d:%d]" % (vr(ZA + 8 * q + 2 * c), vr(t0), 40 + 2 * c, 41 + 2 * c))
            e("v_cndmask_b32 %s, 0, %s, s[%d:%d]" % (vr(ZA + 8 * q + 2 * c + 1), vr(t1), 40 + 2 * c, 41 + 2 * c))
    for hh in range(8):
        e("s_waitcnt vmcnt(%d)" % (41 - hh))
        e("v_cvt_pk_bf16_f32 %s, %s, %s" % (vr(KVB + 2 * hh), vr(KVF + 4 * hh), vr(KVF + 4 * hh + 1)))
        e("v_cvt_pk_bf16_f32 %s, %s, %s" % (vr(KVB + 2 * hh + 1), vr(KVF + 4 * hh + 2), vr(KVF + 4 * hh + 3)))
    NUM = KVF
    DEN = ZF
    WF = 256
    ACC = k.alloc(64, 4)

    def attn_m(u):
        o = []
        for q in range(2):
            o.append(mfma32(DEN + 4 * q, ZA + 8 * q, PQ + 16 * u + 8 * q, EPS))
            o.append(mfma32(DEN + 4 * q, ZA + 8 * q + 4, PQ + 16 * u + 8 * q + 4))
        for hh in range(8):
            o.append(mfma16(NUM + 4 * hh, KVB + 2 * hh, PQ + 16 * u + 2 * hh, "0"))
        return o

    def attn_v(u):
        o = []
        for r in range(8):
            o.append("v_rcp_f32 %s, %s" % (vr(DEN + r), vr(DEN + r)))
        for hh in range(8):
            for r in range(4):
                o.append("v_mul_f32 %s, %s, %s" % (vr(NUM + 4 * hh + r), vr(NUM + 4 * hh + r), vr(DEN + hh)))
            o.append("v_cvt_pk_bf16_f32 %s, %s, %s" % (vr(PQ + 16 * u + 2 * hh), vr(NUM + 4 * hh), vr(NUM + 4 * hh + 1)))
            o.append("v_cvt_pk_bf16_f32 %s, %s, %s" % (vr(PQ + 16 * u + 2 * hh + 1), vr(NUM + 4 * hh + 2), vr(NUM + 4 * hh + 3)))
        return o

    def wo_m(u):
        o = []
        for ks in range(4):
            for nt in range(4):
                o.append(mfma32(ACC + 16 * u + 4 * nt, WF + 16 * ks + 4 * nt, PQ + 16 * u + 4 * ks, "0" if ks == 0 else None))
        return o

    def red_w(u):
        return ["ds_write_b128 %s, %s offset:%d" % (vr(vrw + u), vr(ACC + 16 * u + 4 * nt, 4), nt * 1024) for nt in range(4)]

    e("s_waitcnt vmcnt(30)")
    k.stamp("pq0_in")
    for x in attn_m(0):
        e(x)
    for x in attn_v(0):
        e(x)
    k.stamp("attn0")
    e("s_waitcnt vmcnt(10)")
    k.stamp("wo_in")
    rd = []
    for ks in range(4):
        for nt in range(4):
            for hf in range(2):
                rd.append("ds_read_b64_tr_b16 %s, %s offset:%d" % (vr(WF + 16 * ks + 4 * nt + 2 * hf, 2), vr(TA + nt), ks * 4096 + hf * 2048))
    for x in interleave(attn_m(1), rd, per=3):
        e(x)
    e("s_waitcnt lgkmcnt(0)")
    for u in range(1, 4):
        for x in interleave(wo_m(u - 1), attn_v(u), per=4):
            e(x)
        if u < 3:
            e("s_waitcnt vmcnt(%d)" % (10 - 4 * u))
            for x in attn_m(u + 1):
                e(x)
        for x in red_w(u - 1):
            e(x)
    for x in wo_m(3):
        e(x)
    k.stamp("mm_done")
    e("s_waitcnt vmcnt(0)")
    for P in range(2):
        e("v_permlane16_swap_b32 %s, %s" % (vr(XR + 4 * P), vr(XR + 4 * P + 2)))
        e("v_permlane16_swap_b32 %s, %s" % (vr(XR + 4 * P + 1), vr(XR + 4 * P + 3)))
    XF = NUM
    for j in range(8):
        e("v_lshlrev_b32 %s, 16, %s" % (vr(XF + 2 * j), vr(XR + j)))
        e("v_and_b32 %s, 0xffff0000, %s" % (vr(XF + 2 * j + 1), vr(XR + j)))
    e("s_waitcnt lgkmcnt(0)")
    e("s_barrier")
    k.stamp("red_bar")
    RB = ACC
    for sl in range(3):
        for nt in range(4):
            e("ds_read_b128 %s, %s offset:%d" % (vr(RB + 16 * sl + 4 * nt, 4), vr(vrr), sl * 4096 + nt * 1024))
    for j in range(8):
        e("v_pk_add_f32 %s, %s, %s" % (vr(XF + 2 * j, 2), vr(XF + 2 * j, 2), vr(ACC + 48 + 2 * j, 2)))
    for sl in range(3):
        e("s_waitcnt lgkmcnt(%d)" % (8 - 4 * sl))
        for j in range(8):
            e("v_pk_add_f32 %s, %s, %s" % (vr(XF + 2 * j, 2), vr(XF + 2 * j, 2), vr(RB + 16 * sl + 2 * j, 2)))
    HB = XR
    for j in range(8):
        e("v_cvt_pk_bf16_f32 %s, %s, %s" % (vr(HB + j), vr(XF + 2 * j), vr(XF + 2 * j + 1)))
    e("s_lshl_b32 s%d, s%d, 16" % (s_o, s_rb))
    e("s_add_u32 s%d, s%d, s%d" % (s_o, s_o, s_lb))
    e("s_lshl_b32 s%d, s%d, 11" % (s_t, s_cb))
    e("s_add_u32 s%d, s%d, s%d" % (s_o, s_o, s_t))
    e("s_add_u32 s%d, s%d, 0x%x" % (s_o, s_o, WS_H))
    for P in range(2):
        e("buffer_store_dwordx4 %s, %s, %s, s%d offen offset:%d" % (vr(HB + 4 * P, 4), vr(l16), sr(SWS, 4), s_o, P * 1024))
    SS = k.alloc(2, 2)
    e("v_mov_b32 %s, 0x3f803f80" % vr(t2))
    e("v_dot2_f32_bf16 %s, %s, %s, 0" % (vr(SS), vr(HB), vr(t2)))
    e("v_dot2_f32_bf16 %s, %s, %s, 0" % (vr(SS + 1), vr(HB), vr(HB)))
    for j in range(1, 8):
        e("v_dot2_f32_bf16 %s, %s, %s, %s" % (vr(SS), vr(HB + j), vr(t2), vr(SS)))
        e("v_dot2_f32_bf16 %s, %s, %s, %s" % (vr(SS + 1), vr(HB + j), vr(HB + j), vr(SS + 1)))
    xg_reduce(k, [SS, SS + 1], t0)
    e("v_lshlrev_b32 %s, 2, %s" % (vr(t2), vr(l16)))
    e("s_lshl_b32 s%d, s%d, 12" % (s_o, s_rb))
    e("s_lshl_b32 s%d, s%d, 10" % (s_t, s_w))
    e("s_add_u32 s%d, s%d, s%d" % (s_o, s_o, s_t))
    e("s_lshl_b32 s%d, s%d, 3" % (s_t, s_cb))
    e("s_add_u32 s%d, s%d, s%d" % (s_o, s_o, s_t))
    e("s_add_u32 s%d, s%d, 0x%x" % (s_o, s_o, WS_ST))
    e("s_mov_b64 exec, 0xffff")
    e("buffer_store_dwordx2 %s, %s, %s, s%d offen" % (vr(SS, 2), vr(t2), sr(SWS, 4), s_o))
    e("s_mov_b64 exec, -1")
    tail(k, 1, SWS)
    k.lds = 65536 + 49152
    k.agpr = 64
    return k


def k3():
    k = K("k3_kernel")
    e = k.e
    SW, SB, SWS = 8, 12, 16
    s_w, s_rb, s_cb, s_t, s_t2, s_ph = 24, 25, 26, 27, 28, 29
    head(k, 256)
    srd(k, SWS, 72, 0x10000000)
    srd(k, SW, 32, 512 * 3584)
    srd(k, SB, 40, 3584)
    e("s_and_b32 s%d, s2, 7" % s_rb)
    e("s_lshl_b32 s%d, s%d, 1" % (s_rb, s_rb))
    e("s_bfe_u32 s%d, s2, 0x10003" % s_t)
    e("s_add_u32 s%d, s%d, s%d" % (s_rb, s_rb, s_t))
    e("s_lshr_b32 s%d, s2, 4" % s_cb)
    e("s_lshl_b32 s%d, s%d, 1" % (s_ph, s_t))
    e("s_add_u32 s%d, s%d, s%d" % (s_ph, s_ph, s_cb))
    t0, t1, t2, t3 = k.alloc(), k.alloc(), k.alloc(), k.alloc()
    l16 = k.alloc()
    VD = k.alloc(7)
    e("v_lshrrev_b32 %s, 6, v0" % vr(t0))
    e("v_and_b32 %s, 63, v0" % vr(l16))
    e("v_readfirstlane_b32 s%d, %s" % (s_w, vr(t0)))
    e("v_lshlrev_b32 %s, 4, %s" % (vr(l16), vr(l16)))
    e("s_movk_i32 s30, 3584 - 224")
    for m in range(7):
        e("v_add_u32 %s, %d, v0" % (vr(t0), 256 * m))
        e("v_mul_u32_u24 %s, 4682, %s" % (vr(t1), vr(t0)))
        e("v_lshrrev_b32 %s, 16, %s" % (vr(t1), vr(t1)))
        e("v_lshlrev_b32 %s, 4, %s" % (vr(t0), vr(t0)))
        e("v_mad_u32_u24 %s, %s, s30, %s" % (vr(VD + m), vr(t1), vr(t0)))
    s_wc, s_hb, s_m0 = 31, 32, 33
    e("s_mul_i32 s%d, s%d, 224" % (s_wc, s_cb))
    e("s_lshl_b32 s%d, s%d, 17" % (s_hb, s_rb))
    e("s_lshl_b32 s%d, s%d, 15" % (s_t, s_w))
    e("s_add_u32 s%d, s%d, s%d" % (s_hb, s_hb, s_t))
    e("s_add_u32 s%d, s%d, 0x%x" % (s_hb, s_hb, WS_H))
    e("s_lshl_b32 s%d, s%d, 10" % (s_m0, s_w))
    vst, vb0, vb1 = k.alloc(), k.alloc(), k.alloc()
    e("v_and_b32 %s, 15, v0" % vr(t0))
    e("v_bfe_u32 %s, v0, 4, 2" % vr(t1))
    e("v_lshlrev_b32 %s, 4, %s" % (vr(t2), vr(t1)))
    e("v_lshl_add_u32 %s, %s, 6, %s" % (vr(vst), vr(t0), vr(t2)))
    s_st = 34
    e("s_lshl_b32 s%d, s%d, 13" % (s_st, s_rb))
    e("s_lshl_b32 s%d, s%d, 11" % (s_t, s_w))
    e("s_add_u32 s%d, s%d, s%d" % (s_st, s_st, s_t))
    e("s_add_u32 s%d, s%d, 0x%x" % (s_st, s_st, WS_ST))
    s_d6, s_d7 = 35, 36
    e("s_and_b32 s%d, s%d, 1" % (s_t, s_cb))
    e("s_lshl_b32 s%d, s%d, 5" % (s_d6, s_t))
    e("s_cmp_eq_u32 s%d, 0" % s_t)
    e("s_cselect_b32 s%d, 192, 0" % s_d7)
    e("v_lshlrev_b32 %s, 3, %s" % (vr(t2), vr(t1)))
    e("v_add_u32 %s, s%d, %s" % (vr(vb0), s_d6, vr(t2)))
    e("v_add_u32 %s, s%d, %s" % (vr(vb1), s_d7, vr(t2)))
    STR = k.alloc(8, 4)
    BR = k.alloc(14, 2)
    HF = 256
    e("s_waitcnt lgkmcnt(0)")
    s_oh, s_ow = 37, 38
    nvm = 0
    need = {}
    for G in range(4):
        e("s_add_u32 s%d, s%d, %d" % (s_t, s_ph, G))
        e("s_and_b32 s%d, s%d, 3" % (s_t, s_t))
        e("s_lshl_b32 s%d, s%d, 12" % (s_oh, s_t))
        e("s_add_u32 s%d, s%d, s%d" % (s_oh, s_oh, s_hb))
        e("s_add_u32 s39, s%d, 16384" % s_oh)
        e("s_mul_i32 s%d, s%d, %d" % (s_ow, s_t, 128 * 3584))
        e("s_add_u32 s%d, s%d, s%d" % (s_ow, s_ow, s_wc))
        for q in range(4):
            t = 4 * G + q
            for m in (2 * q, 2 * q + 1):
                if m < 7:
                    e("s_add_u32 m0, s%d, %d" % (s_m0, G * 28672 + m * 4096))
                    e("buffer_load_dwordx4 %s, %s, s%d offen lds" % (vr(VD + m), sr(SW, 4), s_ow))
                    nvm += 1
            e("buffer_load_dwordx4 %s, %s, %s, s%d offen offset:%d" % (vr(HF + 8 * t, 4), vr(l16), sr(SWS, 4), s_oh, q * 1024))
            e("buffer_load_dwordx4 %s, %s, %s, s39 offen offset:%d" % (vr(HF + 8 * t + 4, 4), vr(l16), sr(SWS, 4), q * 1024))
            nvm += 2
            need[t] = nvm
        if G == 0:
            for rt in range(2):
                e("buffer_load_dwordx4 %s, %s, %s, s%d offen offset:%d" % (vr(STR + 4 * rt, 4), vr(vst), sr(SWS, 4), s_st, rt * 1024))
            nvm += 2
    total = nvm
    k.stamp("ld_issued")
    va6, va7, vac0, vac1 = k.alloc(), k.alloc(), k.alloc(), k.alloc()
    e("v_bfe_u32 %s, v0, 2, 4" % vr(t0))
    e("v_mul_u32_u24 %s, 224, %s" % (vr(t0), vr(t0)))
    e("v_and_b32 %s, 3, v0" % vr(t1))
    e("v_lshl_add_u32 %s, %s, 3, %s" % (vr(t0), vr(t1), vr(t0)))
    e("v_add_u32 %s, s%d, %s" % (vr(va6), s_d6, vr(t0)))
    e("v_add_u32 %s, s%d, %s" % (vr(va7), s_d7, vr(t0)))
    e("s_lshl_b32 s%d, s%d, 5" % (s_t, s_w))
    e("s_add_u32 s%d, s%d, s%d" % (s_t, s_t, s_d6))
    e("v_add_u32 %s, s%d, %s" % (vr(vac0), s_t, vr(t0)))
    e("s_add_u32 s%d, s%d, 128" % (s_t2, s_t))
    e("s_cmp_eq_u32 s%d, 2" % s_w)
    e("s_cselect_b32 s%d, s%d, s%d" % (s_t2, s_d7, s_t2))
    e("s_cmp_eq_u32 s%d, 3" % s_w)
    e("s_cselect_b32 s%d, s%d, s%d" % (s_t2, s_t, s_t2))
    e("v_add_u32 %s, s%d, %s" % (vr(vac1), s_t2, vr(t0)))
    hi = [k.alloc() for _ in range(4)]
    for a, b in zip(hi, (va6, va7, vac0, vac1)):
        e("v_add_u32 %s, %d, %s" % (vr(a), 57344, vr(b)))
    ACC = k.alloc(56, 4)
    CS = k.alloc(8, 4)
    ones = k.alloc(4, 4)
    WF = [k.alloc(36, 4) for _ in range(2)]
    for r in range(4):
        e("v_mov_b32 %s, 0x3f803f80" % vr(ones + r))

    def reads(t, F):
        A = (va6, va7, vac0, vac1) if t < 8 else hi
        base = (t % 8) * 7168
        o = []
        for u in range(9):
            a, off = (A[0], 32 * u) if u < 6 else (A[u - 5], 0)
            for hf in range(2):
                o.append("ds_read_b64_tr_b16 %s, %s offset:%d" % (vr(F + 4 * u + 2 * hf, 2), vr(a), base + off + hf * 3584))
        return o

    def mf(t, F):
        o = []
        z = "0" if t == 0 else None
        if t == 15:
            for c in range(2):
                o.append(mfma32(CS + 4 * c, F + 28 + 4 * c, ones, z))
        for u in range(7):
            for rt in range(2):
                o.append(mfma32(ACC + 8 * u + 4 * rt, F + 4 * u, HF + 8 * t + 4 * rt, z))
        if t != 15:
            for c in range(2):
                o.append(mfma32(CS + 4 * c, F + 28 + 4 * c, ones, z))
        return o

    for t in range(16):
        e("s_waitcnt vmcnt(%d)" % (total - need[t]))
        e("s_barrier")
        if t in (0, 1, 4, 8, 12, 15):
            k.stamp("t%d" % t)
        r = reads(t, WF[t & 1])
        if t == 0:
            for x in r:
                e(x)
        else:
            e("s_waitcnt lgkmcnt(0)")
            for x in interleave(mf(t - 1, WF[(t - 1) & 1]), r, per=2):
                e(x)
        if t == 2:
            for u in range(7):
                a, off = (vb0, 32 * u) if u < 6 else (vb1, 0)
                e("buffer_load_dwordx2 %s, %s, %s, s%d offen offset:%d" % (vr(BR + 2 * u, 2), vr(a), sr(SB, 4), s_wc, off))
            total += 7
    e("s_waitcnt lgkmcnt(0)")
    m = mf(15, WF[1])
    for x in m[:6]:
        e(x)
    for rt in range(2):
        e("v_add_f32 %s, %s, %s" % (vr(STR + 4 * rt), vr(STR + 4 * rt), vr(STR + 4 * rt + 2)))
        e("v_add_f32 %s, %s, %s" % (vr(STR + 4 * rt + 1), vr(STR + 4 * rt + 1), vr(STR + 4 * rt + 3)))
    CSB = 114688
    e("v_bfe_u32 %s, v0, 4, 2" % vr(t3))
    e("v_lshlrev_b32 %s, 4, %s" % (vr(t3), vr(t3)))
    e("v_add_u32 %s, %d, %s" % (vr(t3), CSB, vr(t3)))
    e("s_lshl_b32 s%d, s%d, 6" % (s_t, s_w))
    e("v_add_u32 %s, s%d, %s" % (vr(t2), s_t, vr(t3)))
    for x in m[6:10]:
        e(x)
    e("ds_write_b128 %s, %s" % (vr(t2), vr(CS, 4)))
    e("ds_write_b128 %s, %s offset:256" % (vr(t2), vr(CS + 4, 4)))
    for x in m[10:]:
        e(x)
    tmp4 = k.alloc(4)
    xg_reduce(k, [STR, STR + 1, STR + 4, STR + 5], tmp4)
    for rt in range(2):
        a, b = STR + 4 * rt, STR + 4 * rt + 1
        e("v_mul_f32 %s, %s, %s" % (vr(a), f32(-1.0 / 512), vr(a)))
        e("v_mul_f32 %s, %s, %s" % (vr(b), f32(1.0 / 512), vr(b)))
        e("v_fma_f32 %s, -%s, %s, %s" % (vr(b), vr(a), vr(a), vr(b)))
        e("v_max_f32 %s, 0, %s" % (vr(b), vr(b)))
        e("v_add_f32 %s, %s, %s" % (vr(b), f32(1e-5), vr(b)))
        e("v_rsq_f32 %s, %s" % (vr(b), vr(b)))
        e("v_mul_f32 %s, %s, %s" % (vr(b), f32(LOG2E), vr(b)))
        e("v_mul_f32 %s, %s, %s" % (vr(a), vr(a), vr(b)))
    e("s_waitcnt lgkmcnt(0)")
    e("s_barrier")
    k.stamp("cs_bar")
    CF = WF[0]
    BF = WF[1]
    for u in range(7):
        e("ds_read_b128 %s, %s offset:%d" % (vr(CF + 4 * u, 4), vr(t3), u * 64))
    e("s_waitcnt vmcnt(0)")
    cl = k.alloc(2, 2)
    e("v_mov_b32 %s, %s" % (vr(cl), f32(LOG2E)))
    for j in range(14):
        e("v_lshlrev_b32 %s, 16, %s" % (vr(BF + 2 * j), vr(BR + j)))
        e("v_and_b32 %s, 0xffff0000, %s" % (vr(BF + 2 * j + 1), vr(BR + j)))
        e("v_pk_mul_f32 %s, %s, %s op_sel_hi:[1,0]" % (vr(BF + 2 * j, 2), vr(BF + 2 * j, 2), vr(cl, 2)))
    s_a, s_a1 = 40, 41
    e("s_lshl_b32 s%d, s%d, 3" % (s_t, s_rb))
    e("s_lshl_b32 s%d, s%d, 1" % (s_t2, s_w))
    e("s_add_u32 s%d, s%d, s%d" % (s_t, s_t, s_t2))
    e("s_mul_i32 s%d, s%d, %d" % (s_t, s_t, 56 * 1024))
    e("s_add_u32 s%d, s%d, 0x%x" % (s_t, s_t, WS_ACT))
    e("s_add_u32 s%d, s%d, s%d" % (s_t2, s_wc, s_d6))
    e("s_lshl_b32 s%d, s%d, 4" % (s_t2, s_t2))
    e("s_add_u32 s%d, s%d, s%d" % (s_a, s_t, s_t2))
    e("s_add_u32 s%d, s%d, s%d" % (s_t2, s_wc, s_d7))
    e("s_and_b32 s42, s%d, 32" % s_t2)
    e("s_sub_u32 s%d, s%d, s42" % (s_t2, s_t2))
    e("s_lshl_b32 s%d, s%d, 4" % (s_t2, s_t2))
    e("s_lshr_b32 s42, s42, 2")
    e("s_add_u32 s%d, s%d, s42" % (s_t2, s_t2))
    e("s_add_u32 s%d, s%d, s%d" % (s_a1, s_t, s_t2))
    e("s_waitcnt lgkmcnt(0)")
    k.stamp("epi_start")
    tm = k.alloc(8, 2)
    OB = k.alloc(8, 4)
    for rt in range(2):
        S2 = STR + 4 * rt
        for u in range(7):
            ob = OB + 4 * ((u >> 1) & 1) + 2 * (u & 1)
            for hp in range(2):
                a = ACC + 8 * u + 4 * rt + 2 * hp
                C, E = tm + 4 * hp, tm + 4 * hp + 2
                e("v_pk_fma_f32 %s, %s, %s, %s op_sel_hi:[1,0,1]" % (vr(C, 2), vr(CF + 4 * u + 2 * hp, 2), vr(S2, 2), vr(BF + 4 * u + 2 * hp, 2)))
                e("v_pk_fma_f32 %s, %s, %s, %s op_sel:[0,1,0] op_sel_hi:[1,1,1]" % (vr(a, 2), vr(a, 2), vr(S2, 2), vr(C, 2)))
                e("v_exp_f32 %s, %s" % (vr(E), vr(a)))
                e("v_exp_f32 %s, %s" % (vr(E + 1), vr(a + 1)))
            for hp in range(2):
                a = ACC + 8 * u + 4 * rt + 2 * hp
                C, E = tm + 4 * hp, tm + 4 * hp + 2
                e("v_pk_fma_f32 %s, %s, -0.5, -1.0 op_sel_hi:[1,0,0]" % (vr(C, 2), vr(E, 2)))
                e("v_pk_fma_f32 %s, %s, %s, -1.0 op_sel_hi:[1,1,0]" % (vr(C, 2), vr(E, 2), vr(C, 2)))
                e("v_rcp_f32 %s, %s" % (vr(C), vr(C)))
                e("v_rcp_f32 %s, %s" % (vr(C + 1), vr(C + 1)))
            for hp in range(2):
                a = ACC + 8 * u + 4 * rt + 2 * hp
                C, E = tm + 4 * hp, tm + 4 * hp + 2
                e("v_pk_fma_f32 %s, %s, %s, %s" % (vr(a, 2), vr(C, 2), vr(a, 2), vr(a, 2)))
                e("v_cvt_pk_bf16_f32 %s, %s, %s" % (vr(ob + hp), vr(a), vr(a + 1)))
            if u & 1:
                e("buffer_store_dwordx4 %s, %s, %s, s%d offen offset:%d" % (vr(ob - 2, 4), vr(l16), sr(SWS, 4), s_a, (u >> 1) * 1024))
            if u == 6:
                e("buffer_store_dwordx2 %s, %s, %s, s%d offen" % (vr(ob, 2), vr(l16), sr(SWS, 4), s_a1))
        if rt == 0:
            e("s_add_u32 s%d, s%d, %d" % (s_a, s_a, 56 * 1024))
            e("s_add_u32 s%d, s%d, %d" % (s_a1, s_a1, 56 * 1024))
    tail(k, 2, SWS)
    k.lds = 114688 + 512
    k.agpr = 128
    return k


def k4():
    k = K("k4_kernel")
    e = k.e
    SW, SO, SWS = 8, 12, 16
    s_w, s_rb, s_cb, s_t, s_t2, s_ks = 24, 25, 26, 27, 28, 29
    R = 7
    head(k, 256)
    srd(k, SWS, 72, 0x10000000)
    srd(k, SW, 48, 1792 * 1024)
    srd(k, SO, 56, 2048 * 1024)
    e("s_and_b32 s%d, s2, 7" % s_rb)
    e("s_lshl_b32 s%d, s%d, 2" % (s_rb, s_rb))
    e("s_bfe_u32 s%d, s2, 0x20003" % s_t)
    e("s_add_u32 s%d, s%d, s%d" % (s_rb, s_rb, s_t))
    e("s_lshr_b32 s%d, s2, 5" % s_cb)
    e("s_lshl_b32 s%d, s%d, 1" % (s_t, s_t))
    e("s_add_u32 s%d, s%d, s%d" % (s_t, s_t, s_cb))
    e("s_and_b32 s%d, s%d, 7" % (s_t, s_t))
    e("s_mul_i32 s%d, s%d, 7" % (s_t, s_t))
    e("s_lshr_b32 s%d, s%d, 2" % (s_ks, s_t))
    t0, t1, t2 = k.alloc(), k.alloc(), k.alloc()
    l16, vd, vxo = k.alloc(), k.alloc(), k.alloc()
    VA = k.alloc(4)
    VD = k.alloc(4)
    e("v_lshrrev_b32 %s, 6, v0" % vr(t0))
    e("v_and_b32 %s, 63, v0" % vr(l16))
    e("v_readfirstlane_b32 s%d, %s" % (s_w, vr(t0)))
    e("v_lshlrev_b32 %s, 4, %s" % (vr(l16), vr(l16)))
    dma_off(k, VD, t0, t1)
    for i in range(1, 4):
        e("v_add_u32 %s, %d, %s" % (vr(VD + i), i * (8192 - 1024), vr(VD)))
    for u in range(4):
        e("s_add_u32 s%d, s%d, %d" % (s_t2, s_w, u + 1))
        e("s_and_b32 s%d, s%d, 3" % (s_t2, s_t2))
        e("s_mul_i32 s%d, s%d, %d" % (s_t2, s_t2, 56 * 1024))
        e("v_add_u32 %s, s%d, %s" % (vr(VA + u), s_t2, vr(l16)))
    s_ab, s_wb, s_lb, s_oa, s_ow = 30, 31, 32, 33, 34
    e("s_mul_i32 s%d, s%d, %d" % (s_ab, s_rb, 4 * 56 * 1024))
    e("s_mul_i32 s%d, s%d, %d" % (s_t, s_w, 14 * 1024))
    e("s_add_u32 s%d, s%d, s%d" % (s_ab, s_ab, s_t))
    e("s_add_u32 s%d, s%d, 0x%x" % (s_ab, s_ab, WS_ACT))
    e("s_mul_i32 s%d, s%d, %d" % (s_wb, s_w, 14 * 32768))
    e("s_lshl_b32 s%d, s%d, 7" % (s_t, s_cb))
    e("s_add_u32 s%d, s%d, s%d" % (s_wb, s_wb, s_t))
    e("s_mul_i32 s%d, s%d, %d" % (s_lb, s_w, R * 4096))
    AF = 256
    HR = k.alloc(8, 4)
    e("s_waitcnt lgkmcnt(0)")

    def issue(t):
        sl = t % R
        o = []
        o.append("s_lshl_b32 s%d, s%d, 10" % (s_oa, s_ks))
        o.append("s_add_u32 s%d, s%d, s%d" % (s_oa, s_oa, s_ab))
        o.append("s_lshl_b32 s%d, s%d, 15" % (s_ow, s_ks))
        o.append("s_add_u32 s%d, s%d, s%d" % (s_ow, s_ow, s_wb))
        o.append("s_add_u32 m0, s%d, %d" % (s_lb, sl * 4096))
        o.append("s_add_u32 s%d, s%d, 1" % (s_ks, s_ks))
        o.append("s_cmp_eq_u32 s%d, 14" % s_ks)
        o.append("s_cselect_b32 s%d, 0, s%d" % (s_ks, s_ks))
        for i in range(4):
            o.append("buffer_load_dwordx4 %s, %s, s%d offen offset:%d lds" % (vr(VD + i), sr(SW, 4), s_ow, i * 1024))
            o.append("buffer_load_dwordx4 %s, %s, %s, s%d offen" % (vr(AF + 16 * sl + 4 * i, 4), vr(VA + i), sr(SWS, 4), s_oa))
        return o

    for t in range(R):
        for x in issue(t):
            e(x)
    k.stamp("ld_issued")
    s_o = 35
    e("s_lshl_b32 s%d, s%d, 16" % (s_o, s_rb))
    e("s_lshl_b32 s%d, s%d, 14" % (s_t, s_w))
    e("s_add_u32 s%d, s%d, s%d" % (s_o, s_o, s_t))
    e("s_lshl_b32 s%d, s%d, 7" % (s_t2, s_cb))
    e("s_add_u32 s36, s%d, s%d" % (s_o, s_t2))
    e("s_lshl_b32 s%d, s%d, 11" % (s_t, s_cb))
    e("s_add_u32 s%d, s%d, s%d" % (s_o, s_o, s_t))
    e("s_add_u32 s%d, s%d, 0x%x" % (s_o, s_o, WS_H))
    for P in range(2):
        e("buffer_load_dwordx4 %s, %s, %s, s%d offen offset:%d" % (vr(HR + 4 * P, 4), vr(l16), sr(SWS, 4), s_o, P * 1024))
    rowmajor_off(k, vxo, t0, t1)
    TA = k.alloc(4)
    tr_addr(k, TA, t0, t1, s_lb)
    RED = 4 * R * 4096
    vrw = k.alloc(3)
    vrr = k.alloc()
    for u in range(3):
        e("s_add_u32 s%d, s%d, %d" % (s_t2, s_w, u + 1))
        e("s_and_b32 s%d, s%d, 3" % (s_t2, s_t2))
        e("s_mul_i32 s%d, s%d, 12288" % (s_t2, s_t2))
        e("s_add_u32 s%d, s%d, %d" % (s_t2, s_t2, RED + u * 4096))
        e("v_add_u32 %s, s%d, %s" % (vr(vrw + u), s_t2, vr(l16)))
    e("s_mul_i32 s%d, s%d, 12288" % (s_t2, s_w))
    e("s_add_u32 s%d, s%d, %d" % (s_t2, s_t2, RED))
    e("v_add_u32 %s, s%d, %s" % (vr(vrr), s_t2, vr(l16)))
    ACC = k.alloc(64, 4)
    WF = [k.alloc(16, 4) for _ in range(2)]

    def reads(t):
        sl = t % R
        F = WF[t & 1]
        return ["ds_read_b64_tr_b16 %s, %s offset:%d" % (vr(F + 4 * nt + 2 * hf, 2), vr(TA + nt), sl * 4096 + hf * 2048)
                for nt in range(4) for hf in range(2)]

    def mf(t):
        sl = t % R
        F = WF[t & 1]
        z = "0" if t == 0 else None
        return [mfma32(ACC + 16 * u + 4 * nt, F + 4 * nt, AF + 16 * sl + 4 * u, z) for u in range(4) for nt in range(4)]

    order = [("k", t) for t in range(R)] + [("h", 0)]

    def outstanding_after(t):
        i = order.index(("k", t))
        return sum(8 if o[0] == "k" else 2 for o in order[i + 1:])

    for t in range(14):
        e("s_waitcnt vmcnt(%d)" % outstanding_after(t))
        if t in (0, 1, 3, 6, 7, 10, 13):
            k.stamp("t%d" % t)
        r = reads(t)
        if t == 0:
            for x in r:
                e(x)
        else:
            e("s_waitcnt lgkmcnt(0)")
            for x in interleave(mf(t - 1), r, per=1):
                e(x)
            if t - 1 + R < 14:
                for x in issue(t - 1 + R):
                    e(x)
                order.append(("k", t - 1 + R))
    e("s_waitcnt lgkmcnt(0)")
    m = mf(13)
    for u in range(4):
        for x in m[4 * u:4 * u + 4]:
            e(x)
        if u >= 2:
            for nt in range(4):
                e("ds_write_b128 %s, %s offset:%d" % (vr(vrw + u - 2), vr(ACC + 16 * (u - 2) + 4 * nt, 4), nt * 1024))
    XF = k.alloc(16, 2)
    for j in range(8):
        e("v_lshlrev_b32 %s, 16, %s" % (vr(XF + 2 * j), vr(HR + j)))
        e("v_and_b32 %s, 0xffff0000, %s" % (vr(XF + 2 * j + 1), vr(HR + j)))
    for nt in range(4):
        e("ds_write_b128 %s, %s offset:%d" % (vr(vrw + 2), vr(ACC + 32 + 4 * nt, 4), nt * 1024))
    cl = k.alloc(2, 2)
    e("v_mov_b32 %s, %s" % (vr(cl), f32(LN2)))
    e("s_waitcnt lgkmcnt(0)")
    e("s_barrier")
    k.stamp("red_bar")
    for sl in range(3):
        for nt in range(4):
            e("ds_read_b128 %s, %s offset:%d" % (vr(ACC + 16 * sl + 4 * nt, 4), vr(vrr), sl * 4096 + nt * 1024))
    for sl in range(3):
        e("s_waitcnt lgkmcnt(%d)" % (8 - 4 * sl))
        for j in range(8):
            e("v_pk_add_f32 %s, %s, %s" % (vr(ACC + 48 + 2 * j, 2), vr(ACC + 48 + 2 * j, 2), vr(ACC + 16 * sl + 2 * j, 2)))
    for j in range(8):
        e("v_pk_fma_f32 %s, %s, %s, %s op_sel_hi:[1,0,1]" % (vr(XF + 2 * j, 2), vr(ACC + 48 + 2 * j, 2), vr(cl, 2), vr(XF + 2 * j, 2)))
        e("v_cvt_pk_bf16_f32 %s, %s, %s" % (vr(HR + j), vr(XF + 2 * j), vr(XF + 2 * j + 1)))
    for P in range(2):
        e("v_permlane16_swap_b32 %s, %s" % (vr(HR + 4 * P), vr(HR + 4 * P + 2)))
        e("v_permlane16_swap_b32 %s, %s" % (vr(HR + 4 * P + 1), vr(HR + 4 * P + 3)))
        e("buffer_store_dwordx4 %s, %s, %s, s36 offen offset:%d" % (vr(HR + 4 * P, 4), vr(vxo), sr(SO, 4), P * 64))
    tail(k, 3, SWS)
    k.lds = RED + 49152
    k.agpr = 16 * R
    return k


def main():
    ks = [k1(), k2(), k3(), k4()]
    L = []
    for k in ks:
        L.append("; @launch kernel=%s grid=(256,1,1) block=(256,1,1) lds=%d" % (k.name, k.lds))
    L.append('.amdgcn_target "amdgcn-amd-amdhsa--gfx950"')
    L.append(".text")
    for k in ks:
        assert k.nv <= 256, (k.name, k.nv)
        L += hz.fix(k.L)
    L.append('.section .rodata,"a"')
    for k in ks:
        ag = getattr(k, "agpr", 0)
        acc = (k.nv + 3) // 4 * 4
        if ag:
            acc = 256
        L.append(".p2align 6\n.amdhsa_kernel %s" % k.name)
        L.append("  .amdhsa_next_free_vgpr %d\n  .amdhsa_next_free_sgpr 102\n  .amdhsa_accum_offset %d" % (acc + ag, acc))
        L.append("  .amdhsa_group_segment_fixed_size 0\n  .amdhsa_kernarg_size 80\n  .amdhsa_user_sgpr_count 2\n"
                 "  .amdhsa_user_sgpr_kernarg_segment_ptr 1\n  .amdhsa_system_sgpr_workgroup_id_x 1\n.end_amdhsa_kernel")
        print(k.name, "vgpr", k.nv, "agpr", ag, "lds", k.lds, "lines", len(k.L))
    open(OUT, "w").write("\n".join(L) + "\n")


main()
```

```python
import re

TRANS = ("v_exp_f32", "v_log_f32", "v_rcp_f32", "v_rsq_f32", "v_sqrt_f32", "v_sin_f32", "v_cos_f32")


def regs_of(tok):
    tok = tok.strip()
    m = re.fullmatch(r"-?\|?([vas])(\d+)\|?", tok)
    if m:
        return [(m.group(1), int(m.group(2)))]
    m = re.fullmatch(r"-?\|?([vas])\[(\d+):(\d+)\]\|?", tok)
    if m:
        return [(m.group(1), i) for i in range(int(m.group(2)), int(m.group(3)) + 1)]
    if tok == "vcc":
        return [("s", 106), ("s", 107)]
    if tok == "vcc_lo":
        return [("s", 106)]
    if tok == "vcc_hi":
        return [("s", 107)]
    if tok == "exec":
        return [("s", 126), ("s", 127)]
    if tok == "exec_lo":
        return [("s", 126)]
    if tok == "exec_hi":
        return [("s", 127)]
    if tok == "m0":
        return [("s", 124)]
    return []


def split_ops(s):
    out, depth, cur = [], 0, ""
    for ch in s:
        if ch == "[":
            depth += 1
        if ch == "]":
            depth -= 1
        if ch == "," and depth == 0:
            out.append(cur.strip())
            cur = ""
        else:
            cur += ch
    if cur.strip():
        out.append(cur.strip())
    return out


class I:
    pass


def parse(line):
    t = line.split(";")[0].strip()
    if not t or t.endswith(":") or t.startswith("."):
        return None
    p = t.split(None, 1)
    op = p[0]
    rest = p[1] if len(p) > 1 else ""
    ops = split_ops(rest)
    mods = ""
    if ops:
        lp = ops[-1].split(None, 1)
        ops[-1] = lp[0]
        if len(lp) > 1:
            mods = lp[1]
    i = I()
    i.op, i.ops, i.mods = op, ops, mods
    i.dst, i.src = [], []
    i.kind = "other"
    i.A = i.B = i.C = []
    R = [regs_of(o) for o in ops]
    if op.startswith("v_mfma"):
        i.kind = "mfma"
        i.dst = R[0]
        i.A, i.B, i.C = R[1], R[2], R[3]
        i.src = R[1] + R[2] + R[3]
        i.passes = 8 if "32x32" in op else 4
    elif op.startswith("v_"):
        i.kind = "valu"
        if (op.startswith("v_permlane") and "swap" in op) or op.startswith("v_swap"):
            i.dst = R[0] + R[1]
            i.src = R[0] + R[1]
        elif op.startswith("v_cmp"):
            i.dst = R[0]
            i.src = sum(R[1:], [])
        elif op.startswith(("v_add_co", "v_sub_co", "v_addc_co", "v_subb_co")):
            i.dst = R[0] + R[1]
            i.src = sum(R[2:], [])
        elif op == "v_nop":
            pass
        else:
            i.dst = R[0]
            i.src = sum(R[1:], [])
            if op.startswith(("v_fmac", "v_dot2c", "v_mac")):
                i.src = i.src + R[0]
            if op.startswith("v_cndmask") and len(ops) == 3:
                i.src = i.src + [("s", 106), ("s", 107)]
    elif op.startswith(("buffer_", "global_")):
        i.kind = "vmem"
        lds = (" lds" in (" " + mods)) or "_lds_" in op
        if "load" in op and not lds:
            i.dst = R[0]
            i.src = sum(R[1:], [])
        elif "atomic" in op and "sc0" in mods and op.startswith("global_") and len(ops) == 4:
            i.dst = R[0]
            i.src = sum(R[1:], [])
        elif "atomic" in op and "sc0" in mods and op.startswith("buffer_"):
            i.dst = R[0]
            i.src = sum(R, [])
        else:
            i.src = sum(R, [])
        if lds:
            i.src = i.src + [("s", 124)]
            i.ldsdma = True
        i.wide = ("store" in op) and ("x3" in op or "x4" in op)
        if i.wide:
            i.data = R[0] if op.startswith("buffer_") else R[1]
    elif op.startswith("ds_"):
        i.kind = "ds"
        if op.startswith(("ds_read", "ds_bpermute", "ds_permute", "ds_swizzle")):
            i.dst = R[0]
            i.src = sum(R[1:], [])
        else:
            i.src = sum(R, [])
    elif op.startswith("s_"):
        i.kind = "salu"
        if op.startswith(("s_cmp", "s_cbranch", "s_branch", "s_waitcnt", "s_barrier", "s_nop", "s_endpgm",
                          "s_setprio", "s_sleep", "s_bitcmp")):
            i.src = sum(R, [])
        else:
            i.dst = R[0] if R else []
            i.src = sum(R[1:], [])
            if "saveexec" in op:
                i.dst = i.dst + [("s", 126), ("s", 127)]
    return i


def need(p, c):
    n = 0
    pd = set(p.dst)
    if p.kind == "valu":
        pv = {r for r in pd if r[0] in "va"}
        ps = {r for r in pd if r[0] == "s"}
        if c.kind == "mfma" and pv & set(c.src):
            n = max(n, 2)
        if c.kind == "valu":
            if p.op.startswith(TRANS) and not c.op.startswith(TRANS) and pv & set(c.src):
                n = max(n, 1)
            if p.op.startswith("v_dot") and pv & (set(c.src) | set(c.dst)):
                if not (c.op == p.op and not (pv & set(c.src[:len(c.src) - len(c.dst)]))):
                    n = max(n, 3)
            if c.op.startswith(("v_readfirstlane", "v_readlane")) and pv & set(c.src):
                n = max(n, 1)
            if c.op.startswith("v_permlane") and pv & set(c.src):
                n = max(n, 2)
            if ("dpp" in c.op or "row_" in c.mods or "quad_perm" in c.mods) and pv & set(c.src):
                n = max(n, 2)
            if ps & set(c.src):
                n = max(n, 4 if c.op.startswith(("v_readlane", "v_writelane")) else 2)
        if c.kind in ("vmem", "ds"):
            if ps & set(c.src):
                n = max(n, 5)
            if (p.op.startswith(TRANS)) and pv & set(c.src):
                n = max(n, 1)
            if p.op.startswith("v_dot") and pv & set(c.src):
                n = max(n, 3)
        if c.kind == "mfma" and p.op.startswith("v_dot") and pv & set(c.src):
            n = max(n, 3)
        if c.kind == "salu" and ps & set(c.src):
            n = max(n, 1)
    if p.kind == "mfma":
        big = {4: 8, 8: 12}[p.passes]
        if c.kind == "mfma":
            if pd & (set(c.A) | set(c.B)):
                n = max(n, big)
            if pd & set(c.C):
                if not (list(p.dst) == list(c.C) and p.passes == c.passes):
                    n = max(n, big - 2)
            elif pd & set(c.dst):
                n = max(n, big)
        elif c.kind in ("valu", "vmem", "ds"):
            if pd & (set(c.src) | set(c.dst)):
                n = max(n, big)
        if c.kind == "valu" and set(p.C) & set(c.dst):
            n = max(n, {4: 3, 8: 7}[p.passes])
    if p.kind == "vmem" and getattr(p, "wide", False):
        if set(p.data) & set(c.dst):
            n = max(n, 2 if c.kind in ("valu", "mfma") else 1)
    if p.kind == "salu" and ("s", 124) in pd and getattr(c, "ldsdma", False):
        n = max(n, 1)
    return n


def fix(lines):
    out = []
    hist = []
    for line in lines:
        for sub in line.split("\n"):
            c = parse(sub)
            if c is None:
                out.append(sub)
                continue
            req = 0
            for p, age in hist:
                r = need(p, c) - age
                if r > req:
                    req = r
            if req > 0:
                k = req
                while k > 0:
                    m = min(k, 8)
                    out.append("s_nop %d" % (m - 1))
                    k -= m
                hist = [[p, a + req] for p, a in hist]
            out.append(sub)
            w = 1
            if c.op == "s_nop":
                w = int(c.ops[0]) + 1
            hist = [[p, a + w] for p, a in hist if a + w < 24]
            hist.append([c, 0])
    return out
```

```python
import sys, struct
sys.path.insert(0, "tools")
import hz

OUT = sys.argv[1]
OPTS = set(sys.argv[2:])
FINE = "fine" in OPTS
NAME = "sequential_preLN__linear_attn_block__dense_activation_mish__prompt_kernel"

WS_PART = 0x000000
WS_O = 0x100000
WS_H = 0x400000
WS_ST = 0x600000
WS_FA, WS_FB, WS_FC, WS_FD = 0x700000, 0x720000, 0x740000, 0x760000
WS_ACT = 0x800000
WS_STAMP = 0x8000000

L_WQ = 0
L_RING = 65536
SLOT = 24576
L_SCR = 159744
L_WO = 65536
L_W1 = [131072, 0, 28672, 65536]
L_CS = 57344
L_STG = 94208
TIMEOUT = 1000000

LOG2E = 1.4426950408889634
LN2 = 0.6931471805599453


def f32(x):
    return "0x%08x" % struct.unpack("<I", struct.pack("<f", x))[0]


def opt(name, default):
    for o in OPTS:
        if o.startswith(name + "="):
            return int(o.split("=")[1])
    return default


class K:
    def __init__(self):
        self.L = []
        self.nv = 1
        self.maxv = 1
        self.stamps = []
        self.pend = 0

    def e(self, s):
        if isinstance(s, list):
            self.L += s
        else:
            self.L.append(s)

    def stamp(self, name=""):
        if not FINE:
            return
        assert self.pend < 16, name
        self.e("s_memrealtime s[%d:%d]" % (64 + 2 * self.pend, 65 + 2 * self.pend))
        self.stamps.append(name)
        self.pend += 1

    def flush(self):
        if not FINE or not self.pend:
            return
        self.e("s_waitcnt lgkmcnt(0)")
        base = len(self.stamps) - self.pend
        for n in range(self.pend):
            self.e("v_writelane_b32 v255, s%d, %d" % (64 + 2 * n, base + n))
        self.e("s_nop 3")
        self.pend = 0

    def alloc(self, n=1, align=1):
        if n >= 2 and align < 2:
            align = 2
        self.nv = (self.nv + align - 1) // align * align
        r = self.nv
        self.nv += n
        self.maxv = max(self.maxv, self.nv)
        assert self.nv <= (255 if FINE else 256), "out of VGPRs"
        return r


def resolve(lines):
    flat = []
    for l in lines:
        flat += l.split("\n")
    out = []
    vm, lg = [], []
    for l in flat:
        t = l.strip()
        if t.startswith("WAITVM") or t.startswith("WAITLG"):
            isvm = t.startswith("WAITVM")
            lst = vm if isvm else lg
            n = None
            for tag in t.split()[1:]:
                idx = max(i for i, x in enumerate(lst) if x == tag)
                c = len(lst) - 1 - idx
                n = c if n is None else min(n, c)
            n = min(n, 63 if isvm else 15)
            out.append("s_waitcnt %s(%d)" % ("vmcnt" if isvm else "lgkmcnt", n))
            continue
        tag = t.split(";@")[1].strip() if ";@" in t else "_"
        if t.startswith(("buffer_", "global_")):
            if tag != "cond":
                vm.append(tag)
        elif t.startswith("ds_"):
            lg.append(tag)
        out.append(l.split(";@")[0].rstrip())
    return out


def spread(main, fill, start=0, end=None):
    if end is None:
        end = len(main)
    n = end - start
    out = []
    fi = 0
    for i, m in enumerate(main):
        out.append(m)
        if start <= i < end:
            tgt = (len(fill) * (i - start + 1) + n - 1) // n
            while fi < tgt:
                out.append(fill[fi])
                fi += 1
    out += fill[fi:]
    return out


def interleave(main, fill, per=1, start=0):
    out = []
    fi = 0
    for i, m in enumerate(main):
        out.append(m)
        if i >= start:
            for _ in range(per):
                if fi < len(fill):
                    out.append(fill[fi])
                    fi += 1
    out += fill[fi:]
    return out


def vr(n, c=1):
    p = "v"
    if n >= 256:
        p = "a"
        n -= 256
    if c == 1:
        return "%s%d" % (p, n)
    return "%s[%d:%d]" % (p, n, n + c - 1)


def sr(n, c=1):
    return "s%d" % n if c == 1 else "s[%d:%d]" % (n, n + c - 1)


def mfma32(d, a, b, c=None):
    cs = vr(d, 4) if c is None else (c if isinstance(c, str) else vr(c, 4))
    return "v_mfma_f32_16x16x32_bf16 %s, %s, %s, %s" % (vr(d, 4), vr(a, 4), vr(b, 4), cs)


def mfma16(d, a, b, c):
    cs = c if isinstance(c, str) else vr(c, 4)
    return "v_mfma_f32_16x16x16_bf16 %s, %s, %s, %s" % (vr(d, 4), vr(a, 2), vr(b, 2), cs)


SX, SWQ, SWS, SDB, SWO, SW1, SW2, SB1, SOUT = 8, 12, 16, 20, 24, 28, 32, 36, 40
s_w, s_rb, s_cg, s_ph, s_t = 3, 4, 5, 6, 7
s_t2, s_ox, s_ow, s_m0x, s_m0w, s_xb, s_wb = 44, 45, 46, 47, 48, 49, 50
s_rb2, s_cb, s_g3, s_cb3 = 51, 52, 53, 54
s_a = [55, 56, 57, 58]
s_b = [59, 60, 61, 62]
s_to = 63
s_w1b, s_w2b = 45, 46
A0 = 256


def build():
    k = K()
    e = k.e
    e(".globl %s\n.p2align 8\n.type %s,@function\n%s:" % (NAME, NAME, NAME))
    e("s_cmp_ge_u32 s2, 256")
    e("s_cbranch_scc1 L_done")
    k.stamp("start")
    for base, off, size in ((SX, 0, 2048 * 1024), (SWQ, 8, 512 * 3072), (SWS, 72, 0x10000000), (SDB, 64, 256),
                            (SWO, 16, 512 * 1024), (SW1, 32, 512 * 3584), (SW2, 48, 1792 * 1024), (SB1, 40, 3584),
                            (SOUT, 56, 2048 * 1024)):
        e("s_load_dwordx2 %s, s[0:1], %d" % (sr(base, 2), off))
        e("s_mov_b32 s%d, 0x%x" % (base + 2, size))
        e("s_mov_b32 s%d, 0x20000" % (base + 3))
    t0, t1, t2, t3 = k.alloc(), k.alloc(), k.alloc(), k.alloc()
    l16, l128, vone, vP = k.alloc(), k.alloc(), k.alloc(), k.alloc()
    vxo = k.alloc()
    VD = k.alloc(4)
    TA = k.alloc(4)
    HB = k.alloc(8, 4)
    ones = k.alloc(4, 4)
    PERS = k.nv
    if FINE:
        e("v_mov_b32 v255, 0")
    if opt("pfcode", 1):
        e("s_getpc_b64 s[96:97]")
        e("L_pc:")
        e("v_lshlrev_b32 %s, 7, v0" % vr(t0))
        e("v_min_u32 %s, L_code_end-L_pc-4, %s" % (vr(vP), vr(t0)))
        e("global_load_dword %s, %s, s[96:97]" % (vr(vP), vr(vP)))
    e("s_bfe_u32 s%d, s2, 0x20001" % s_rb)
    e("s_lshl_b32 s%d, s%d, 3" % (s_rb, s_rb))
    e("s_bfe_u32 s%d, s2, 0x30003" % s_ph)
    e("s_add_u32 s%d, s%d, s%d" % (s_rb, s_rb, s_ph))
    e("s_and_b32 s%d, s2, 1" % s_cg)
    e("s_lshl_b32 s%d, s%d, 2" % (s_cg, s_cg))
    e("s_lshr_b32 s%d, s2, 6" % s_t2)
    e("s_add_u32 s%d, s%d, s%d" % (s_cg, s_cg, s_t2))
    e("s_lshl_b32 s%d, s%d, 1" % (s_t2, s_t2))
    e("s_add_u32 s%d, s%d, s%d" % (s_ph, s_ph, s_t2))
    vx0, vx1, vw0, vw1 = k.alloc(), k.alloc(), k.alloc(), k.alloc()
    e("v_lshrrev_b32 %s, 6, v0" % vr(t1))
    e("v_lshrrev_b32 %s, 3, v0" % vr(t0))
    e("v_readfirstlane_b32 s%d, %s" % (s_w, vr(t1)))
    e("v_lshl_add_u32 %s, %s, 3, %s" % (vr(t0), vr(t1), vr(t0)))
    e("v_bfe_u32 %s, v0, 4, 2" % vr(t1))
    e("v_and_b32 %s, 7, v0" % vr(t2))
    e("v_xor_b32 %s, %s, %s" % (vr(t1), vr(t1), vr(t2)))
    e("v_lshlrev_b32 %s, 4, %s" % (vr(t1), vr(t1)))
    e("v_lshl_add_u32 %s, %s, 10, %s" % (vr(vx0), vr(t0), vr(t1)))
    e("v_xor_b32 %s, 64, %s" % (vr(vx1), vr(vx0)))
    e("v_add_u32 %s, %d, %s" % (vr(vx1), 8192 - 1024, vr(vx1)))
    e("v_bfe_u32 %s, v0, 4, 1" % vr(t1))
    e("v_lshlrev_b32 %s, 1, %s" % (vr(t1), vr(t1)))
    e("v_xor_b32 %s, %s, %s" % (vr(t1), vr(t1), vr(t2)))
    e("v_lshlrev_b32 %s, 4, %s" % (vr(t1), vr(t1)))
    e("v_mul_u32_u24 %s, 3072, %s" % (vr(vw0), vr(t0)))
    e("v_add_u32 %s, %s, %s" % (vr(vw0), vr(vw0), vr(t1)))
    e("v_xor_b32 %s, 64, %s" % (vr(vw1), vr(vw0)))
    e("v_add_u32 %s, %d, %s" % (vr(vw1), 8 * 3072, vr(vw1)))
    e("v_and_b32 %s, 63, v0" % vr(l128))
    e("v_lshlrev_b32 %s, 4, %s" % (vr(l16), vr(l128)))
    e("v_lshlrev_b32 %s, 7, %s" % (vr(l128), vr(l128)))
    e("v_mov_b32 %s, 1" % vr(vone))
    e("s_lshl_b32 s%d, s%d, 16" % (s_xb, s_rb))
    e("s_lshl_b32 s%d, s%d, 7" % (s_wb, s_cg))
    e("s_lshl_b32 s%d, s%d, 11" % (s_m0x, s_w))
    e("s_lshl_b32 s%d, s%d, 12" % (s_m0w, s_w))
    e("s_add_u32 s%d, s%d, %d" % (s_m0w, s_m0w, L_RING + 8192))
    for r in range(4):
        e("v_mov_b32 %s, 0" % vr(ones + r))
    e("s_waitcnt lgkmcnt(0)")
    k.stamp("karg")
    s_zf = s_a[0]
    e("s_lshr_b32 s%d, s2, 6" % s_zf)
    e("s_xor_b32 s%d, s%d, 3" % (s_t, s_w))
    e("s_or_b32 s%d, s%d, s%d" % (s_zf, s_zf, s_t))
    e("s_cmp_lg_u32 s%d, 0" % s_zf)
    e("s_cbranch_scc1 L_nz")
    e("s_lshl_b32 s%d, s2, 13" % s_t)
    e("s_add_u32 s%d, s%d, 0x%x" % (s_t, s_t, WS_FA))
    e("s_add_u32 s%d, s%d, 4096" % (s_t2, s_t))
    for q in range(8):
        e("buffer_store_dwordx4 %s, %s, %s, s%d offen offset:%d sc1 ;@cond" % (vr(ones, 4), vr(l16), sr(SWS, 4), s_t if q < 4 else s_t2, (q & 3) * 1024))
    e("L_nz:")

    def chunk_pre(c):
        return ["s_add_u32 s%d, s%d, %d" % (s_t, s_ph, c),
                "s_and_b32 s%d, s%d, 7" % (s_t, s_t),
                "s_mul_i32 s%d, s%d, %d" % (s_ow, s_t, 64 * 3072),
                "s_add_u32 s%d, s%d, s%d" % (s_ow, s_ow, s_wb)]

    def dma(c):
        o = []
        slot = (c % 3) * SLOT
        tg = " ;@c%d" % c
        pre = "\n".join(chunk_pre(c) + [
            "s_lshl_b32 s%d, s%d, 7" % (s_ox, s_t),
            "s_add_u32 m0, s%d, %d" % (s_m0x, L_RING + slot),
            "s_add_u32 s%d, s%d, s%d" % (s_ox, s_ox, s_xb)]) + "\n"
        o.append(pre + "buffer_load_dwordx4 %s, %s, s%d offen lds" % (vr(vx0), sr(SX, 4), s_ox) + tg)
        o.append("buffer_load_dwordx4 %s, %s, s%d offen offset:1024 lds" % (vr(vx1), sr(SX, 4), s_ox) + tg)
        for uu, vw in enumerate((vw0, vw1)):
            pre = "s_add_u32 m0, s%d, %d\n" % (s_m0w, slot + uu * 2048 - 1024)
            for sg in range(2):
                o.append(pre + "buffer_load_dwordx4 %s, %s, s%d offen offset:%d lds" % (vr(vw), sr(SWQ, 4), s_ow, 1024 + sg * 1024) + tg)
                pre = ""
        return o

    def dmaq(c):
        o = []
        pre = "\n".join(chunk_pre(c)) + "\n"
        for uu, vw in enumerate((vw0, vw1)):
            pre += "s_add_u32 m0, s%d, %d\n" % (s_m0x, L_WQ + c * 8192 + uu * 1024)
            o.append(pre + "buffer_load_dwordx4 %s, %s, s%d offen lds ;@wq" % (vr(vw), sr(SWQ, 4), s_ow))
            pre = ""
        return o

    for c in range(2):
        e(dma(c))
    k.stamp("dma_issued")
    for r in range(4):
        e("v_mov_b32 %s, 0x3f803f80" % vr(ones + r))
    g, i15 = k.alloc(), k.alloc()
    xa = [[k.alloc(), k.alloc()] for _ in range(4)]
    wa = k.alloc()
    qa = k.alloc(4)
    e("v_bfe_u32 %s, v0, 4, 2" % vr(g))
    e("v_and_b32 %s, 15, v0" % vr(i15))
    e("v_lshrrev_b32 %s, 1, %s" % (vr(t0), vr(i15)))
    e("v_xor_b32 %s, %s, %s" % (vr(t0), vr(t0), vr(g)))
    e("v_lshlrev_b32 %s, 4, %s" % (vr(t0), vr(t0)))
    e("v_lshl_add_u32 %s, %s, 7, %s" % (vr(t0), vr(i15), vr(t0)))
    for u in range(4):
        e("s_add_u32 s%d, s%d, %d" % (s_t, s_w, u))
        e("s_and_b32 s%d, s%d, 3" % (s_t, s_t))
        e("s_lshl_b32 s%d, s%d, 11" % (s_t, s_t))
        e("s_add_u32 s%d, s%d, %d" % (s_t, s_t, L_RING))
        e("v_add_u32 %s, s%d, %s" % (vr(xa[u][0]), s_t, vr(t0)))
        e("v_xor_b32 %s, 64, %s" % (vr(xa[u][1]), vr(xa[u][0])))
    e("v_bfe_u32 %s, v0, 3, 2" % vr(t0))
    e("v_lshlrev_b32 %s, 5, %s" % (vr(t0), vr(t0)))
    e("v_and_b32 %s, 3, v0" % vr(t1))
    e("v_lshl_add_u32 %s, %s, 3, %s" % (vr(t0), vr(t1), vr(t0)))
    e("v_bfe_u32 %s, v0, 2, 2" % vr(t1))
    e("v_lshl_add_u32 %s, %s, 7, %s" % (vr(t0), vr(t1), vr(t0)))
    e("v_lshl_add_u32 %s, %s, 10, %s" % (vr(qa), vr(g), vr(t0)))
    for hh in range(1, 4):
        e("v_xor_b32 %s, %d, %s" % (vr(qa + hh), hh * 32, vr(qa)))
    e("v_lshl_add_u32 %s, %s, 11, %s" % (vr(wa), vr(g), vr(t0)))
    e("s_lshl_b32 s%d, s%d, 5" % (s_t, s_w))
    e("v_xor_b32 %s, s%d, %s" % (vr(wa), s_t, vr(wa)))
    e("v_add_u32 %s, %d, %s" % (vr(wa), L_RING + 8192, vr(wa)))
    e("v_lshl_add_u32 %s, %s, 9, %s" % (vr(TA), vr(g), vr(t0)))
    e("v_add_u32 %s, %d, %s" % (vr(TA), L_WO, vr(TA)))
    for nt in range(1, 4):
        e("v_xor_b32 %s, %d, %s" % (vr(TA + nt), nt * 32, vr(TA)))
    e("v_lshlrev_b32 %s, 1, %s" % (vr(t0), vr(g)))
    e("v_and_b32 %s, 7, v0" % vr(t1))
    e("v_xor_b32 %s, %s, %s" % (vr(t0), vr(t0), vr(t1)))
    e("v_lshlrev_b32 %s, 4, %s" % (vr(t0), vr(t0)))
    e("v_bfe_u32 %s, v0, 3, 3" % vr(t1))
    e("v_lshl_add_u32 %s, %s, 10, %s" % (vr(VD), vr(t1), vr(t0)))
    for i in range(1, 4):
        e("v_add_u32 %s, %d, %s" % (vr(VD + i), i * (8192 - 1024), vr(VD)))
    e("v_bfe_u32 %s, v0, 4, 1" % vr(t0))
    e("v_lshlrev_b32 %s, 5, %s" % (vr(t0), vr(t0)))
    e("v_bfe_u32 %s, v0, 5, 1" % vr(t1))
    e("v_lshl_add_u32 %s, %s, 4, %s" % (vr(t0), vr(t1), vr(t0)))
    e("v_lshl_add_u32 %s, %s, 10, %s" % (vr(vxo), vr(i15), vr(t0)))
    e("s_and_b32 s%d, s2, 7" % s_rb2)
    e("s_lshl_b32 s%d, s%d, 2" % (s_rb2, s_rb2))
    e("s_bfe_u32 s%d, s2, 0x20003" % s_t)
    e("s_add_u32 s%d, s%d, s%d" % (s_rb2, s_rb2, s_t))
    e("s_lshr_b32 s%d, s2, 5" % s_cb)
    e("s_bfe_u32 s%d, s2, 0x20001" % s_g3)
    e("s_lshl_b32 s%d, s%d, 2" % (s_g3, s_g3))
    e("s_add_u32 s%d, s%d, s%d" % (s_g3, s_g3, s_t))
    e("s_and_b32 s%d, s2, 1" % s_cb3)
    e("s_lshl_b32 s%d, s%d, 3" % (s_cb3, s_cb3))
    e("s_add_u32 s%d, s%d, s%d" % (s_cb3, s_cb3, s_cb))
    IDM = k.alloc(4, 4)
    e("v_bfe_u32 %s, v0, 4, 1" % vr(t0))
    e("v_lshlrev_b32 %s, 2, %s" % (vr(t0), vr(t0)))
    e("v_sub_u32 %s, %s, %s" % (vr(t0), vr(i15), vr(t0)))
    e("v_mov_b32 %s, 0x3f80" % vr(t1))
    e("v_mov_b32 %s, 0x3f800000" % vr(t2))
    for r, c in enumerate((0, 2, 8, 10)):
        e("v_cmp_eq_u32 vcc, %d, %s" % (c, vr(t0)))
        e("v_cndmask_b32 %s, 0, %s, vcc" % (vr(IDM + r), vr(t1)))
        e("v_cmp_eq_u32 vcc, %d, %s" % (c + 1, vr(t0)))
        e("v_cndmask_b32 %s, %s, %s, vcc" % (vr(IDM + r), vr(IDM + r), vr(t2)))
    vPA, vG, vGZ = k.alloc(), k.alloc(), k.alloc()
    e("v_bfe_u32 %s, v0, 4, 1" % vr(t0))
    e("v_lshlrev_b32 %s, 4, %s" % (vr(t0), vr(t0)))
    e("v_add_u32 %s, 512, %s" % (vr(t0), vr(t0)))
    e("v_min_u32 %s, %s, %s" % (vr(vPA), vr(t0), vr(l16)))
    e("v_bfe_u32 %s, v0, 5, 1" % vr(t1))
    e("v_mul_u32_u24 %s, 640 - 512, %s" % (vr(vG), vr(t1)))
    e("v_add_u32 %s, %s, %s" % (vr(vG), vr(vG), vr(l16)))
    e("v_lshl_add_u32 %s, %s, 4, %s" % (vr(t1), vr(t1), vr(i15)))
    e("v_mul_u32_u24 %s, 640, %s" % (vr(t1), vr(t1)))
    e("v_add_u32 %s, %s, %s" % (vr(vGZ), vr(t1), vr(t0)))
    V1 = k.alloc(7)
    e("s_movk_i32 s%d, 3584 - 224" % s_t)
    for m in range(7):
        e("v_add_u32 %s, %d, v0" % (vr(t0), 256 * m))
        e("v_mul_u32_u24 %s, 4682, %s" % (vr(t1), vr(t0)))
        e("v_lshrrev_b32 %s, 16, %s" % (vr(t1), vr(t1)))
        e("v_lshlrev_b32 %s, 4, %s" % (vr(t0), vr(t0)))
        e("v_mad_u32_u24 %s, %s, s%d, %s" % (vr(V1 + m), vr(t1), s_t, vr(t0)))
    e("v_and_b32 %s, 3, v0" % vr(t0))
    e("v_cmp_eq_u32 s[96:97], 1, %s" % vr(t0))
    e("v_cmp_eq_u32 s[98:99], 2, %s" % vr(t0))
    e("v_cmp_eq_u32 s[100:101], 3, %s" % vr(t0))
    cst = k.alloc(2, 2)
    ceps = k.alloc(4, 4)
    e("v_mov_b32 %s, %s" % (vr(cst), f32(LN2)))
    e("v_mov_b32 %s, %s" % (vr(cst + 1), f32(1.000001)))
    for r in range(4):
        e("v_mov_b32 %s, %s" % (vr(ceps + r), f32(1e-6)))
    vS0 = k.alloc()
    P1BASE = k.nv
    ak = k.alloc(16, 4)
    av = k.alloc(16, 4)
    cs = k.alloc(8, 4)
    stq, sts = k.alloc(4, 4), k.alloc(4, 4)
    FR = [dict(x=k.alloc(12, 4), w=k.alloc(8, 4)) for _ in range(2)]
    XS = A0

    def reads(it, ks, F):
        so = (it % 3) * SLOT
        n = 2 * it + ks
        o = []
        for sg in range(2):
            for hf in range(2):
                o.append("ds_read_b64_tr_b16 %s, %s offset:%d" % (vr(F["w"] + sg * 4 + hf * 2, 2), vr(wa), so + ks * 8192 + sg * 1024 + hf * 512))
            if sg == 0:
                o.append("ds_read_b128 %s, %s offset:%d" % (vr(XS + 4 * n, 4), vr(xa[0][ks]), so))
        for u in range(1, 4):
            o.append("ds_read_b128 %s, %s offset:%d" % (vr(F["x"] + 4 * (u - 1), 4), vr(xa[u][ks]), so))
        return o

    def mf(n, F):
        z = "0" if n == 0 else None
        xs = XS + 4 * n
        st = [mfma32(stq, xs, xs, z), mfma32(sts, ones, xs, z)]
        o = []
        if n == 15:
            o += st
        o.append(mfma32(cs + 0, ones, F["w"] + 0, z))
        o.append(mfma32(cs + 4, ones, F["w"] + 4, z))
        for u in range(4):
            x = xs if u == 0 else F["x"] + 4 * (u - 1)
            o.append(mfma32(ak + 4 * u, x, F["w"] + 0, z))
            o.append(mfma32(av + 4 * u, x, F["w"] + 4, z))
        if n != 15:
            o += st
        return o

    for it in range(8):
        e("WAITVM c%d" % it)
        e("s_barrier")
        if it in (0, 1, 4, 7):
            k.stamp("it%d" % it)
        r0 = reads(it, 0, FR[0])
        if it + 2 < 8:
            extra = dma(it + 2)
        else:
            extra = sum([dmaq(c) for c in range(4 * (it - 6), 4 * (it - 6) + 4)], [])
        if it == 0:
            e("s_cmp_lg_u32 s%d, 0" % s_zf)
            e("s_cbranch_scc1 L_nz2")
            e("s_lshl_b32 s%d, s2, 2" % s_t)
            e("s_mov_b64 exec, 1")
            e("buffer_store_dword %s, off, %s, s%d sc1 ;@cond" % (vr(vone), sr(SDB, 4), s_t))
            e("s_mov_b64 exec, -1")
            e("L_nz2:")
        if it == 6:
            e("v_lshrrev_b32 %s, 2, %s" % (vr(t3), vr(l16)))
            extra = ["buffer_load_dword %s, %s, %s, 0 offen sc1 ;@s0" % (vr(vS0), vr(t3), sr(SDB, 4))] + extra
        h = (len(extra) + 1) // 2
        if it == 0:
            e(r0 + extra[:h])
        else:
            e(r0[:3])
            e(spread(interleave(mf(2 * it - 1, FR[1]), r0[3:], per=2), extra[:h], start=6))
        r1 = reads(it, 1, FR[1])
        e(r1[:2])
        e("s_waitcnt lgkmcnt(2)")
        e(spread(interleave(mf(2 * it, FR[0]), r1[2:], per=1), extra[h:], start=6))
        e("s_waitcnt lgkmcnt(0)")
    k.stamp("loop_end")
    m = mf(15, FR[1])
    e(m[:7])
    e("v_cndmask_b32 %s, %s, %s, s[96:97]" % (vr(t0), vr(stq), vr(stq + 1)))
    e("v_cndmask_b32 %s, %s, %s, s[98:99]" % (vr(t0), vr(t0), vr(stq + 2)))
    e(m[7])
    e("v_cndmask_b32 %s, %s, %s, s[100:101]" % (vr(t0), vr(t0), vr(stq + 3)))
    e("v_mul_f32 %s, %s, %s" % (vr(t1), f32(-1.0 / 512), vr(sts)))
    e(m[8])
    e("v_mul_f32 %s, %s, %s" % (vr(t0), f32(1.0 / 512), vr(t0)))
    e("v_fma_f32 %s, -%s, %s, %s" % (vr(t0), vr(t1), vr(t1), vr(t0)))
    e(m[9])
    e("v_max_f32 %s, 0, %s" % (vr(t0), vr(t0)))
    e("v_add_f32 %s, %s, %s" % (vr(t0), f32(1e-5), vr(t0)))
    e(m[10])
    e("v_rsq_f32 %s, %s" % (vr(t0), vr(t0)))
    e("s_lshl_b32 s%d, s%d, 6" % (s_t, s_w))
    e("s_add_u32 s%d, s%d, %d" % (s_t, s_t, L_SCR))
    e("v_lshl_add_u32 %s, %s, 2, s%d" % (vr(t2), vr(i15), s_t))
    e("v_mul_f32 %s, %s, %s" % (vr(t0), f32(LOG2E), vr(t0)))
    e("s_mov_b32 exec_lo, 0x00f0000f")
    e("s_mov_b32 exec_hi, 0xf0000f00")
    e("ds_write2st64_b32 %s, %s, %s offset0:0 offset1:1" % (vr(t2), vr(t1), vr(t1)))
    e("ds_write2st64_b32 %s, %s, %s offset0:2 offset1:3" % (vr(t2), vr(t0), vr(t0)))
    e("s_mov_b64 exec, -1")
    e(m[11])
    e("v_lshl_add_u32 %s, %s, 4, s%d" % (vr(t3), vr(g), s_t))
    e("s_waitcnt lgkmcnt(0)")
    e("s_barrier")
    k.stamp("stat_bar")
    NM = k.alloc(16, 4)
    RL = k.alloc(16, 4)
    QN = k.alloc(2, 2)
    for u in range(4):
        e("ds_read_b128 %s, %s offset:%d" % (vr(NM + 4 * u, 4), vr(t3), u * 64))
        e("ds_read_b128 %s, %s offset:%d" % (vr(RL + 4 * u, 4), vr(t3), 512 + u * 64))
    e("ds_read2st64_b32 %s, %s offset0:0 offset1:2" % (vr(QN, 2), vr(t2)))
    PK = FR[0]["x"]
    PV = FR[0]["w"]
    tm = k.alloc(8, 2)

    def phi(a, dst, alt=0):
        E, U = tm + 4 * alt, tm + 4 * alt + 2
        e("v_exp_f32_e64 %s, %s clamp" % (vr(E), vr(a)))
        e("v_exp_f32_e64 %s, %s clamp" % (vr(E + 1), vr(a + 1)))
        e("v_pk_fma_f32 %s, %s, %s, %s op_sel:[0,0,1] op_sel_hi:[1,0,1]" % (vr(U, 2), vr(a, 2), vr(cst, 2), vr(cst, 2)))
        e("v_pk_add_f32 %s, %s, %s" % (vr(E, 2), vr(E, 2), vr(ceps, 2)))
        e("v_max_f32 %s, %s, %s" % (vr(U), vr(U), vr(E)))
        e("v_max_f32 %s, %s, %s" % (vr(U + 1), vr(U + 1), vr(E + 1)))
        e("v_cvt_pk_bf16_f32 %s, %s, %s" % (vr(dst), vr(U), vr(U + 1)))

    kv, zz = stq, sts
    s_hd = s_a[1]
    e("s_lshl_b32 s%d, s%d, 2" % (s_hd, s_cg))
    e("s_add_u32 s%d, s%d, s%d" % (s_hd, s_hd, s_w))
    e("s_lshl_b32 s%d, s%d, 5" % (s_t, s_hd))
    e("s_add_u32 s%d, s%d, s%d" % (s_t, s_t, s_rb))
    e("s_mul_i32 s%d, s%d, 640" % (s_ox, s_t))
    e("s_lshl_b32 s%d, s%d, 7" % (s_ow, s_t))
    e("s_add_u32 s%d, s%d, 0x%x" % (s_ow, s_ow, WS_FA))
    for u in range(4):
        e("s_waitcnt lgkmcnt(%d)" % (1 + 2 * (3 - u)))
        for hp in range(2):
            o = 4 * u + 2 * hp
            e("v_pk_fma_f32 %s, %s, %s, %s" % (vr(ak + o, 2), vr(NM + o, 2), vr(cs + 0, 2), vr(ak + o, 2)))
            e("v_pk_fma_f32 %s, %s, %s, %s" % (vr(av + o, 2), vr(NM + o, 2), vr(cs + 4, 2), vr(av + o, 2)))
            e("v_pk_mul_f32 %s, %s, %s" % (vr(ak + o, 2), vr(ak + o, 2), vr(RL + o, 2)))
            e("v_pk_mul_f32 %s, %s, %s" % (vr(av + o, 2), vr(av + o, 2), vr(RL + o, 2)))
            phi(ak + o, PK + 2 * u + hp, hp)
            e("v_cvt_pk_bf16_f32 %s, %s, %s" % (vr(PV + 2 * u + hp), vr(av + o), vr(av + o + 1)))
        if u == 1:
            e(mfma32(kv, PK, PV, "0"))
            e(mfma32(zz, PK, ones, "0"))
    e(mfma32(kv, PK + 4, PV + 4))
    e(mfma32(zz, PK + 4, ones))
    PR = NM
    e("v_cvt_pk_bf16_f32 %s, %s, %s" % (vr(PR), vr(kv), vr(kv + 1)))
    e("v_cvt_pk_bf16_f32 %s, %s, %s" % (vr(PR + 1), vr(kv + 2), vr(kv + 3)))
    e("v_cvt_pk_bf16_f32 %s, %s, %s" % (vr(PR + 2), vr(zz), vr(zz + 1)))
    e("v_cvt_pk_bf16_f32 %s, %s, %s" % (vr(PR + 3), vr(zz + 2), vr(zz + 3)))
    e("v_permlane32_swap_b32 %s, %s" % (vr(PR), vr(PR + 2)))
    e("v_permlane32_swap_b32 %s, %s" % (vr(PR + 1), vr(PR + 3)))
    e("s_mov_b32 exec_hi, 0x00010001")
    e("buffer_store_dwordx4 %s, %s, %s, s%d offen sc1 ;@part" % (vr(PR, 4), vr(vPA), sr(SWS, 4), s_ox))
    e("s_mov_b64 exec, -1")
    k.stamp("part_st")

    npoll = [0]

    def poll(voff, lanes, srd, soff, first=None):
        n = npoll[0]
        npoll[0] += 1
        if lanes < 64:
            e("s_mov_b64 exec, 0x%x" % ((1 << lanes) - 1) if lanes < 32 else "s_mov_b32 exec_hi, 0")
        e("s_mov_b32 s%d, %d" % (s_to, TIMEOUT))
        if first is not None:
            e("v_cmp_ne_u32 vcc, 1, %s" % vr(first))
            e("s_cbranch_vccz L_ok%d" % n)
        e("L_poll%d:" % n)
        e("buffer_load_dword %s, %s, %s, %s offen sc1 ;@cond" % (vr(vP), vr(voff), sr(srd, 4), soff))
        e("s_waitcnt vmcnt(0)")
        e("v_cmp_ne_u32 vcc, 1, %s" % vr(vP))
        e("s_cbranch_vccz L_ok%d" % n)
        e("s_sub_u32 s%d, s%d, 1" % (s_to, s_to))
        e("s_cbranch_scc0 L_poll%d" % n)
        e("L_ok%d:" % n)
        if lanes < 64:
            e("s_mov_b64 exec, -1")

    def flag(soff):
        e("s_waitcnt vmcnt(0)")
        e("s_mov_b64 exec, 1")
        e("buffer_store_dword %s, off, %s, s%d sc1" % (vr(vone), sr(SWS, 4), soff))
        e("s_mov_b64 exec, -1")

    e("WAITVM s0")
    e("v_lshrrev_b32 %s, 2, %s" % (vr(t3), vr(l16)))
    poll(t3, 64, SDB, "0", first=vS0)
    e("WAITVM wq")
    e("s_barrier")
    k.stamp("wq_bar")
    aq = ak
    csq = av
    QF = [RL, k.alloc(16, 4)]

    def qreads(n):
        return ["ds_read_b64_tr_b16 %s, %s offset:%d" % (vr(QF[n & 1] + 4 * hh + 2 * hf, 2), vr(qa + hh), n * 4096 + hf * 512)
                for hh in range(4) for hf in range(2)]

    def qmf(n):
        z = "0" if n == 0 else None
        o = []
        for hh in range(4):
            o.append(mfma32(aq + 4 * hh, QF[n & 1] + 4 * hh, XS + 4 * n, z))
            o.append(mfma32(csq + 4 * hh, QF[n & 1] + 4 * hh, ones, z))
        return o

    def wo_dma():
        o = []
        for q in range(4):
            pre = "s_add_u32 m0, s%d, %d\n" % (s_a[2], q * 4096)
            if q:
                pre += "s_add_u32 s%d, s%d, 32768\n" % (s_a[3], s_a[3])
            for i in range(4):
                o.append(pre + "buffer_load_dwordx4 %s, %s, s%d offen offset:%d lds ;@wo" % (vr(VD + i), sr(SWO, 4), s_a[3], i * 1024))
                pre = ""
        return o

    s_w1m = s_m0x

    def w1_dma(G):
        o = []
        pre = "s_add_u32 s%d, s%d, %d\n" % (s_t2, s_w1b, G * 128 * 3584)
        for m in range(7):
            pre += "s_add_u32 m0, s%d, %d\n" % (s_w1m, L_W1[G] + m * 4096)
            o.append(pre + "buffer_load_dwordx4 %s, %s, s%d offen lds ;@w1g%d" % (vr(V1 + m), sr(SW1, 4), s_t2, G))
            pre = ""
        return o

    FLA = opt("fla", 3)
    e("s_lshl_b32 s%d, s%d, 14" % (s_a[2], s_w))
    e("s_lshl_b32 s%d, s%d, 17" % (s_a[3], s_w))
    e("s_lshl_b32 s%d, s%d, 7" % (s_t, s_cb))
    e("s_add_u32 s%d, s%d, s%d" % (s_a[3], s_a[3], s_t))
    s_xo = s_xb
    e("s_lshl_b32 s%d, s%d, 16" % (s_xo, s_rb2))
    e("s_add_u32 s%d, s%d, s%d" % (s_xo, s_xo, s_a[2]))
    e("s_add_u32 s%d, s%d, s%d" % (s_xo, s_xo, s_t))
    e("s_add_u32 s%d, s%d, %d" % (s_a[2], s_a[2], L_WO))
    e("s_lshl_b32 s%d, s%d, 10" % (s_w1m, s_w))
    bg = wo_dma() + ["buffer_load_dwordx4 %s, %s, %s, s%d offen offset:%d ;@x" % (vr(HB + 4 * P, 4), vr(vxo), sr(SX, 4), s_xo, P * 64) for P in range(2)]
    bg += w1_dma(0)
    e(qreads(0))
    nb = 0
    for n in range(16):
        if n == FLA:
            flag(s_ow)
            k.stamp("flagA")
            e("s_mul_i32 s%d, s%d, 224" % (s_w1b, s_cb3))
        e("s_waitcnt lgkmcnt(0)")
        r = qreads(n + 1) if n < 15 else []
        fill = []
        if n >= FLA:
            tgt = min(len(bg), (n - FLA + 1) * opt("bgper", 3))
            if n == 15:
                tgt = len(bg)
            fill = bg[nb:tgt]
            nb = tgt
        e(spread(interleave(qmf(n), r, per=1), fill, start=2))
    k.stamp("q_mm")
    PQ = FR[1]["x"]
    for hh in range(4):
        for hp in range(2):
            o = 4 * hh + 2 * hp
            e("v_pk_fma_f32 %s, %s, %s, %s op_sel_hi:[1,0,1]" % (vr(aq + o, 2), vr(csq + o, 2), vr(QN, 2), vr(aq + o, 2)))
            e("v_pk_mul_f32 %s, %s, %s op_sel:[0,1] op_sel_hi:[1,1]" % (vr(aq + o, 2), vr(aq + o, 2), vr(QN, 2)))
            phi(aq + o, PQ + 2 * hh + hp, hp)
    k.stamp("q_epi")
    k.flush()
    e("s_lshl_b32 s%d, s%d, 12" % (s_t, s_hd))
    e("s_add_u32 s%d, s%d, 0x%x" % (s_t, s_t, WS_FA))
    poll(l128, 32, SWS, "s%d" % s_t)
    k.stamp("pollA")
    GR = A0 + 64
    e("s_mul_i32 s%d, s%d, %d" % (s_t, s_hd, 32 * 640))
    e("buffer_load_dwordx4 %s, %s, %s, s%d offen sc1 ;@gz" % (vr(GR + 64, 4), vr(vGZ), sr(SWS, 4), s_t))
    for i in range(16):
        e("buffer_load_dwordx4 %s, %s, %s, s%d offen offset:%d sc1 ;@g%d" % (vr(GR + 4 * i, 4), vr(vG), sr(SWS, 4), s_t, (i & 3) * 1280, i))
        if i & 3 == 3 and i < 15:
            e("s_add_u32 s%d, s%d, 5120" % (s_t, s_t))
    e("s_lshl_b32 s%d, s%d, 10" % (s_t, s_w))
    e("s_add_u32 s%d, s%d, %d" % (s_t, s_t, L_SCR))
    e("v_add_u32 %s, s%d, %s" % (vr(t2), s_t, vr(l16)))
    e("v_add_u32 %s, %d, %s" % (vr(t3), L_SCR, vr(l16)))
    e("s_lshl_b32 s%d, s%d, 2" % (s_t, s_rb))
    e("s_add_u32 s%d, s%d, s%d" % (s_t, s_t, s_w))
    e("s_lshl_b32 s%d, s%d, 3" % (s_t, s_t))
    e("s_add_u32 s%d, s%d, s%d" % (s_t, s_t, s_cg))
    e("s_lshl_b32 s%d, s%d, 11" % (s_b[0], s_t))
    e("s_add_u32 s%d, s%d, 0x%x" % (s_b[0], s_b[0], WS_O))
    e("s_lshl_b32 s%d, s%d, 7" % (s_b[1], s_t))
    e("s_add_u32 s%d, s%d, 0x%x" % (s_b[1], s_b[1], WS_FB))
    e("WAITVM gz")
    e(mfma32(zz, IDM, GR + 64, "0"))
    dpp = []
    for sh in (8, 4, 2, 1):
        for r in range(4):
            dpp.append("v_add_f32_dpp %s, %s, %s row_ror:%d row_mask:0xf bank_mask:0xf" % (vr(zz + r), vr(zz + r), vr(zz + r), sh))
    EX = NM
    dpp.append("v_cvt_pk_bf16_f32 %s, %s, %s" % (vr(EX + 2), vr(zz), vr(zz + 1)))
    dpp.append("v_cvt_pk_bf16_f32 %s, %s, %s" % (vr(EX + 3), vr(zz + 2), vr(zz + 3)))
    gm = ["WAITVM g%d\n" % i + mfma32(kv, IDM, GR + 4 * i, "0" if i == 0 else None) for i in range(16)]
    e(interleave(gm, dpp, per=2, start=3))
    e("v_pk_mul_f32 %s, %s, %s op_sel_hi:[1,0]" % (vr(kv, 2), vr(kv, 2), vr(cst, 2)))
    e("v_pk_mul_f32 %s, %s, %s op_sel_hi:[1,0]" % (vr(kv + 2, 2), vr(kv + 2, 2), vr(cst, 2)))
    e("v_cvt_pk_bf16_f32 %s, %s, %s" % (vr(EX), vr(kv), vr(kv + 1)))
    e("v_cvt_pk_bf16_f32 %s, %s, %s" % (vr(EX + 1), vr(kv + 2), vr(kv + 3)))
    e("ds_write_b128 %s, %s" % (vr(t2), vr(EX, 4)))
    k.stamp("gathA")
    e("s_waitcnt lgkmcnt(0)")
    e("s_barrier")
    EA = RL
    for hh in range(4):
        e("ds_read_b128 %s, %s offset:%d" % (vr(EA + 4 * hh, 4), vr(t3), hh * 1024))
    NUM, DEN = ak, av
    for hh in range(4):
        e("s_waitcnt lgkmcnt(%d)" % (3 - hh))
        e(mfma16(DEN + 4 * hh, EA + 4 * hh + 2, PQ + 2 * hh, ceps))
        e(mfma16(NUM + 4 * hh, EA + 4 * hh, PQ + 2 * hh, "0"))
    OB = NM + 8
    for hh in range(4):
        e("v_rcp_f32 %s, %s" % (vr(DEN + 4 * hh), vr(DEN + 4 * hh)))
    for hh in range(4):
        for hp in range(2):
            e("v_pk_mul_f32 %s, %s, %s op_sel_hi:[1,0]" % (vr(NUM + 4 * hh + 2 * hp, 2), vr(NUM + 4 * hh + 2 * hp, 2), vr(DEN + 4 * hh, 2)))
        for hp in range(2):
            e("v_cvt_pk_bf16_f32 %s, %s, %s" % (vr(OB + 2 * hh + hp), vr(NUM + 4 * hh + 2 * hp), vr(NUM + 4 * hh + 2 * hp + 1)))
        if hh & 1:
            e("buffer_store_dwordx4 %s, %s, %s, s%d offen offset:%d sc1" % (vr(OB + 2 * hh - 2, 4), vr(l16), sr(SWS, 4), s_b[0], (hh >> 1) * 1024))
    k.stamp("o_st")
    WF = A0
    wr = ["ds_read_b64_tr_b16 %s, %s offset:%d" % (vr(WF + 16 * ks + 4 * nt + 2 * hf, 2), vr(TA + nt), ks * 4096 + hf * 2048)
          for ks in range(16) for nt in range(4) for hf in range(2)]
    NW0 = opt("nw0", 64)
    e(wr[:NW0])
    flag(s_b[1])
    k.stamp("flagB")
    e(spread(wr[NW0:], w1_dma(1) + w1_dma(2)))
    k.nv = P1BASE
    XF = k.alloc(16, 4)
    for P in range(2):
        e("v_permlane16_swap_b32 %s, %s" % (vr(HB + 4 * P), vr(HB + 4 * P + 2)))
        e("v_permlane16_swap_b32 %s, %s" % (vr(HB + 4 * P + 1), vr(HB + 4 * P + 3)))
    for j in range(8):
        e("v_lshlrev_b32 %s, 16, %s" % (vr(XF + 2 * j), vr(HB + j)))
        e("v_and_b32 %s, 0xffff0000, %s" % (vr(XF + 2 * j + 1), vr(HB + j)))
    s_rt2 = s_a[0]
    e("s_lshl_b32 s%d, s%d, 2" % (s_rt2, s_rb2))
    e("s_add_u32 s%d, s%d, s%d" % (s_rt2, s_rt2, s_w))
    e("s_lshl_b32 s%d, s%d, 10" % (s_t, s_rt2))
    e("s_add_u32 s%d, s%d, 0x%x" % (s_t, s_t, WS_FB))
    e("s_lshl_b32 s%d, s%d, 14" % (s_b[0], s_rt2))
    e("s_add_u32 s%d, s%d, 0x%x" % (s_b[0], s_b[0], WS_O))
    e("s_waitcnt lgkmcnt(0)")
    e("s_barrier")
    k.stamp("wo_rd")
    poll(l128, 8, SWS, "s%d" % s_t)
    k.stamp("pollB")
    OF = k.alloc(64, 4)
    for ks in range(16):
        e("buffer_load_dwordx4 %s, %s, %s, s%d offen offset:%d sc1 ;@o%d" % (vr(OF + 4 * ks, 4), vr(l16), sr(SWS, 4), s_b[0], (ks & 3) * 1024, ks))
        if ks & 3 == 3 and ks < 15:
            e("s_add_u32 s%d, s%d, 4096" % (s_b[0], s_b[0]))
    e("s_lshl_b32 s%d, s%d, 3" % (s_t, s_rt2))
    e("s_add_u32 s%d, s%d, s%d" % (s_t, s_t, s_cb))
    e("s_lshl_b32 s%d, s%d, 11" % (s_b[0], s_t))
    e("s_add_u32 s%d, s%d, 0x%x" % (s_b[0], s_b[0], WS_H))
    e("s_lshl_b32 s%d, s%d, 7" % (s_t, s_t))
    e("s_add_u32 s%d, s%d, 0x%x" % (s_b[1], s_t, WS_ST))
    e("s_add_u32 s%d, s%d, 0x%x" % (s_b[2], s_t, WS_FC))
    e("v_lshrrev_b32 %s, 1, %s" % (vr(t3), vr(l16)))
    mm = []
    for ks in range(16):
        for nt in range(4):
            x = mfma32(XF + 4 * nt, WF + 16 * ks + 4 * nt, OF + 4 * ks)
            if nt == 0:
                x = "WAITVM o%d\n" % ks + x
            mm.append(x)
    e(spread(mm, w1_dma(3), start=opt("g3s", 8), end=opt("g3e", 40)))
    k.stamp("p2_mm")
    for j in range(8):
        e("v_cvt_pk_bf16_f32 %s, %s, %s" % (vr(HB + j), vr(XF + 2 * j), vr(XF + 2 * j + 1)))
        if j & 3 == 3:
            e("buffer_store_dwordx4 %s, %s, %s, s%d offen offset:%d sc1" % (vr(HB + j - 3, 4), vr(l16), sr(SWS, 4), s_b[0], (j >> 2) * 1024))
    SS = k.alloc(2, 2)
    e("v_dot2_f32_bf16 %s, %s, %s, 0" % (vr(SS), vr(HB), vr(ones)))
    e("v_dot2_f32_bf16 %s, %s, %s, 0" % (vr(SS + 1), vr(HB), vr(HB)))
    for j in range(1, 8):
        e("v_dot2_f32_bf16 %s, %s, %s, %s" % (vr(SS), vr(HB + j), vr(ones), vr(SS)))
        e("v_dot2_f32_bf16 %s, %s, %s, %s" % (vr(SS + 1), vr(HB + j), vr(HB + j), vr(SS + 1)))

    def xg_reduce(regs, tmp):
        for sw in ("v_permlane16_swap_b32", "v_permlane32_swap_b32"):
            for j, r in enumerate(regs):
                e("v_mov_b32 %s, %s" % (vr(tmp + j), vr(r)))
            for j, r in enumerate(regs):
                e("%s %s, %s" % (sw, vr(r), vr(tmp + j)))
            for j, r in enumerate(regs):
                e("v_add_f32 %s, %s, %s" % (vr(r), vr(r), vr(tmp + j)))
    xg_reduce([SS, SS + 1], t0)
    e("s_mov_b64 exec, 0xffff")
    e("buffer_store_dwordx2 %s, %s, %s, s%d offen sc1" % (vr(SS, 2), vr(t3), sr(SWS, 4), s_b[1]))
    e("s_mov_b64 exec, -1")
    k.stamp("h_st")
    k.nv = PERS
    va = k.alloc(3)
    vc = k.alloc(6)
    e("v_bfe_u32 %s, v0, 2, 4" % vr(t0))
    e("v_mul_u32_u24 %s, 224, %s" % (vr(t0), vr(t0)))
    e("v_and_b32 %s, 3, v0" % vr(t1))
    e("v_lshl_add_u32 %s, %s, 3, %s" % (vr(va), vr(t1), vr(t0)))
    for b in (1, 2):
        e("v_add_u32 %s, 0x%x, %s" % (vr(va + b), 65536 * b, vr(va)))
    e("s_lshl_b32 s%d, s%d, 5" % (s_t, s_w))
    e("s_add_u32 s%d, s%d, 128" % (s_t2, s_t))
    e("s_cmp_eq_u32 s%d, 3" % s_w)
    e("s_cselect_b32 s%d, s%d, s%d" % (s_t2, s_t, s_t2))
    for b in range(3):
        e("v_add_u32 %s, s%d, %s" % (vr(vc + 2 * b), s_t, vr(va + b)))
        e("v_add_u32 %s, s%d, %s" % (vr(vc + 2 * b + 1), s_t2, vr(va + b)))
    s_stg = s_m0w
    e("s_lshl_b32 s%d, s%d, 13" % (s_stg, s_w))
    e("s_add_u32 s%d, s%d, %d" % (s_stg, s_stg, L_STG))
    e("s_sub_u32 s%d, s%d, %d" % (s_t, s_stg, L_WO))
    for nt in range(4):
        e("v_add_u32 %s, s%d, %s" % (vr(TA + nt), s_t, vr(TA + nt)))
    e("s_mul_i32 s%d, s%d, %d" % (s_w2b, s_w, 448 * 1024))
    e("s_lshl_b32 s%d, s%d, 7" % (s_t, s_cb))
    e("s_add_u32 s%d, s%d, s%d" % (s_w2b, s_w2b, s_t))
    flag(s_b[2])
    k.stamp("flagC")
    k.flush()
    KS4 = []
    for ee in range(2):
        for c in (2 * ee, 2 * ee + 1):
            for a in range(3):
                KS4.append((7 * c + 2 * a, 7 * c + 2 * a + 1, ("r", c, a)))
        KS4.append((14 * ee + 6, 14 * ee + 13, ("s", ee)))
    s_r6 = s_a[1]

    def w2_dma(n):
        gA, gB, _ = KS4[n]
        if n < 10:
            pre = "s_add_u32 m0, s%d, %d\n" % (s_stg, (n & 1) * 4096)
        else:
            pre = "s_add_u32 m0, s%d, %d\n" % (s_r6, (n - 10) * 4096)
        o = []
        for i in range(4):
            if i == 0:
                pre += "s_add_u32 s%d, s%d, %d\n" % (s_t2, s_w2b, gA * 16384)
            if i == 2 and gB != gA + 1:
                pre += "s_add_u32 s%d, s%d, %d\n" % (s_t2, s_w2b, (gB - 1) * 16384)
            o.append(pre + "buffer_load_dwordx4 %s, %s, s%d offen offset:%d lds ;@w2_%d" % (vr(VD + i), sr(SW2, 4), s_t2, i * 1024, n))
            pre = ""
        return o

    W2R = {}
    for n in range(8):
        W2R[n] = A0 + 128 + 16 * n

    def w2_rd(n, addr=TA, off=None):
        if off is None:
            off = (n & 1) * 4096
        o = ["ds_read_b64_tr_b16 %s, %s offset:%d ;@r2_%d" % (vr(W2R[n] + 4 * nt + 2 * hf, 2), vr(addr + nt), off + hf * 2048, n)
             for nt in range(4) for hf in range(2)]
        o[0] = "WAITVM w2_%d\n" % n + o[0]
        return o

    BR = k.alloc(14, 2)
    e("v_bfe_u32 %s, v0, 4, 2" % vr(t2))
    e("v_lshlrev_b32 %s, 3, %s" % (vr(t2), vr(t2)))
    e(w2_dma(0) + w2_dma(1))
    for u in range(7):
        e("buffer_load_dwordx2 %s, %s, %s, s%d offen offset:%d ;@bias" % (vr(BR + 2 * u, 2), vr(t2), sr(SB1, 4), s_w1b, 32 * u))
    e("s_barrier")
    ACC = k.alloc(56, 4)
    WB = [k.alloc(28, 4) for _ in range(2)]
    CF = k.alloc(28, 4)
    BF = k.alloc(28, 4)
    CS = ACC

    def w1pos(t):
        p = L_W1[t >> 2] + (t & 3) * 7168
        return p >> 16, p & 0xffff

    CB = WB[0]
    cr = []
    for t in range(16):
        b, off = w1pos(t)
        cr.append([("ds_read_b64_tr_b16 %s, %s offset:%d ;@cs%d" % (vr(CB + 8 * (t % 6) + 4 * c + 2 * hf, 2), vr(vc + 2 * b + c), off + hf * 3584, t))
                   for c in range(2) for hf in range(2)])
    for t in range(3):
        e(cr[t])
    for t in range(16):
        e("WAITLG cs%d" % t)
        z = "0" if t == 0 else None
        e(mfma32(CS, CB + 8 * (t % 6), ones, z))
        if t + 3 < 16:
            e(cr[t + 3][:2])
        e(mfma32(CS + 4, CB + 8 * (t % 6) + 4, ones, z))
        if t + 3 < 16:
            e(cr[t + 3][2:])
    e("v_lshlrev_b32 %s, 1, %s" % (vr(t3), vr(t2)))
    e("v_add_u32 %s, %d, %s" % (vr(t3), L_CS, vr(t3)))
    e("s_lshl_b32 s%d, s%d, 6" % (s_t, s_w))
    e("v_add_u32 %s, s%d, %s" % (vr(t2), s_t, vr(t3)))
    e(w2_rd(0))
    e("ds_write_b128 %s, %s" % (vr(t2), vr(CS, 4)))
    e("ds_write_b128 %s, %s offset:256" % (vr(t2), vr(CS + 4, 4)))
    e(w2_rd(1))
    cl = k.alloc(2, 2)
    e("v_mov_b32 %s, %s" % (vr(cl), f32(LOG2E)))
    e("WAITVM bias")
    for j in range(14):
        e("v_lshlrev_b32 %s, 16, %s" % (vr(BF + 2 * j), vr(BR + j)))
        e("v_and_b32 %s, 0xffff0000, %s" % (vr(BF + 2 * j + 1), vr(BR + j)))
        e("v_pk_mul_f32 %s, %s, %s op_sel_hi:[1,0]" % (vr(BF + 2 * j, 2), vr(BF + 2 * j, 2), vr(cl, 2)))
    e("s_waitcnt lgkmcnt(0)")
    e("s_barrier")
    for u in range(7):
        e("ds_read_b128 %s, %s offset:%d" % (vr(CF + 4 * u, 4), vr(t3), u * 64))
    s_rt3 = s_a[0]
    e("s_lshl_b32 s%d, s%d, 2" % (s_rt3, s_g3))
    e("s_add_u32 s%d, s%d, s%d" % (s_rt3, s_rt3, s_w))
    e("s_lshl_b32 s%d, s%d, 11" % (s_t, s_rt3))
    e("s_add_u32 s%d, s%d, 0x%x" % (s_b[2], s_t, WS_ST))
    e("s_add_u32 s%d, s%d, 0x%x" % (s_t, s_t, WS_FC))
    e("s_lshl_b32 s%d, s%d, 15" % (s_b[0], s_rt3))
    e("s_add_u32 s%d, s%d, 0x%x" % (s_b[0], s_b[0], WS_H))
    e("s_add_u32 s%d, s%d, 16384" % (s_b[1], s_b[0]))
    vst = k.alloc()
    e("v_and_b32 %s, 15, v0" % vr(t0))
    e("v_bfe_u32 %s, v0, 4, 2" % vr(t1))
    e("v_lshlrev_b32 %s, 8, %s" % (vr(t1), vr(t1)))
    e("v_lshl_add_u32 %s, %s, 3, %s" % (vr(vst), vr(t0), vr(t1)))

    def w1reads(t):
        b, off = w1pos(t)
        return ["ds_read_b64_tr_b16 %s, %s offset:%d" % (vr(WB[t & 1] + 4 * u + 2 * hf, 2), vr(va + b), off + 32 * u + hf * 3584)
                for u in range(7) for hf in range(2)]
    e(w1reads(0))
    k.stamp("cs_done")
    poll(l128, 16, SWS, "s%d" % s_t)
    k.stamp("pollC")
    HF = A0
    STR = k.alloc(8, 4)

    def hload(t):
        o = []
        for rt in range(2):
            x = "buffer_load_dwordx4 %s, %s, %s, s%d offen offset:%d sc1 ;@h%d" % (vr(HF + 8 * t + 4 * rt, 4), vr(l16), sr(SWS, 4), s_b[rt], (t & 3) * 1024, t)
            if t & 3 == 3 and t < 15:
                x += "\ns_add_u32 s%d, s%d, 4096" % (s_b[rt], s_b[rt])
            o.append(x)
        return o
    DP = opt("p3d", 6)
    for t in range(DP):
        e(hload(t))
    stl = ["buffer_load_dwordx2 %s, %s, %s, s%d offen offset:%d sc1 ;@st" % (vr(STR + 4 * rt + 2 * i, 2), vr(vst), sr(SWS, 4), s_b[2], rt * 1024 + i * 128)
           for rt in range(2) for i in range(2)]
    first = 16 - DP
    for t in range(16):
        e("WAITVM h%d" % t)
        e("s_waitcnt lgkmcnt(0)")
        if t in (0, 1, 8, 15):
            k.stamp("t%d" % t)
        z = "0" if t == 0 else None
        mm = [mfma32(ACC + 8 * u + 4 * rt, WB[t & 1] + 4 * u, HF + 8 * t + 4 * rt, z) for u in range(7) for rt in range(2)]
        r = w1reads(t + 1) if t < 15 else []
        extra = []
        if t + DP < 16:
            extra = hload(t + DP)
        elif t == first:
            extra = stl + w2_dma(2)
        elif t == first + 1:
            extra = w2_dma(3)
        e(spread(interleave(mm, r, per=1), extra, start=2))
    k.stamp("p3_mm")
    e("WAITVM st")
    for rt in range(2):
        e("v_pk_add_f32 %s, %s, %s" % (vr(STR + 4 * rt, 2), vr(STR + 4 * rt, 2), vr(STR + 4 * rt + 2, 2)))
    tmp4 = k.alloc(4)
    xg_reduce([STR, STR + 1, STR + 4, STR + 5], tmp4)
    for rt in range(2):
        a, b = STR + 4 * rt, STR + 4 * rt + 1
        e("v_mul_f32 %s, %s, %s" % (vr(a), f32(-1.0 / 512), vr(a)))
        e("v_mul_f32 %s, %s, %s" % (vr(b), f32(1.0 / 512), vr(b)))
        e("v_fma_f32 %s, -%s, %s, %s" % (vr(b), vr(a), vr(a), vr(b)))
        e("v_max_f32 %s, 0, %s" % (vr(b), vr(b)))
        e("v_add_f32 %s, %s, %s" % (vr(b), f32(1e-5), vr(b)))
        e("v_rsq_f32 %s, %s" % (vr(b), vr(b)))
        e("v_mul_f32 %s, %s, %s" % (vr(b), f32(LOG2E), vr(b)))
        e("v_mul_f32 %s, %s, %s" % (vr(a), vr(a), vr(b)))
    e("s_lshl_b32 s%d, s%d, 4" % (s_t, s_rt3))
    e("s_add_u32 s%d, s%d, s%d" % (s_t, s_t, s_cb3))
    e("s_mul_i32 s%d, s%d, 7168" % (s_b[0], s_t))
    e("s_add_u32 s%d, s%d, 0x%x" % (s_b[0], s_b[0], WS_ACT))
    e("s_add_u32 s%d, s%d, 3072" % (s_b[1], s_b[0]))
    e("s_lshl_b32 s%d, s%d, 7" % (s_b[2], s_t))
    e("s_add_u32 s%d, s%d, 0x%x" % (s_b[2], s_b[2], WS_FD))
    e("s_lshl_b32 s%d, s%d, 14" % (s_r6, s_w))
    e("s_barrier")
    tm = k.alloc(8, 2)
    OB = WB[0]

    def mish(u, rt, ob):
        S2 = STR + 4 * rt
        o = []
        for hp in range(2):
            a = ACC + 8 * u + 4 * rt + 2 * hp
            C, E = tm + 4 * hp, tm + 4 * hp + 2
            o.append("v_pk_fma_f32 %s, %s, %s, %s op_sel_hi:[1,0,1]" % (vr(C, 2), vr(CF + 4 * u + 2 * hp, 2), vr(S2, 2), vr(BF + 4 * u + 2 * hp, 2)))
            o.append("v_pk_fma_f32 %s, %s, %s, %s op_sel:[0,1,0] op_sel_hi:[1,1,1]" % (vr(a, 2), vr(a, 2), vr(S2, 2), vr(C, 2)))
            o.append("v_exp_f32 %s, %s" % (vr(E), vr(a)))
            o.append("v_exp_f32 %s, %s" % (vr(E + 1), vr(a + 1)))
        for hp in range(2):
            C, E = tm + 4 * hp, tm + 4 * hp + 2
            o.append("v_pk_fma_f32 %s, %s, -0.5, -1.0 op_sel_hi:[1,0,0]" % (vr(C, 2), vr(E, 2)))
            o.append("v_pk_fma_f32 %s, %s, %s, -1.0 op_sel_hi:[1,1,0]" % (vr(C, 2), vr(E, 2), vr(C, 2)))
            o.append("v_rcp_f32 %s, %s" % (vr(C), vr(C)))
            o.append("v_rcp_f32 %s, %s" % (vr(C + 1), vr(C + 1)))
        for hp in range(2):
            a = ACC + 8 * u + 4 * rt + 2 * hp
            C = tm + 4 * hp
            o.append("v_pk_fma_f32 %s, %s, %s, %s" % (vr(a, 2), vr(C, 2), vr(a, 2), vr(a, 2)))
            o.append("v_cvt_pk_bf16_f32 %s, %s, %s" % (vr(ob + hp), vr(a), vr(a + 1)))
        return o

    pieces = [(rt, a) for rt in range(2) for a in range(3)] + [None]
    nxt = 2
    for pi, pc in enumerate(pieces):
        ob = OB + 4 * pi
        if pc is None:
            body = mish(6, 0, ob) + mish(6, 1, ob + 2)
            st = "buffer_store_dwordx4 %s, %s, %s, s%d offen offset:3072 sc1" % (vr(ob, 4), vr(l16), sr(SWS, 4), s_b[1])
        else:
            rt, a = pc
            body = mish(2 * a, rt, ob) + mish(2 * a + 1, rt, ob + 2)
            st = "buffer_store_dwordx4 %s, %s, %s, s%d offen offset:%d sc1" % (vr(ob, 4), vr(l16), sr(SWS, 4), s_b[rt], a * 1024)
        if pi < opt("epistg", 4):
            rd = w2_rd(nxt)
            dm = w2_dma(nxt + 2)
            dm[0] = "WAITLG r2_%d\n" % nxt + dm[0]
            body = spread(body, rd, start=0, end=10)
            body = spread(body, dm, start=30, end=len(body))
            nxt += 1
        e(body)
        e(st)
    k.stamp("act_st")
    flag(s_b[2])
    k.stamp("flagD")
    k.flush()
    k.nv = PERS
    for n in range(8, 14):
        W2R[n] = k.alloc(16, 4)
    AC4 = k.alloc(64, 4)
    SG = k.alloc(32, 4)
    VA = k.alloc(4)
    VS = k.alloc(2)
    vrw = k.alloc(3)
    vrr = k.alloc()
    T6 = k.alloc(4)
    for n in range(10, 14):
        e(w2_dma(n))
    while nxt < 10:
        e(w2_rd(nxt))
        if nxt + 2 < 10:
            e("WAITLG r2_%d" % nxt)
            e(w2_dma(nxt + 2))
        nxt += 1
    e("s_sub_u32 s%d, s%d, s%d" % (s_t, s_r6, s_stg))
    for nt in range(4):
        e("v_add_u32 %s, s%d, %s" % (vr(T6 + nt), s_t, vr(TA + nt)))

    def redaddr(dst, extra):
        e("s_mul_i32 s%d, s%d, 12288" % (s_t, s_t2))
        e("s_cmp_ge_u32 s%d, 2" % s_t2)
        e("s_cselect_b32 s%d, 36864, 0" % s_to)
        e("s_add_u32 s%d, s%d, s%d" % (s_t, s_t, s_to))
        e("s_add_u32 s%d, s%d, %d" % (s_t, s_t, 65536 + extra))
        e("v_add_u32 %s, s%d, %s" % (vr(dst), s_t, vr(l16)))
    for v in range(4):
        e("s_xor_b32 s%d, s%d, %d" % (s_t2, s_w, v))
        redaddr(vrr if v == 0 else vrw + v - 1, 0 if v == 0 else (v - 1) * 4096)
        e("s_lshr_b32 s%d, s%d, 1" % (s_t, s_t2))
        e("s_mul_i32 s%d, s%d, %d" % (s_t, s_t, 16 * 7168))
        if v & 1 == 0:
            e("s_add_u32 s%d, s%d, 6144" % (s_to, s_t))
            e("v_add_u32 %s, s%d, %s" % (vr(VS + (v >> 1)), s_to, vr(l16)))
        e("s_and_b32 s%d, s%d, 1" % (s_t2, s_t2))
        e("s_mul_i32 s%d, s%d, 3072" % (s_t2, s_t2))
        e("s_add_u32 s%d, s%d, s%d" % (s_t, s_t, s_t2))
        e("v_add_u32 %s, s%d, %s" % (vr(VA + v), s_t, vr(l16)))
    e("s_lshl_b32 s%d, s%d, 3" % (s_t, s_rb2))
    e("s_add_u32 s%d, s%d, s%d" % (s_t, s_t, s_w))
    e("s_lshl_b32 s%d, s%d, 2" % (s_t, s_t))
    e("s_mul_i32 s%d, s%d, 7168" % (s_a[0], s_t))
    e("s_add_u32 s%d, s%d, 0x%x" % (s_a[0], s_a[0], WS_ACT))
    for c in range(1, 4):
        e("s_add_u32 s%d, s%d, %d" % (s_a[c], s_a[0], 7168 * c))
    e("s_bitcmp1_b32 s%d, 0" % s_w)
    for c in range(4):
        e("s_cselect_b32 s%d, s%d, s%d" % (s_b[c], s_a[c ^ 1], s_a[c]))
    e("s_lshl_b32 s%d, s%d, 7" % (s_t, s_t))
    e("s_add_u32 s%d, s%d, 0x%x" % (s_t, s_t, WS_FD))
    e("v_bfe_u32 %s, v0, 2, 1" % vr(t0))
    e("v_lshlrev_b32 %s, 11, %s" % (vr(t0), vr(t0)))
    e("v_and_b32 %s, 3, v0" % vr(t1))
    e("v_lshl_add_u32 %s, %s, 7, %s" % (vr(t0), vr(t1), vr(t0)))
    for n in range(10, 14):
        e(w2_rd(n, T6, (n - 10) * 4096))
    k.stamp("w2_in")
    poll(t0, 8, SWS, "s%d" % s_t)
    k.stamp("pollD")
    ring = [0]
    AF = {}
    loads = []
    steps = []
    for n, (gA, gB, kind) in enumerate(KS4):
        if kind[0] == "r":
            _, c, a = kind
            for v in (1, 2, 3):
                AF[(n, v)] = A0 + 4 * (ring[0] % 32)
                ring[0] += 1
                loads.append("buffer_load_dwordx4 %s, %s, %s, s%d offen offset:%d sc1 ;@x%d" % (vr(AF[(n, v)], 4), vr(VA + v), sr(SWS, 4), s_a[c], a * 1024, n))
        else:
            ee = kind[1]
            for pp in range(2):
                for ab in range(2):
                    AF[(n, 2 * pp + ab)] = SG + 16 * ee + 8 * pp + 4 * ab
                    loads.append("buffer_load_dwordx4 %s, %s, %s, s%d offen sc1 ;@x%d" % (vr(AF[(n, 2 * pp + ab)], 4), vr(VS + pp), sr(SWS, 4), s_b[2 * ee + ab], n))
    nX = len(loads)
    for n, (gA, gB, kind) in enumerate(KS4):
        if kind[0] == "r":
            _, c, a = kind
            AF[(n, 0)] = A0 + 4 * (ring[0] % 32)
            ring[0] += 1
            loads.append("buffer_load_dwordx4 %s, %s, %s, s%d offen offset:%d sc1 ;@y%d" % (vr(AF[(n, 0)], 4), vr(VA), sr(SWS, 4), s_a[c], a * 1024, n))
    N0 = opt("p4n0", 20)
    assert N0 <= 28
    e(loads[:N0])
    li = N0
    e("s_waitcnt lgkmcnt(0)")
    for n, (gA, gB, kind) in enumerate(KS4):
        e("WAITVM x%d" % n)
        if n in (0, 1, 7, 13):
            k.stamp("x%d" % n)
        if kind[0] == "s":
            ee = kind[1]
            e("s_bitcmp1_b32 s%d, 0" % s_w)
            e("s_cbranch_scc1 L_odd%d" % ee)
            for pp in range(2):
                A = SG + 16 * ee + 8 * pp
                e("v_swap_b32 %s, %s" % (vr(A + 2), vr(A + 4)))
                e("v_swap_b32 %s, %s" % (vr(A + 3), vr(A + 5)))
            e("s_branch L_sw%d" % ee)
            e("L_odd%d:" % ee)
            for pp in range(2):
                A = SG + 16 * ee + 8 * pp
                e("v_swap_b32 %s, %s" % (vr(A + 0), vr(A + 6)))
                e("v_swap_b32 %s, %s" % (vr(A + 1), vr(A + 7)))
            e("L_sw%d:" % ee)
            e("s_nop 1")
        z = "0" if n == 0 else None
        vs = (1, 2, 3) if kind[0] == "r" else (1, 2, 3, 0)
        mm = []
        for v in vs:
            zz_ = z
            if v == 0:
                zz_ = "0" if kind[1] == 0 else None
            mm += [mfma32(AC4 + 16 * v + 4 * nt, W2R[n] + 4 * nt, AF[(n, v)], zz_) for nt in range(4)]
        cnt = 3 if kind[0] == "r" else 4
        extra = loads[li:li + cnt]
        li += len(extra)
        e(spread(mm, extra, start=1))
    e(loads[li:])
    k.stamp("x_done")
    wl = ["ds_write_b128 %s, %s offset:%d" % (vr(vrw + v - 1), vr(AC4 + 16 * v + 4 * nt, 4), nt * 1024) for v in (1, 2, 3) for nt in range(4)]
    ysteps = [n for n, ks in enumerate(KS4) if ks[2][0] == "r"]
    XF = SG
    cl = SG + 16
    unp = ["v_mov_b32 %s, %s" % (vr(cl), f32(LN2))]
    for j in range(8):
        unp.append("v_lshlrev_b32 %s, 16, %s" % (vr(XF + 2 * j), vr(HB + j)))
        unp.append("v_and_b32 %s, 0xffff0000, %s" % (vr(XF + 2 * j + 1), vr(HB + j)))
    YB = opt("yb", 6)
    ym = []
    for n in ysteps:
        mm = [mfma32(AC4 + 4 * nt, W2R[n] + 4 * nt, AF[(n, 0)]) for nt in range(4)]
        mm[0] = "WAITVM y%d\n" % n + mm[0]
        ym.append(mm)
    e(spread(sum(ym[:YB], []), wl + unp, start=2))
    e("s_waitcnt lgkmcnt(0)")
    e("s_barrier")
    k.stamp("red_bar")
    rl = ["ds_read_b128 %s, %s offset:%d ;@p%d" % (vr(AC4 + 16 + 16 * sl + 4 * nt, 4), vr(vrr), sl * 4096 + nt * 1024, sl) for sl in range(3) for nt in range(4)]
    ad = []
    for sl in range(3):
        for j in range(16):
            x = "v_fma_f32 %s, %s, %s, %s" % (vr(XF + j), vr(AC4 + 16 + 16 * sl + j), vr(cl), vr(XF + j))
            if j == 0:
                x = "WAITLG p%d\n" % sl + x
            ad.append(x)
    rest = sum(ym[YB:], [])
    e(rl)
    e(spread(rest, ad, start=3))
    k.stamp("y_done")
    for j in range(8):
        e("v_pk_fma_f32 %s, %s, %s, %s op_sel_hi:[1,0,1]" % (vr(XF + 2 * j, 2), vr(AC4 + 2 * j, 2), vr(cl, 2), vr(XF + 2 * j, 2)))
        e("v_cvt_pk_bf16_f32 %s, %s, %s" % (vr(HB + j), vr(XF + 2 * j), vr(XF + 2 * j + 1)))
        if j & 3 == 3:
            P = j >> 2
            e("v_permlane16_swap_b32 %s, %s" % (vr(HB + 4 * P), vr(HB + 4 * P + 2)))
            e("v_permlane16_swap_b32 %s, %s" % (vr(HB + 4 * P + 1), vr(HB + 4 * P + 3)))
            e("buffer_store_dwordx4 %s, %s, %s, s%d offen offset:%d" % (vr(HB + 4 * P, 4), vr(vxo), sr(SOUT, 4), s_xo, P * 64))
    if FINE:
        k.stamp("issued")
        e("s_waitcnt vmcnt(0)")
        k.stamp("drained")
        k.flush()
        e("v_lshlrev_b32 %s, 2, v0" % vr(t0))
        e("s_lshl_b32 s%d, s2, 10" % s_t)
        e("s_add_u32 s%d, s%d, 0x%x" % (s_t, s_t, WS_STAMP))
        e("buffer_store_dword v255, %s, %s, s%d offen" % (vr(t0), sr(SWS, 4), s_t))
        open("stamps.txt", "w").write(" ".join(k.stamps))
    e("L_done:\ns_endpgm")
    return k


def main():
    k = build()
    L = []
    L.append("; @launch grid=(256,1,1) block=(256,1,1) lds=163840")
    L.append('.amdgcn_target "amdgcn-amd-amdhsa--gfx950"')
    L.append(".text")
    L += hz.fix(resolve(k.L))
    L.append("L_code_end:")
    L.append('.section .rodata,"a"')
    L.append(".p2align 6\n.amdhsa_kernel %s" % NAME)
    L.append("  .amdhsa_next_free_vgpr 512\n  .amdhsa_next_free_sgpr 102\n  .amdhsa_accum_offset 256")
    L.append("  .amdhsa_group_segment_fixed_size 0\n  .amdhsa_kernarg_size 80\n  .amdhsa_user_sgpr_count 2\n"
             "  .amdhsa_user_sgpr_kernarg_segment_ptr 1\n  .amdhsa_system_sgpr_workgroup_id_x 1\n.end_amdhsa_kernel")
    print("max vgpr", k.maxv, "lines", len(L))
    open(OUT, "w").write("\n".join(L) + "\n")


main()
```

```python
import sys, struct
sys.path.insert(0, "tools")
import hz

OUT = sys.argv[1]
OPTS = set(sys.argv[2:])
FINE = "fine" in OPTS
NAME = "sequential_preLN__linear_attn_block__dense_activation_mish__prompt_kernel"

WS_PART = 0x000000
WS_O = 0x100000
WS_H = 0x400000
WS_ST = 0x600000
WS_FA, WS_FC, WS_FD = 0x700000, 0x740000, 0x760000
WS_ACT = 0x800000
WS_STAMP = 0x8000000

L_RING = 65536
SLOT = 24576
L_SCR = 159744
L_WO = 65536
L_W1 = [131072, 0, 32768, 65536]
L_CS = 61440
TIMEOUT = 1000000
NSTAMP = 12

LOG2E = 1.4426950408889634
LN2 = 0.6931471805599453


def f32(x):
    return "0x%08x" % struct.unpack("<I", struct.pack("<f", x))[0]


def opt(name, default):
    for o in OPTS:
        if o.startswith(name + "="):
            return int(o.split("=")[1])
    return default


class K:
    def __init__(self):
        self.L = []
        self.nv = 1
        self.maxv = 1
        self.stamps = []
        self.pend = 0

    def e(self, s):
        if isinstance(s, (list, tuple)):
            for x in s:
                self.e(x)
        elif s:
            self.L.append(s)

    def stamp_text(self, name):
        if not FINE:
            return ""
        assert self.pend < NSTAMP, name
        t = "%s s[%d:%d]" % ("s_memtime" if "clk" in OPTS else "s_memrealtime", 72 + 2 * self.pend, 73 + 2 * self.pend)
        self.stamps.append(name)
        self.pend += 1
        return t

    def stamp(self, name=""):
        self.e(self.stamp_text(name))

    def flush(self):
        if not FINE or not self.pend:
            return
        self.e("s_waitcnt lgkmcnt(0)")
        base = len(self.stamps) - self.pend
        for n in range(self.pend):
            self.e("v_writelane_b32 v255, s%d, %d" % (72 + 2 * n, base + n))
        self.e("s_nop 3")
        self.pend = 0

    def alloc(self, n=1, align=1):
        if n >= 2 and align < 2:
            align = 2
        self.nv = (self.nv + align - 1) // align * align
        r = self.nv
        self.nv += n
        self.maxv = max(self.maxv, self.nv)
        assert self.nv <= (255 if FINE else 256), "out of VGPRs"
        return r


def resolve(lines):
    flat = []
    for l in lines:
        flat += l.split("\n")
    out = []
    vm, lg = [], []
    for l in flat:
        t = l.strip()
        if not t:
            continue
        if t.startswith("WAITVM") or t.startswith("WAITLG"):
            isvm = t.startswith("WAITVM")
            lst = vm if isvm else lg
            n = None
            for tag in t.split()[1:]:
                idx = max(i for i, x in enumerate(lst) if x == tag)
                c = len(lst) - 1 - idx
                n = c if n is None else min(n, c)
            n = min(n, 63 if isvm else 15)
            out.append("s_waitcnt %s(%d)" % ("vmcnt" if isvm else "lgkmcnt", n))
            continue
        tag = t.split(";@")[1].strip() if ";@" in t else "_"
        if t.startswith(("buffer_", "global_")):
            if tag != "cond":
                vm.append(tag)
        elif t.startswith("ds_"):
            lg.append(tag)
        out.append(l.split(";@")[0].rstrip())
    return out


class Weave:
    def __init__(self, main):
        self.main = list(main)
        self.s = [[] for _ in range(len(self.main) + 1)]
        self.c = [0] * (len(self.main) + 1)

    def at(self, i, items, cost=1):
        if not isinstance(items, (list, tuple)):
            items = [items]
        i = min(i, len(self.main))
        for x in items:
            if x:
                self.s[i].append(x)
                self.c[i] += cost

    def every(self, items, start, step, stop=None):
        stop = len(self.main) if stop is None else stop
        i = start
        items = list(items)
        while items and i <= stop:
            pre, ins = items.pop(0)
            self.at(max(i - 1, 0), pre)
            self.at(i, ins, cost=2)
            i += step
        return items

    def fill(self, items, start, cap=1, stop=None):
        stop = len(self.main) if stop is None else stop
        i = start
        for x in items:
            while i < stop and self.c[i] >= cap:
                i += 1
            self.at(i, x)
        return i

    def out(self):
        o = []
        for i, m in enumerate(self.main):
            o += self.s[i]
            o.append(m)
        o += self.s[-1]
        return o


def flat(items):
    o = []
    for pre, ins in items:
        o += list(pre)
        o.append(ins)
    return o


def vr(n, c=1):
    p = "v"
    if n >= 256:
        p = "a"
        n -= 256
    if c == 1:
        return "%s%d" % (p, n)
    return "%s[%d:%d]" % (p, n, n + c - 1)


def sr(n, c=1):
    return "s%d" % n if c == 1 else "s[%d:%d]" % (n, n + c - 1)


def mfma32(d, a, b, c=None):
    cs = vr(d, 4) if c is None else (c if isinstance(c, str) else vr(c, 4))
    return "v_mfma_f32_16x16x32_bf16 %s, %s, %s, %s" % (vr(d, 4), vr(a, 4), vr(b, 4), cs)


def mfma16(d, a, b, c):
    cs = c if isinstance(c, str) else vr(c, 4)
    return "v_mfma_f32_16x16x16_bf16 %s, %s, %s, %s" % (vr(d, 4), vr(a, 2), vr(b, 2), cs)


SX, SWQ, SWS, SDB, SWO, SW1, SW2, SB1, SOUT = 8, 12, 16, 20, 24, 28, 32, 36, 40
s_w, s_rb, s_cg, s_r, s_t = 3, 4, 5, 6, 7
s_t2, s_ox, s_w1b, s_m0x, s_m0w, s_xo, s_wob = 44, 45, 46, 47, 48, 49, 50
s_rb2, s_cb, s_g3, s_cb3 = 51, 52, 53, 54
s_a = [55, 56, 57, 58]
s_b = [59, 60, 61, 62]
s_to = 63
s_c = list(range(64, 72))
A0 = 256


def build():
    k = K()
    e = k.e
    e(".globl %s\n.p2align 8\n.type %s,@function\n%s:" % (NAME, NAME, NAME))
    e("s_cmp_ge_u32 s2, 256")
    e("s_cbranch_scc1 L_done")
    k.stamp("start")
    for base, off, size in ((SX, 0, 2048 * 1024), (SWQ, 8, 512 * 3072), (SWS, 72, 0x10000000), (SDB, 64, 256),
                            (SWO, 16, 512 * 1024), (SW1, 32, 512 * 3584), (SW2, 48, 1792 * 1024), (SB1, 40, 3584),
                            (SOUT, 56, 2048 * 1024)):
        e("s_load_dwordx2 %s, s[0:1], %d" % (sr(base, 2), off))
    for base, off, size in ((SX, 0, 2048 * 1024), (SWQ, 8, 512 * 3072), (SWS, 72, 0x10000000), (SDB, 64, 256),
                            (SWO, 16, 512 * 1024), (SW1, 32, 512 * 3584), (SW2, 48, 1792 * 1024), (SB1, 40, 3584),
                            (SOUT, 56, 2048 * 1024)):
        e("s_mov_b32 s%d, 0x%x" % (base + 2, size))
        e("s_mov_b32 s%d, 0x20000" % (base + 3))
    t0, t1, t2, t3 = k.alloc(), k.alloc(), k.alloc(), k.alloc()
    l16, l128, vone, vP = k.alloc(), k.alloc(), k.alloc(), k.alloc()
    vxo = k.alloc()
    VD = k.alloc(4)
    TA = k.alloc(4)
    HB = k.alloc(8, 4)
    ones = k.alloc(4, 4)
    PERS = k.nv
    V1 = k.alloc(7)
    vM14, vMd = k.alloc(), k.alloc()
    PERS2 = k.nv
    if FINE:
        e("v_mov_b32 v255, 0")
    e("v_lshrrev_b32 %s, 6, v0" % vr(t1))
    if opt("pfcode", 1):
        e("s_getpc_b64 s[96:97]")
        e("L_pc:")
        e("v_and_b32 %s, 3, v0" % vr(t0))
        e("v_lshl_add_u32 %s, %s, 2, %s" % (vr(t0), vr(t1), vr(t0)))
        e("s_lshr_b32 s%d, s2, 3" % s_t)
        e("s_lshl_b32 s%d, s%d, 11" % (s_t, s_t))
        e("v_lshl_add_u32 %s, %s, 7, s%d" % (vr(t0), vr(t0), s_t))
        e("v_min_u32 %s, L_code_end-L_pc-4, %s" % (vr(vP), vr(t0)))
        e("global_load_dword %s, %s, s[96:97]" % (vr(vP), vr(vP)))
    s_ph = s_a[3]
    e("s_bfe_u32 s%d, s2, 0x20001" % s_rb)
    e("s_lshl_b32 s%d, s%d, 3" % (s_rb, s_rb))
    e("s_bfe_u32 s%d, s2, 0x30003" % s_ph)
    e("s_add_u32 s%d, s%d, s%d" % (s_rb, s_rb, s_ph))
    e("s_and_b32 s%d, s2, 1" % s_cg)
    e("s_lshl_b32 s%d, s%d, 2" % (s_cg, s_cg))
    e("s_lshr_b32 s%d, s2, 6" % s_t2)
    e("s_add_u32 s%d, s%d, s%d" % (s_cg, s_cg, s_t2))
    e("s_lshl_b32 s%d, s%d, 1" % (s_t2, s_t2))
    e("s_add_u32 s%d, s%d, s%d" % (s_ph, s_ph, s_t2))
    vx0, vx1, vw0, vw1 = k.alloc(), k.alloc(), k.alloc(), k.alloc()
    e("v_lshrrev_b32 %s, 3, v0" % vr(t0))
    e("v_readfirstlane_b32 s%d, %s" % (s_w, vr(t1)))
    e("v_lshl_add_u32 %s, %s, 3, %s" % (vr(t0), vr(t1), vr(t0)))
    e("v_bfe_u32 %s, v0, 4, 2" % vr(t1))
    e("v_and_b32 %s, 7, v0" % vr(t2))
    e("v_xor_b32 %s, %s, %s" % (vr(t1), vr(t1), vr(t2)))
    e("v_lshlrev_b32 %s, 4, %s" % (vr(t1), vr(t1)))
    e("v_lshl_add_u32 %s, %s, 10, %s" % (vr(vx0), vr(t0), vr(t1)))
    e("s_lshl_b32 s%d, s%d, 16" % (s_t, s_rb))
    e("v_add_u32 %s, s%d, %s" % (vr(vx0), s_t, vr(vx0)))
    e("v_xor_b32 %s, 64, %s" % (vr(vx1), vr(vx0)))
    e("v_add_u32 %s, %d, %s" % (vr(vx1), 8192 - 1024, vr(vx1)))
    e("v_bfe_u32 %s, v0, 4, 1" % vr(t1))
    e("v_lshlrev_b32 %s, 1, %s" % (vr(t1), vr(t1)))
    e("v_xor_b32 %s, %s, %s" % (vr(t1), vr(t1), vr(t2)))
    e("v_lshlrev_b32 %s, 4, %s" % (vr(t3), vr(t1)))
    e("v_mul_u32_u24 %s, 3072, %s" % (vr(vw0), vr(t0)))
    e("s_lshl_b32 s%d, s%d, 7" % (s_t, s_cg))
    e("v_add3_u32 %s, %s, %s, s%d" % (vr(vw0), vr(vw0), vr(t3), s_t))
    e("v_xor_b32 %s, 64, %s" % (vr(vw1), vr(vw0)))
    e("v_add_u32 %s, %d, %s" % (vr(vw1), 8 * 3072, vr(vw1)))
    e("v_and_b32 %s, 63, v0" % vr(l128))
    e("v_lshlrev_b32 %s, 4, %s" % (vr(l16), vr(l128)))
    e("s_lshl_b32 s%d, s%d, 11" % (s_m0x, s_w))
    e("s_lshl_b32 s%d, s%d, 12" % (s_m0w, s_w))
    e("s_add_u32 s%d, s%d, %d" % (s_m0w, s_m0w, L_RING + 8192))
    for c in range(8):
        e("s_add_u32 s%d, s%d, %d" % (s_t, s_ph, c))
        e("s_and_b32 s%d, s%d, 7" % (s_t, s_t))
        if c == 0:
            e("s_lshl_b32 s%d, s%d, 7" % (s_ox, s_t))
        e("s_mul_i32 s%d, s%d, %d" % (s_c[c], s_t, 64 * 3072))
    for r in range(4):
        e("v_mov_b32 %s, 0" % vr(ones + r))
    NZ = opt("nz", 32)
    s_zf = s_a[0]
    e("s_cmp_ge_u32 s2, %d" % NZ)
    e("s_cselect_b32 s%d, 1, 0" % s_zf)
    e("s_xor_b32 s%d, s%d, 3" % (s_t, s_w))
    e("s_or_b32 s%d, s%d, s%d" % (s_zf, s_zf, s_t))
    e("s_waitcnt lgkmcnt(0)")
    k.stamp("karg")

    def zero_fa():
        e("s_cmp_lg_u32 s%d, 0" % s_zf)
        e("s_cbranch_scc1 L_nz")
        e("s_mul_i32 s%d, s2, %d" % (s_t, 131072 // NZ))
        e("s_add_u32 s%d, s%d, 0x%x" % (s_t, s_t, WS_FA))
        for q in range(128 // NZ):
            e("buffer_store_dwordx4 %s, %s, %s, s%d offen offset:%d sc1 ;@cond" % (vr(ones, 4), vr(l16), sr(SWS, 4), s_t, (q & 3) * 1024))
            if q & 3 == 3:
                e("s_add_u32 s%d, s%d, 4096" % (s_t, s_t))
        e("L_nz:")

    def dma_x(c, tg):
        base = L_RING - 8192 if c == 0 else L_RING + ((c - 1) % 3) * SLOT
        pre = []
        if c:
            pre += ["s_add_u32 s%d, s%d, 128" % (s_ox, s_ox), "s_and_b32 s%d, s%d, 0x3ff" % (s_ox, s_ox)]
        pre.append("s_add_u32 m0, s%d, %d" % (s_m0x, base))
        return [(pre, "buffer_load_dwordx4 %s, %s, s%d offen lds ;@%s" % (vr(vx0), sr(SX, 4), s_ox, tg)),
                ([], "buffer_load_dwordx4 %s, %s, s%d offen offset:1024 lds ;@%s" % (vr(vx1), sr(SX, 4), s_ox, tg))]

    def dma_w(c, tg):
        o = []
        for uu, vw in enumerate((vw0, vw1)):
            pre = ["s_add_u32 m0, s%d, %d" % (s_m0w, (c % 3) * SLOT + uu * 2048 - 1024)]
            for sg in range(2):
                o.append((pre, "buffer_load_dwordx4 %s, %s, s%d offen offset:%d lds ;@%s" % (vr(vw), sr(SWQ, 4), s_c[c], 1024 + sg * 1024, tg)))
                pre = []
        return o

    def dma(c):
        tg = "c%d" % c
        o = dma_x(0, tg) if c == 0 else []
        o += dma_w(c, tg)
        if c < 7:
            o += dma_x(c + 1, tg)
        return o

    WQ = []
    for c in range(8):
        for uu, vw in enumerate((vw0, vw1)):
            WQ.append((["s_add_u32 m0, s%d, %d" % (s_m0x, c * 8192 + uu * 1024)],
                       "buffer_load_dwordx4 %s, %s, s%d offen lds ;@wq" % (vr(vw), sr(SWQ, 4), s_c[c])))

    if opt("zfirst", 1):
        zero_fa()
    e(flat(dma(0)))
    if not opt("zfirst", 1):
        zero_fa()
    e("s_bfe_u32 s%d, s2, 0x20003" % s_r)
    e("s_and_b32 s%d, s2, 7" % s_rb2)
    e("s_lshl_b32 s%d, s%d, 2" % (s_rb2, s_rb2))
    e("s_add_u32 s%d, s%d, s%d" % (s_rb2, s_rb2, s_r))
    e("s_lshr_b32 s%d, s2, 5" % s_cb)
    e("s_bfe_u32 s%d, s2, 0x20001" % s_g3)
    e("s_lshl_b32 s%d, s%d, 2" % (s_g3, s_g3))
    e("s_add_u32 s%d, s%d, s%d" % (s_g3, s_g3, s_r))
    e("s_and_b32 s%d, s2, 1" % s_cb3)
    e("s_lshl_b32 s%d, s%d, 3" % (s_cb3, s_cb3))
    e("s_add_u32 s%d, s%d, s%d" % (s_cb3, s_cb3, s_cb))
    if not opt("rot", 1):
        e("s_mov_b32 s%d, 0" % s_r)
    e("s_lshl_b32 s%d, s%d, 2" % (s_t, s_rb2))
    e("s_add_u32 s%d, s%d, s%d" % (s_t, s_t, s_w))
    e("s_lshl_b32 s%d, s%d, 3" % (s_t, s_t))
    e("s_add_u32 s%d, s%d, s%d" % (s_t, s_t, s_cb))
    e("s_lshl_b32 s%d, s%d, 7" % (s_t, s_t))
    e("s_add_u32 s%d, s%d, 0x%x" % (s_t, s_t, WS_FC))
    e("s_lshl_b32 s%d, s%d, 2" % (s_t2, s_g3))
    e("s_add_u32 s%d, s%d, s%d" % (s_t2, s_t2, s_w))
    e("s_lshl_b32 s%d, s%d, 4" % (s_t2, s_t2))
    e("s_add_u32 s%d, s%d, s%d" % (s_t2, s_t2, s_cb3))
    e("s_lshl_b32 s%d, s%d, 7" % (s_t2, s_t2))
    e("s_add_u32 s%d, s%d, 0x%x" % (s_t2, s_t2, WS_FD - 128))
    e("v_add_u32 %s, s%d, %s" % (vr(t0), s_t, vr(l16)))
    e("v_add_u32 %s, s%d, %s" % (vr(t1), s_t2, vr(l16)))
    e("v_cmp_gt_u32 vcc, 8, %s" % vr(l128))
    e("v_cndmask_b32 %s, %s, %s, vcc" % (vr(t0), vr(t1), vr(t0)))
    e("s_mov_b64 exec, 0xffff")
    e("buffer_store_dwordx4 %s, %s, %s, 0 offen sc1" % (vr(ones, 4), vr(t0), sr(SWS, 4)))
    e("s_mov_b64 exec, -1")
    k.stamp("dma_issued")
    vM4 = k.alloc()
    e("v_min_u32 %s, 13, %s" % (vr(vM14), vr(l128)))
    e("v_lshlrev_b32 %s, 7, %s" % (vr(vM14), vr(vM14)))
    e("v_min_u32 %s, 0x180, %s" % (vr(vM4), vr(vM14)))
    e("s_lshl_b32 s%d, s2, 2" % s_t)
    e("s_add_u32 s%d, s%d, s%d" % (s_t, s_t, s_w))
    e("s_mul_i32 s%d, s%d, 1792" % (s_t2, s_t))
    e("v_add_u32 %s, s%d, %s" % (vr(vM14), s_t2, vr(vM14)))
    e("s_lshl_b32 s%d, s%d, 9" % (s_t2, s_t))
    e("v_add_u32 %s, s%d, %s" % (vr(vM4), s_t2, vr(vM4)))
    vMq = k.alloc()
    e("s_lshr_b32 s%d, s%d, 1" % (s_t, s_t))
    e("s_lshl_b32 s%d, s%d, 11" % (s_t, s_t))
    e("v_add_u32 %s, s%d, %s" % (vr(vMq), s_t, vr(vM4)))

    def mall(mask):
        o = []
        for bit, va_, srd in ((1, vMq, SWQ), (2, vM4, SWO), (4, vM14, SW1), (8, vM14, SW2)):
            if mask & bit:
                o.append(([], "buffer_load_dword %s, %s, %s, 0 offen" % (vr(vMd), vr(va_), sr(srd, 4))))
        return o
    e(flat(mall(opt("m0", 0))))
    e("v_lshlrev_b32 %s, 7, %s" % (vr(l128), vr(l128)))
    e("v_mov_b32 %s, 1" % vr(vone))
    for r in range(4):
        e("v_mov_b32 %s, 0x3f803f80" % vr(ones + r))
    g, i15 = k.alloc(), k.alloc()
    xa = [[k.alloc(), k.alloc()] for _ in range(4)]
    wa = k.alloc()
    qa = k.alloc()
    VO = k.alloc(4)
    TO = k.alloc(4)
    vOS = k.alloc(2)
    e("v_bfe_u32 %s, v0, 4, 2" % vr(g))
    e("v_and_b32 %s, 15, v0" % vr(i15))
    e("v_bfe_u32 %s, v0, 3, 3" % vr(t1))
    e("v_lshl_add_u32 %s, %s, 10, %s" % (vr(VO), vr(t1), vr(t3)))
    e("v_xor_b32 %s, 64, %s" % (vr(t3), vr(VO)))
    e("v_add_u32 %s, %d, %s" % (vr(VO + 1), 7168, vr(t3)))
    e("v_add_u32 %s, %d, %s" % (vr(VO + 2), 2 * 7168, vr(VO)))
    e("v_add_u32 %s, %d, %s" % (vr(VO + 3), 3 * 7168, vr(t3)))
    e("v_lshlrev_b32 %s, 1, %s" % (vr(t0), vr(g)))
    e("v_and_b32 %s, 7, v0" % vr(t2))
    e("v_xor_b32 %s, %s, %s" % (vr(t0), vr(t0), vr(t2)))
    e("v_lshlrev_b32 %s, 4, %s" % (vr(t0), vr(t0)))
    e("v_lshl_add_u32 %s, %s, 10, %s" % (vr(VD), vr(t1), vr(t0)))
    for i in range(1, 4):
        e("v_add_u32 %s, %d, %s" % (vr(VD + i), i * (8192 - 1024), vr(VD)))
    e("v_lshrrev_b32 %s, 1, %s" % (vr(t0), vr(i15)))
    e("v_xor_b32 %s, %s, %s" % (vr(t0), vr(t0), vr(g)))
    e("v_lshlrev_b32 %s, 4, %s" % (vr(t0), vr(t0)))
    e("v_lshl_add_u32 %s, %s, 7, %s" % (vr(t0), vr(i15), vr(t0)))
    for u in range(4):
        e("s_add_u32 s%d, s%d, %d" % (s_t, s_w, u))
        e("s_and_b32 s%d, s%d, 3" % (s_b[u], s_t))
        e("s_lshl_b32 s%d, s%d, 11" % (s_t, s_b[u]))
        e("s_add_u32 s%d, s%d, %d" % (s_t, s_t, L_RING - 8192))
        e("v_add_u32 %s, s%d, %s" % (vr(xa[u][0]), s_t, vr(t0)))
        e("v_xor_b32 %s, 64, %s" % (vr(xa[u][1]), vr(xa[u][0])))
    e("v_lshrrev_b32 %s, 1, %s" % (vr(t0), vr(g)))
    e("v_lshlrev_b32 %s, 8, %s" % (vr(t0), vr(t0)))
    e("v_lshl_add_u32 %s, %s, 4, %s" % (vr(t0), vr(i15), vr(t0)))
    e("v_and_b32 %s, 1, %s" % (vr(t1), vr(g)))
    e("v_cmp_eq_u32 vcc, 1, %s" % vr(t1))
    for P in range(2):
        e("v_mov_b32 %s, s%d" % (vr(t1), s_b[2 * P]))
        e("v_mov_b32 %s, s%d" % (vr(t2), s_b[2 * P + 1]))
        e("v_cndmask_b32 %s, %s, %s, vcc" % (vr(t1), vr(t1), vr(t2)))
        e("v_lshl_add_u32 %s, %s, 14, %s" % (vr(vOS + P), vr(t1), vr(t0)))
    e("v_bfe_u32 %s, v0, 3, 2" % vr(t0))
    e("v_lshlrev_b32 %s, 5, %s" % (vr(t0), vr(t0)))
    e("v_and_b32 %s, 3, v0" % vr(t1))
    e("v_lshl_add_u32 %s, %s, 3, %s" % (vr(t0), vr(t1), vr(t0)))
    e("v_bfe_u32 %s, v0, 2, 2" % vr(t1))
    e("v_lshl_add_u32 %s, %s, 7, %s" % (vr(t0), vr(t1), vr(t0)))
    e("v_lshl_add_u32 %s, %s, 10, %s" % (vr(qa), vr(g), vr(t0)))
    e("v_add_u32 %s, %d, %s" % (vr(TO), L_WO, vr(qa)))
    for nt in range(1, 4):
        e("v_xor_b32 %s, %d, %s" % (vr(TO + nt), nt * 32, vr(TO)))
    e("s_lshl_b32 s%d, s%d, 5" % (s_t, s_w))
    e("v_xor_b32 %s, s%d, %s" % (vr(qa), s_t, vr(qa)))
    e("v_lshl_add_u32 %s, %s, 11, %s" % (vr(wa), vr(g), vr(t0)))
    e("v_xor_b32 %s, s%d, %s" % (vr(wa), s_t, vr(wa)))
    e("v_add_u32 %s, %d, %s" % (vr(wa), L_RING + 8192, vr(wa)))
    e("v_lshl_add_u32 %s, %s, 9, %s" % (vr(TA), vr(g), vr(t0)))
    e("s_lshl_b32 s%d, s%d, 13" % (s_t, s_w))
    e("s_add_u32 s%d, s%d, 65536" % (s_t, s_t))
    e("v_add_u32 %s, s%d, %s" % (vr(TA), s_t, vr(TA)))
    for nt in range(1, 4):
        e("v_xor_b32 %s, %d, %s" % (vr(TA + nt), nt * 32, vr(TA)))
    e("v_bfe_u32 %s, v0, 4, 1" % vr(t0))
    e("v_lshlrev_b32 %s, 5, %s" % (vr(t0), vr(t0)))
    e("v_bfe_u32 %s, v0, 5, 1" % vr(t1))
    e("v_lshl_add_u32 %s, %s, 4, %s" % (vr(t0), vr(t1), vr(t0)))
    e("v_lshl_add_u32 %s, %s, 10, %s" % (vr(vxo), vr(i15), vr(t0)))
    IDM = k.alloc(4, 4)
    e("v_bfe_u32 %s, v0, 4, 1" % vr(t0))
    e("v_lshlrev_b32 %s, 2, %s" % (vr(t0), vr(t0)))
    e("v_sub_u32 %s, %s, %s" % (vr(t0), vr(i15), vr(t0)))
    e("v_mov_b32 %s, 0x3f80" % vr(t1))
    e("v_mov_b32 %s, 0x3f800000" % vr(t2))
    for r, c in enumerate((0, 2, 8, 10)):
        e("v_cmp_eq_u32 vcc, %d, %s" % (c, vr(t0)))
        e("v_cndmask_b32 %s, 0, %s, vcc" % (vr(IDM + r), vr(t1)))
        e("v_cmp_eq_u32 vcc, %d, %s" % (c + 1, vr(t0)))
        e("v_cndmask_b32 %s, %s, %s, vcc" % (vr(IDM + r), vr(IDM + r), vr(t2)))
    vZ, vGZ = k.alloc(), k.alloc()
    e("v_and_b32 %s, 16, v0" % vr(vZ))
    e("v_bfe_u32 %s, v0, 5, 1" % vr(t1))
    e("v_lshl_add_u32 %s, %s, 4, %s" % (vr(t1), vr(t1), vr(i15)))
    e("v_lshl_add_u32 %s, %s, 7, %s" % (vr(vGZ), vr(t1), vr(vZ)))
    e("s_movk_i32 s%d, 3584 - 224" % s_t)
    for m in range(7):
        e("v_add_u32 %s, %d, v0" % (vr(t0), 256 * m))
        e("v_mul_u32_u24 %s, 4682, %s" % (vr(t1), vr(t0)))
        e("v_lshrrev_b32 %s, 16, %s" % (vr(t1), vr(t1)))
        e("v_lshlrev_b32 %s, 4, %s" % (vr(t0), vr(t0)))
        e("v_mad_u32_u24 %s, %s, s%d, %s" % (vr(V1 + m), vr(t1), s_t, vr(t0)))
    e("v_and_b32 %s, 3, v0" % vr(t0))
    e("v_cmp_eq_u32 s[96:97], 1, %s" % vr(t0))
    e("v_cmp_eq_u32 s[98:99], 2, %s" % vr(t0))
    e("v_cmp_eq_u32 s[100:101], 3, %s" % vr(t0))
    cst = k.alloc(2, 2)
    ceps = k.alloc(4, 4)
    e("v_mov_b32 %s, %s" % (vr(cst), f32(LN2)))
    e("v_mov_b32 %s, %s" % (vr(cst + 1), f32(1.000001)))
    for r in range(4):
        e("v_mov_b32 %s, %s" % (vr(ceps + r), f32(1e-6)))
    vS0, vsw, vsr, l4 = k.alloc(), k.alloc(), k.alloc(), k.alloc()
    e("s_lshl_b32 s%d, s%d, 6" % (s_t, s_w))
    e("s_add_u32 s%d, s%d, %d" % (s_t, s_t, L_SCR))
    e("v_lshl_add_u32 %s, %s, 2, s%d" % (vr(vsw), vr(i15), s_t))
    e("v_lshl_add_u32 %s, %s, 4, s%d" % (vr(vsr), vr(g), s_t))
    e("v_lshlrev_b32 %s, %d, %s" % (vr(l4), {64: 2, 32: 3, 16: 4, 8: 5}[NZ], vr(l16)))
    e("v_lshrrev_b32 %s, 4, %s" % (vr(l4), vr(l4)))
    s_hd, s_pa, s_fa = s_a[1], s_a[2], s_a[3]
    e("s_lshl_b32 s%d, s%d, 2" % (s_hd, s_cg))
    e("s_add_u32 s%d, s%d, s%d" % (s_hd, s_hd, s_w))
    e("s_lshl_b32 s%d, s%d, 5" % (s_t, s_hd))
    e("s_add_u32 s%d, s%d, s%d" % (s_t, s_t, s_rb))
    e("s_lshl_b32 s%d, s%d, 9" % (s_pa, s_t))
    e("s_lshl_b32 s%d, s%d, 7" % (s_fa, s_t))
    e("s_add_u32 s%d, s%d, 0x%x" % (s_fa, s_fa, WS_FA))
    e("s_lshl_b32 s%d, s%d, 7" % (s_t, s_cb))
    e("s_lshl_b32 s%d, s%d, 17" % (s_wob, s_r))
    e("s_lshl_b32 s%d, s%d, 15" % (s_t2, s_w))
    e("s_add_u32 s%d, s%d, s%d" % (s_wob, s_wob, s_t2))
    e("s_add_u32 s%d, s%d, s%d" % (s_wob, s_wob, s_t))
    e("s_lshl_b32 s%d, s%d, 16" % (s_xo, s_rb2))
    e("s_lshl_b32 s%d, s%d, 14" % (s_t2, s_w))
    e("s_add_u32 s%d, s%d, s%d" % (s_xo, s_xo, s_t2))
    e("s_add_u32 s%d, s%d, s%d" % (s_xo, s_xo, s_t))
    e("s_mul_i32 s%d, s%d, 224" % (s_w1b, s_cb3))
    P1BASE = k.nv
    ak = k.alloc(16, 4)
    av = k.alloc(16, 4)
    stq, sts = k.alloc(4, 4), k.alloc(4, 4)
    NM = k.alloc(16, 4)
    RL = k.alloc(16, 4)
    WB3 = [k.alloc(8, 4) for _ in range(3)]
    cs = k.alloc(8, 4)
    QN = k.alloc(8, 2)
    tm = k.alloc(8, 2)

    def XS(u, n):
        return A0 + 64 * u + 4 * n

    def rd_w(n):
        so = ((n >> 1) % 3) * SLOT + (n & 1) * 8192
        return ["ds_read_b64_tr_b16 %s, %s offset:%d ;@w%d" % (vr(WB3[n % 3] + sg * 4 + hf * 2, 2), vr(wa), so + sg * 1024 + hf * 512, n)
                for sg in range(2) for hf in range(2)]

    def rd_x(u, n):
        c = n >> 1
        so = 0 if c == 0 else 8192 + ((c - 1) % 3) * SLOT
        return "ds_read_b128 %s, %s offset:%d ;@x%d_%d" % (vr(XS(u, n), 4), vr(xa[u][n & 1]), so, u, n)

    def mf_cs(n):
        z = "0" if n == 0 else None
        return [mfma32(cs + 0, ones, WB3[n % 3] + 0, z), mfma32(cs + 4, ones, WB3[n % 3] + 4, z)]

    def mf_main(n, u):
        z = "0" if n == 0 else None
        return [mfma32(ak + 4 * u, XS(u, n), WB3[n % 3] + 0, z), mfma32(av + 4 * u, XS(u, n), WB3[n % 3] + 4, z)]

    def mf(n):
        return mf_cs(n) + sum([mf_main(n, u) for u in range(4)], [])

    def mf_st(n):
        z = "0" if n == 0 else None
        return [mfma32(stq, XS(0, n), XS(0, n), z), mfma32(sts, ones, XS(0, n), z)]

    k.flush()
    e(flat(dma(1)))
    e(flat(mall(opt("m1", 0))))
    k.stamp("g1_issued")
    wq = list(WQ)
    ZIT = opt("zit", 5)
    arrive = "\n".join(["s_cmp_lg_u32 s%d, 0" % s_zf, "s_cbranch_scc1 L_nz2", "s_mul_i32 s%d, s2, %d" % (s_t, 256 // NZ), "s_mov_b64 exec, 1",
                        "buffer_store_dword %s, off, %s, s%d sc1 ;@cond" % (vr(vone), sr(SDB, 4), s_t), "s_mov_b64 exec, -1", "L_nz2:"])
    for it in range(8):
        e("WAITVM c%d" % it)
        e("s_barrier")
        if it in (0, 1, 4, 7):
            k.stamp("it%d" % it)
        extra = dma(it + 2) if it + 2 < 8 else []
        if it == 5:
            extra = extra + mall(opt("m5", 0))
        if it == 0:
            e(rd_w(0) + [rd_x(u, 0) for u in range(4)] + [rd_x(0, 1), rd_x(0, 2), rd_x(0, 3)])
            e(flat(extra[:1]))
            m = mf(0) + mf_st(0) + mf_st(1) + mf_st(2) + mf_st(3)
            m[0] = "WAITLG w0\n" + m[0]
            m[2] = "WAITLG x1_0\n" + m[2]
            m[6] = "WAITLG x0_3\n" + m[6]
            W = Weave(m)
            W.every(extra[1:], 2, 3)
            W.fill(rd_w(1) + [rd_x(u, 1) for u in range(1, 4)] + [rd_x(u, n) for n in (2, 3) for u in range(1, 4)], 1, cap=2)
            e(W.out())
            e("s_waitcnt lgkmcnt(0)")
        elif it < 7:
            n = 2 * it
            sp = 10 if it < 6 else 5
            m = mf(n - 1)[:sp] + mf_st(n + 2) + mf_st(n + 3) + mf(n - 1)[sp:] + mf(n)
            m[sp] = "WAITLG x0_%d\n" % (n + 3) + m[sp]
            if it == 6:
                m[14] = "WAITLG w%d\n" % n + m[14]
            W = Weave(m)
            if it == ZIT:
                W.at(16 if it == 5 else 24, arrive)
            if it >= 5:
                c = max(0, 6 - len(extra))
                extra = extra + wq[:c]
                wq = wq[c:]
            left = W.every(extra, 2, 4)
            W.at(24, flat(left))
            rs = rd_w(n) + [rd_x(0, n + 2), rd_x(0, n + 3)] + rd_w(n + 1) + [rd_x(u, nn) for nn in (n + 2, n + 3) for u in range(1, 4)]
            if it == 6:
                rs = rs[4:6] + rs[:4] + rs[6:]
            W.at(0, rs[:2])
            if it < 6:
                W.fill(rs[2:], 1, cap=opt("p1cap", 2))
            else:
                W.fill(rs[2:], 1, cap=2)
                sm = ["v_cndmask_b32 %s, %s, %s, s[96:97]" % (vr(t0), vr(stq), vr(stq + 1)),
                      "v_cndmask_b32 %s, %s, %s, s[98:99]" % (vr(t0), vr(t0), vr(stq + 2)),
                      "v_cndmask_b32 %s, %s, %s, s[100:101]" % (vr(t0), vr(t0), vr(stq + 3)),
                      "v_mul_f32 %s, %s, %s" % (vr(t1), f32(-1.0 / 512), vr(sts)),
                      "v_mul_f32 %s, %s, %s" % (vr(t0), f32(1.0 / 512), vr(t0)),
                      "v_fma_f32 %s, -%s, %s, %s" % (vr(t0), vr(t1), vr(t1), vr(t0)),
                      "v_max_f32 %s, 0, %s" % (vr(t0), vr(t0)),
                      "v_add_f32 %s, %s, %s" % (vr(t0), f32(1e-5), vr(t0)),
                      "v_rsq_f32 %s, %s" % (vr(t0), vr(t0)),
                      "s_nop 0",
                      "v_mul_f32 %s, %s, %s" % (vr(t0), f32(LOG2E), vr(t0)),
                      "\n".join(["s_mov_b32 exec_lo, 0x00f0000f", "s_mov_b32 exec_hi, 0xf0000f00",
                                 "ds_write2st64_b32 %s, %s, %s offset0:0 offset1:1" % (vr(vsw), vr(t1), vr(t1)),
                                 "ds_write2st64_b32 %s, %s, %s offset0:2 offset1:3" % (vr(vsw), vr(t0), vr(t0)),
                                 "s_mov_b64 exec, -1"])]
                W.fill(sm, 12, cap=3, stop=19)
            e(W.out())
            e("s_waitcnt lgkmcnt(0)")
        else:
            m = mf(13) + mf_cs(14) + mf_cs(15)
            for u in range(4):
                m += mf_main(14, u) + mf_main(15, u)
            m[10] = "WAITLG w15\n" + m[10]
            W = Weave(m)
            wq = W.every(wq + [([], "buffer_load_dword %s, %s, %s, 0 offen sc1 ;@s0" % (vr(vS0), vr(l4), sr(SDB, 4)))], 1, opt("wq7", 3))
            W.at(30, flat(wq))
            rs = rd_w(14) + rd_w(15)
            for u in range(4):
                rs.append("ds_read_b128 %s, %s offset:%d" % (vr(NM + 4 * u, 4), vr(vsr), u * 64))
                rs.append("ds_read_b128 %s, %s offset:%d" % (vr(RL + 4 * u, 4), vr(vsr), 512 + u * 64))
            for u in range(4):
                rs.append("ds_read2_b32 %s, %s offset0:%d offset1:%d" % (vr(QN + 2 * u, 2), vr(vsw), 16 * u, 128 + 16 * u))
            W.at(0, rs[:2])
            W.fill(rs[2:], 1, cap=2)
            e(W.out())
    e("s_waitcnt lgkmcnt(0)")
    k.stamp("loop_end")

    def phi(a, dst, alt=0, keep=None):
        E = tm + 4 * alt
        U = tm + 4 * alt + 2 if keep is None else keep
        e("v_exp_f32_e64 %s, %s clamp" % (vr(E), vr(a)))
        e("v_exp_f32_e64 %s, %s clamp" % (vr(E + 1), vr(a + 1)))
        e("v_pk_fma_f32 %s, %s, %s, %s op_sel:[0,0,1] op_sel_hi:[1,0,1]" % (vr(U, 2), vr(a, 2), vr(cst, 2), vr(cst, 2)))
        e("v_pk_add_f32 %s, %s, %s" % (vr(E, 2), vr(E, 2), vr(ceps, 2)))
        e("v_max_f32 %s, %s, %s" % (vr(U), vr(U), vr(E)))
        e("v_max_f32 %s, %s, %s" % (vr(U + 1), vr(U + 1), vr(E + 1)))
        e("v_cvt_pk_bf16_f32 %s, %s, %s" % (vr(dst), vr(U), vr(U + 1)))

    kv, zz = stq, sts
    PK = k.alloc(8, 4)
    PV = WB3[1]
    for u in range(4):
        for hp in range(2):
            o = 4 * u + 2 * hp
            e("v_pk_fma_f32 %s, %s, %s, %s" % (vr(ak + o, 2), vr(NM + o, 2), vr(cs + 0, 2), vr(ak + o, 2)))
            e("v_pk_fma_f32 %s, %s, %s, %s" % (vr(av + o, 2), vr(NM + o, 2), vr(cs + 4, 2), vr(av + o, 2)))
            e("v_pk_mul_f32 %s, %s, %s" % (vr(ak + o, 2), vr(ak + o, 2), vr(RL + o, 2)))
            e("v_pk_mul_f32 %s, %s, %s" % (vr(av + o, 2), vr(av + o, 2), vr(RL + o, 2)))
            e("v_cvt_pk_bf16_f32 %s, %s, %s" % (vr(PV + 2 * u + hp), vr(av + o), vr(av + o + 1)))
            if u == 3 and hp == 1:
                E, U, a = tm + 4, tm + 6, ak + o
                e("v_exp_f32_e64 %s, %s clamp" % (vr(E), vr(a)))
                e("v_exp_f32_e64 %s, %s clamp" % (vr(E + 1), vr(a + 1)))
                e("v_pk_fma_f32 %s, %s, %s, %s op_sel:[0,0,1] op_sel_hi:[1,0,1]" % (vr(U, 2), vr(a, 2), vr(cst, 2), vr(cst, 2)))
                e("v_pk_add_f32 %s, %s, %s" % (vr(E, 2), vr(E, 2), vr(ceps, 2)))
                e(mfma32(kv, PK, PV, "0"))
                e("v_max_f32 %s, %s, %s" % (vr(U), vr(U), vr(E)))
                e("v_max_f32 %s, %s, %s" % (vr(U + 1), vr(U + 1), vr(E + 1)))
                e("v_cvt_pk_bf16_f32 %s, %s, %s" % (vr(PK + 7), vr(U), vr(U + 1)))
            else:
                phi(ak + o, PK + 2 * u + hp, hp)
    e(mfma32(kv, PK + 4, PV + 4))
    e(mfma32(zz, PK, ones, "0"))
    e(mfma32(zz, PK + 4, ones))
    PR = NM
    PZ = NM + 4
    e("v_cvt_pk_bf16_f32 %s, %s, %s" % (vr(PR), vr(kv), vr(kv + 1)))
    e("v_cvt_pk_bf16_f32 %s, %s, %s" % (vr(PR + 1), vr(kv + 2), vr(kv + 3)))
    e("v_permlane32_swap_b32 %s, %s" % (vr(PR), vr(PR + 2)))
    e("v_permlane32_swap_b32 %s, %s" % (vr(PR + 1), vr(PR + 3)))
    e("s_mov_b32 exec_hi, 0")
    e("buffer_store_dwordx4 %s, %s, %s, s%d offen sc1 ;@part" % (vr(PR, 4), vr(l16), sr(SWS, 4), s_pa))
    e("s_mov_b64 exec, -1")
    k.stamp("part_st")
    e("v_cvt_pk_bf16_f32 %s, %s, %s" % (vr(PZ), vr(zz), vr(zz + 1)))
    e("v_cvt_pk_bf16_f32 %s, %s, %s" % (vr(PZ + 1), vr(zz + 2), vr(zz + 3)))
    e("v_permlane32_swap_b32 %s, %s" % (vr(PZ), vr(PZ + 2)))
    e("v_permlane32_swap_b32 %s, %s" % (vr(PZ + 1), vr(PZ + 3)))

    npoll = [0]

    def setexec(lanes, e=e):
        if lanes < 64:
            e("s_mov_b64 exec, 0x%x" % ((1 << lanes) - 1) if lanes < 32 else "s_mov_b32 exec_hi, 0")

    def poll(voff, lanes, srd, soff, first=None, dst=vP, wide=False, imm=0, e=e):
        n = npoll[0]
        npoll[0] += 1
        setexec(lanes, e)
        e("s_mov_b32 s%d, %d" % (s_to, 20000 if FINE else TIMEOUT))
        if first is not None:
            e("v_cmp_eq_u32 vcc, 0, %s" % vr(first))
            e("s_cbranch_vccz L_ok%d" % n)
        e("L_poll%d:" % n)
        e(poll_load(voff, srd, soff, dst, wide, imm) + " ;@cond")
        e("s_waitcnt vmcnt(0)")
        e("v_cmp_eq_u32 vcc, 0, %s" % vr(dst))
        e("s_cbranch_vccz L_ok%d" % n)
        e("s_sub_u32 s%d, s%d, 1" % (s_to, s_to))
        e("s_cbranch_scc0 L_poll%d" % n)
        e("L_ok%d:" % n)
        if lanes < 64:
            e("s_mov_b64 exec, -1")

    def poll_load(voff, srd, soff, dst, wide=False, imm=0):
        return "buffer_load_dword%s %s, %s, %s, %s offen offset:%d sc1" % ("x4" if wide else "", vr(dst, 4 if wide else 1), vr(voff), sr(srd, 4), soff, imm)

    def flag(soff, wait, imm=0):
        return "\n".join(["WAITVM " + wait, "s_mov_b64 exec, 1",
                          "buffer_store_dword %s, off, %s, s%d offset:%d sc1" % (vr(vone), sr(SWS, 4), soff, imm),
                          "s_mov_b64 exec, -1"])

    e("WAITVM wq")
    s0t = []
    poll(l4, NZ, SDB, "0", first=vS0, e=s0t.append)
    e("s_barrier")
    k.stamp("wq_bar")
    aq = ak
    csq = cs
    QF = RL

    def qreads(n):
        return ["ds_read_b64_tr_b16 %s, %s offset:%d ;@q%d" % (vr(QF + 4 * (n & 3) + 2 * hf, 2), vr(qa), n * 4096 + hf * 512, n)
                for hf in range(2)]

    def wo_dma(p):
        pre = ["s_xor_b32 s%d, s%d, 0x%x" % (s_t2, s_wob, p << 17), "s_add_u32 m0, s%d, %d" % (s_m0w, L_WO + p * 16384 - (L_RING + 8192))]
        o = []
        for i in range(4):
            o.append((pre, "buffer_load_dwordx4 %s, %s, s%d offen offset:%d lds ;@wo" % (vr(VO + i), sr(SWO, 4), s_t2, i * 1024)))
            pre = []
        return o

    s_w1m = s_m0x
    s_w1g = s_c[0:4]

    def w1_dma(p):
        return [(["s_add_u32 m0, s%d, %d" % (s_w1m, L_W1[p] + m * 4096)],
                 "buffer_load_dwordx4 %s, %s, s%d offen lds ;@w1g%d" % (vr(V1 + m), sr(SW1, 4), s_w1g[p], p)) for m in range(7)]

    e(qreads(0) + qreads(1) + qreads(2))
    e("s_lshl_b32 s%d, s%d, 10" % (s_w1m, s_w))
    for p in range(4):
        e("s_xor_b32 s%d, s%d, %d" % (s_t, s_r, p))
        e("s_mul_i32 s%d, s%d, %d" % (s_t, s_t, 128 * 3584))
        e("s_add_u32 s%d, s%d, s%d" % (s_w1g[p], s_t, s_w1b))
    XR = [([], "buffer_load_dwordx4 %s, %s, %s, s%d offen offset:%d ;@x" % (vr(HB + 4 * P, 4), vr(vxo), sr(SX, 4), s_xo, P * 64)) for P in range(2)]
    W1Q = w1_dma(0) + w1_dma(1) + w1_dma(2) + w1_dma(3)
    m = []
    for n in range(16):
        z = "0" if n == 0 else None
        mm = [mfma32(aq + 4 * u, QF + 4 * (n & 3), XS(u, n), z) for u in range(4)] + [mfma32(csq, QF + 4 * (n & 3), ones, z)]
        mm[0] = "WAITLG q%d\n" % n + mm[0]
        m += mm
    W = Weave(m)
    FLA = opt("fla", 36)
    G1A = opt("g1a", 3)
    G1B = opt("g1b", 0)
    WOQ = wo_dma(0) + wo_dma(1) + wo_dma(2) + wo_dma(3)
    WOA = opt("woa", 4)
    pre_items = mall(opt("ma", 0)) + WOQ[:WOA] + W1Q[:G1A]
    W1Q = W1Q[G1A:]
    left = W.every(pre_items, 1, opt("g1s", 4), stop=FLA - 2)
    assert not left
    W.at(FLA, "\n".join(["WAITVM part"] + s0t + ["s_mov_b32 exec_lo, 0x00010001", "s_mov_b32 exec_hi, 0",
                         "buffer_store_dwordx4 %s, %s, %s, s%d offen sc1" % (vr(PZ, 4), vr(vZ), sr(SWS, 4), s_fa),
                         "s_mov_b64 exec, -1", k.stamp_text("flagA")]), cost=4)
    assert WOA % 4 == 0 or (G1A == 0 and G1B == 0)
    post = mall(opt("mb", 0)) + W1Q[:G1B] + XR + WOQ[WOA:]
    W1Q = W1Q[G1B:]
    post = W.every(post, FLA + 3, opt("g1t", 4))
    for n in range(13):
        W.at(5 * n + 2, qreads(n + 3)[0])
        W.at(5 * n + 4, qreads(n + 3)[1])
    e(W.out())
    k.stamp("q_mm")
    PQ = WB3[0]
    PQF = av
    for u in range(4):
        for hp in range(2):
            o = 4 * u + 2 * hp
            e("v_pk_fma_f32 %s, %s, %s, %s op_sel_hi:[1,0,1]" % (vr(aq + o, 2), vr(csq + 2 * hp, 2), vr(QN + 2 * u, 2), vr(aq + o, 2)))
            e("v_pk_mul_f32 %s, %s, %s op_sel:[0,1] op_sel_hi:[1,1]" % (vr(aq + o, 2), vr(aq + o, 2), vr(QN + 2 * u, 2)))
            phi(aq + o, PQ + 2 * u + hp, hp, keep=PQF + o)
            if post:
                e(flat(post[:1]))
                post = post[1:]
    e(flat(post))
    k.stamp("q_epi")
    k.flush()
    k.nv = WB3[1]
    GR = k.alloc(64, 4)
    GZ = k.alloc(4, 4)
    e("s_lshl_b32 s%d, s%d, 12" % (s_t, s_hd))
    e("s_add_u32 s%d, s%d, 0x%x" % (s_t, s_t, WS_FA))
    e(poll_load(vGZ, SWS, "s%d" % s_t, GZ, True) + " ;@pa")
    e("WAITVM wo")
    e("s_barrier")
    WF = A0
    wr = ["ds_read_b64_tr_b16 %s, %s offset:%d" % (vr(WF + 16 * ks + 4 * nt + 2 * hf, 2), vr(TO + nt), ks * 4096 + hf * 512)
          for ks in range(16) for nt in range(4) for hf in range(2)]
    NW0 = opt("nw0", 32)
    e(wr[:NW0])
    wr = wr[NW0:]
    e("s_lshl_b32 s%d, s%d, 14" % (s_pa, s_hd))
    e("s_lshl_b32 s%d, s%d, 16" % (s_b[0], s_rb))
    e("s_lshl_b32 s%d, s%d, 9" % (s_t2, s_hd))
    e("s_add_u32 s%d, s%d, s%d" % (s_b[0], s_b[0], s_t2))
    e("s_add_u32 s%d, s%d, 0x%x" % (s_b[0], s_b[0], WS_O))
    e("WAITVM pa")
    poll(vGZ, 64, SWS, "s%d" % s_t, first=GZ, dst=GZ, wide=True)
    k.stamp("pollA")
    gl = []
    for i in range(16):
        x = "buffer_load_dwordx4 %s, %s, %s, s%d offen offset:%d sc1 ;@g%d" % (vr(GR + 4 * i, 4), vr(l16), sr(SWS, 4), s_pa, (i & 3) * 1024, i)
        if i & 3 == 3 and i < 15:
            x += "\ns_add_u32 s%d, s%d, 4096" % (s_pa, s_pa)
        gl.append(x)
    G2Z = opt("g2z", 0)
    for pre, ins in W1Q[:G2Z]:
        gl.append("\n".join(pre + [ins]))
    W1Q = W1Q[G2Z:]
    EX = NM
    NUM, DEN = ak, RL
    side = [mfma32(zz, IDM, GZ, "0")] + wr[:10]
    wr = wr[10:]
    for sh in (8, 4, 2, 1):
        for r in range(4):
            side.append("v_add_f32_dpp %s, %s, %s row_ror:%d row_mask:0xf bank_mask:0xf" % (vr(zz + r), vr(zz + r), vr(zz + r), sh))
    side.append("v_cvt_pk_bf16_f32 %s, %s, %s" % (vr(EX + 2), vr(zz), vr(zz + 1)))
    side.append("v_cvt_pk_bf16_f32 %s, %s, %s" % (vr(EX + 3), vr(zz + 2), vr(zz + 3)))
    side += wr[:2]
    side += [mfma16(DEN + 4 * u, EX + 2, PQ + 2 * u, ceps) for u in range(4)]
    side += wr[2:10]
    wr = wr[10:]
    side += ["v_rcp_f32 %s, %s" % (vr(DEN + 4 * u), vr(DEN + 4 * u)) for u in range(4)]
    side += ["v_mul_f32 %s, %s, %s" % (vr(DEN + 4 * u), vr(cst), vr(DEN + 4 * u)) for u in range(4)]
    for u in range(4):
        for hp in range(2):
            side.append("v_pk_mul_f32 %s, %s, %s op_sel_hi:[1,0]" % (vr(PQF + 4 * u + 2 * hp, 2), vr(PQF + 4 * u + 2 * hp, 2), vr(DEN + 4 * u, 2)))
    for j in range(8):
        side.append("v_cvt_pk_bf16_f32 %s, %s, %s" % (vr(PQ + j), vr(PQF + 2 * j), vr(PQF + 2 * j + 1)))
    NW1 = opt("nw1", 40)
    side += wr[:NW1]
    wr = wr[NW1:]
    W = Weave(gl)
    W.fill(side, 2, cap=opt("gcap", 8))
    e(W.out())
    gm = ["WAITVM g%d\n" % i + mfma32(kv, IDM, GR + 4 * i, "0" if i == 0 else None) for i in range(16)]
    W = Weave(gm)
    NW2 = opt("nw2", 12)
    W.fill(wr[:NW2], 1, cap=1)
    wr = wr[NW2:]
    e(W.out())
    k.stamp("gathA")
    e("v_cvt_pk_bf16_f32 %s, %s, %s" % (vr(EX), vr(kv), vr(kv + 1)))
    e("v_cvt_pk_bf16_f32 %s, %s, %s" % (vr(EX + 1), vr(kv + 2), vr(kv + 3)))
    for u in range(4):
        e(mfma16(NUM + 4 * u, EX, PQ + 2 * u, "0"))
    OB = NM + 8
    for P in range(2):
        for j in range(4):
            e("v_cvt_pk_bf16_f32 %s, %s, %s" % (vr(OB + 4 * P + j), vr(NUM + 8 * P + 2 * j), vr(NUM + 8 * P + 2 * j + 1)))
        e("v_permlane16_swap_b32 %s, %s" % (vr(OB + 4 * P), vr(OB + 4 * P + 2)))
        e("v_permlane16_swap_b32 %s, %s" % (vr(OB + 4 * P + 1), vr(OB + 4 * P + 3)))
        e("buffer_store_dwordx4 %s, %s, %s, s%d offen sc1 ;@ost" % (vr(OB + 4 * P, 4), vr(vOS + P), sr(SWS, 4), s_b[0]))
    k.stamp("o_st")
    k.nv = PERS2
    va = k.alloc(3)
    vc = k.alloc(6)
    vst, l16b, vcw, vcr = k.alloc(), k.alloc(), k.alloc(), k.alloc()
    cl = k.alloc(2, 2)
    STR = k.alloc(8, 4)
    BR = k.alloc(14, 2)
    tmp4 = BR + 8
    BF = k.alloc(28, 4)
    ACC = k.alloc(56, 4)
    WB = [k.alloc(28, 4) for _ in range(2)]
    CF = k.alloc(28, 4)
    XF = CF
    SS = CF + 16
    OF = ACC
    assert XF >= NM + 16 and XF > TO + 4
    st = list(wr)
    for P in range(2):
        st.append("v_permlane16_swap_b32 %s, %s" % (vr(HB + 4 * P), vr(HB + 4 * P + 2)))
        st.append("v_permlane16_swap_b32 %s, %s" % (vr(HB + 4 * P + 1), vr(HB + 4 * P + 3)))
    for j in range(8):
        st.append("v_lshlrev_b32 %s, 16, %s" % (vr(XF + 2 * j), vr(HB + j)))
        st.append("v_and_b32 %s, 0xffff0000, %s" % (vr(XF + 2 * j + 1), vr(HB + j)))
    s_rt2 = s_a[0]
    st.append("s_lshl_b32 s%d, s%d, 2" % (s_rt2, s_rb2))
    st.append("s_add_u32 s%d, s%d, s%d" % (s_rt2, s_rt2, s_w))
    st.append("s_lshl_b32 s%d, s%d, 2" % (s_b[0], s_rt2))
    st.append("s_add_u32 s%d, s%d, s%d" % (s_b[0], s_b[0], s_r))
    st.append("s_lshl_b32 s%d, s%d, 12" % (s_b[0], s_b[0]))
    st.append("s_add_u32 s%d, s%d, 0x%x" % (s_b[0], s_b[0], WS_O))
    for p in range(1, 4):
        st.append("s_xor_b32 s%d, s%d, 0x%x" % (s_b[p], s_b[0], p << 12))
    st.append("v_bfe_u32 %s, v0, 4, 2" % vr(t3))
    st.append("v_lshlrev_b32 %s, 3, %s" % (vr(t3), vr(t3)))
    G2A = opt("g2a", 4)
    done = 28 - len(W1Q)
    assert done + G2A <= 21
    W = Weave(st)
    q = mall(opt("mc", 0)) + W1Q[:G2A]
    W.every(q, 1, max(2, len(st) // max(len(q), 1)))
    W1Q = W1Q[G2A:]
    e(W.out())
    e(flag(s_fa, "ost", 64))
    k.stamp("flagB")
    e("s_waitcnt lgkmcnt(0)")
    e("s_barrier")
    KS4 = []
    for ee in range(2):
        for c in (2 * ee, 2 * ee + 1):
            for a in range(3):
                KS4.append(("r", c, a))
        KS4.append(("s", ee))
    s_w2c = s_c[4:8]
    s_w8 = s_m0w
    s_h, s_st, s_fc = s_a[1], s_a[2], s_a[3]
    st = []
    st.append("s_lshl_b32 s%d, s%d, 13" % (s_w8, s_w))
    st.append("s_mul_i32 s%d, s%d, %d" % (s_to, s_w, 448 * 1024))
    st.append("s_lshl_b32 s%d, s%d, 7" % (s_t, s_cb))
    st.append("s_add_u32 s%d, s%d, s%d" % (s_to, s_to, s_t))
    for p in range(4):
        st.append("s_xor_b32 s%d, s%d, %d" % (s_t, s_r, p))
        st.append("s_mul_i32 s%d, s%d, %d" % (s_t, s_t, 112 * 1024))
        st.append("s_add_u32 s%d, s%d, s%d" % (s_w2c[p], s_t, s_to))
    st.append("v_bfe_u32 %s, v0, 2, 4" % vr(t0))
    st.append("v_mul_u32_u24 %s, 224, %s" % (vr(t0), vr(t0)))
    st.append("v_and_b32 %s, 3, v0" % vr(t1))
    st.append("v_lshl_add_u32 %s, %s, 3, %s" % (vr(va), vr(t1), vr(t0)))
    for b in (1, 2):
        st.append("v_add_u32 %s, 0x%x, %s" % (vr(va + b), 65536 * b, vr(va)))
    st.append("s_lshl_b32 s%d, s%d, 5" % (s_t, s_w))
    st.append("s_add_u32 s%d, s%d, 128" % (s_to, s_t))
    st.append("s_cmp_eq_u32 s%d, 3\ns_cselect_b32 s%d, s%d, s%d" % (s_w, s_to, s_t, s_to))
    for b in range(3):
        st.append("v_add_u32 %s, s%d, %s" % (vr(vc + 2 * b), s_t, vr(va + b)))
        st.append("v_add_u32 %s, s%d, %s" % (vr(vc + 2 * b + 1), s_to, vr(va + b)))
    st.append("v_lshlrev_b32 %s, 1, %s" % (vr(vcr), vr(t3)))
    st.append("v_add_u32 %s, %d, %s" % (vr(vcr), L_CS, vr(vcr)))
    st.append("s_lshl_b32 s%d, s%d, 6" % (s_t, s_w))
    st.append("v_add_u32 %s, s%d, %s" % (vr(vcw), s_t, vr(vcr)))
    st.append("v_and_b32 %s, 15, v0" % vr(t0))
    st.append("v_lshlrev_b32 %s, 5, %s" % (vr(t1), vr(t3)))
    st.append("v_lshl_add_u32 %s, %s, 3, %s" % (vr(vst), vr(t0), vr(t1)))
    st.append("v_add_u32 %s, 16384, %s" % (vr(l16b), vr(l16)))
    st.append("v_mov_b32 %s, %s" % (vr(cl), f32(LOG2E)))
    st += ["s_lshl_b32 s%d, s%d, 3" % (s_t, s_rt2),
           "s_add_u32 s%d, s%d, s%d" % (s_t, s_t, s_cb),
           "s_lshl_b32 s%d, s%d, 11" % (s_h, s_t),
           "s_add_u32 s%d, s%d, 0x%x" % (s_h, s_h, WS_H),
           "s_lshl_b32 s%d, s%d, 7" % (s_t, s_t),
           "s_add_u32 s%d, s%d, 0x%x" % (s_st, s_t, WS_ST),
           "s_add_u32 s%d, s%d, 0x%x" % (s_fc, s_t, WS_FC),
           "s_lshl_b32 s%d, s%d, 7" % (s_t, s_rb2),
           "s_add_u32 s%d, s%d, 0x%x" % (s_t, s_t, WS_FA),
           "v_lshlrev_b32 %s, 5, %s" % (vr(t2), vr(l128))]
    G2B = opt("g2b", 7)
    bl = [([], "buffer_load_dwordx2 %s, %s, %s, s%d offen offset:%d ;@bias" % (vr(BR + 2 * u, 2), vr(t3), sr(SB1, 4), s_w1b, 32 * u)) for u in range(7)]
    q = mall(opt("md", 0)) + W1Q[:G2B] + bl
    W1Q = W1Q[G2B:]
    W = Weave(st)
    left = W.every(q, 1, max(2, len(st) // len(q)))
    e(W.out())
    e(flat(left))
    NA = (28 - len(W1Q)) // 7
    k.stamp("g2_iss")
    poll(t2, 32, SWS, "s%d" % s_t, imm=64)
    k.stamp("pollB")
    ol = [([], "buffer_load_dwordx4 %s, %s, %s, s%d offen offset:%d sc1 ;@o%d" % (vr(OF + 4 * ks, 4), vr(l16), sr(SWS, 4), s_b[ks >> 2], (ks & 3) * 1024, ks))
          for ks in range(16)]
    P2N = opt("p2n", 10)
    W = Weave(flat(ol[:P2N]))
    bc = []
    for j in range(14):
        bc.append("v_lshlrev_b32 %s, 16, %s" % (vr(BF + 2 * j), vr(BR + j)))
        bc.append("v_and_b32 %s, 0xffff0000, %s" % (vr(BF + 2 * j + 1), vr(BR + j)))
        bc.append("v_pk_mul_f32 %s, %s, %s op_sel_hi:[1,0]" % (vr(BF + 2 * j, 2), vr(BF + 2 * j, 2), vr(cl, 2)))
    bc.append("v_lshrrev_b32 %s, 1, %s" % (vr(t3), vr(l16)))
    W.fill(bc, 3, cap=6)
    e(W.out())
    e("s_barrier")
    mm = []
    for ks in range(16):
        for nt in range(4):
            x = mfma32(XF + 4 * nt, WF + 16 * ks + 4 * nt, OF + 4 * ks)
            if nt == 0:
                x = "WAITVM o%d\n" % ks + x
            mm.append(x)
    W = Weave(mm)
    G3Z = opt("g3z", 7)
    left = W.every(ol[P2N:] + W1Q[:G3Z], 2, 4)
    assert not left
    W1Q = W1Q[G3Z:]
    e(W.out())
    k.stamp("p2_mm")
    for j in range(8):
        e("v_cvt_pk_bf16_f32 %s, %s, %s" % (vr(HB + j), vr(XF + 2 * j), vr(XF + 2 * j + 1)))
        if j & 3 == 3:
            e("buffer_store_dwordx4 %s, %s, %s, s%d offen offset:%d sc1" % (vr(HB + j - 3, 4), vr(l16), sr(SWS, 4), s_h, (j >> 2) * 1024))
    for q in range(2):
        e("v_dot2_f32_bf16 %s, %s, %s, 0" % (vr(SS + 2 * q), vr(HB + q), vr(ones)))
        e("v_dot2_f32_bf16 %s, %s, %s, 0" % (vr(SS + 2 * q + 1), vr(HB + q), vr(HB + q)))
    for j in range(2, 8):
        q = j & 1
        e("v_dot2_f32_bf16 %s, %s, %s, %s" % (vr(SS + 2 * q), vr(HB + j), vr(ones), vr(SS + 2 * q)))
        e("v_dot2_f32_bf16 %s, %s, %s, %s" % (vr(SS + 2 * q + 1), vr(HB + j), vr(HB + j), vr(SS + 2 * q + 1)))
    e("v_pk_add_f32 %s, %s, %s" % (vr(SS, 2), vr(SS, 2), vr(SS + 2, 2)))

    def xg_reduce(regs, tmp):
        o = []
        for sw in ("v_permlane16_swap_b32", "v_permlane32_swap_b32"):
            for j, r in enumerate(regs):
                o.append("v_mov_b32 %s, %s" % (vr(tmp + j), vr(r)))
            for j, r in enumerate(regs):
                o.append("%s %s, %s" % (sw, vr(r), vr(tmp + j)))
            for j, r in enumerate(regs):
                o.append("v_add_f32 %s, %s, %s" % (vr(r), vr(r), vr(tmp + j)))
        return o
    e(xg_reduce([SS, SS + 1], t0))
    e("s_mov_b64 exec, 0xffff")
    e("buffer_store_dwordx2 %s, %s, %s, s%d offen sc1 ;@hst" % (vr(SS, 2), vr(t3), sr(SWS, 4), s_st))
    e("s_mov_b64 exec, -1")
    k.stamp("h_st")
    W2E = opt("w2e", 0)
    if W2E:
        W2L = {0: 98304, 1: 102400, 2: 98304, 3: 102400, 4: 131072, 5: 135168, 6: 0, 7: 4096,
               8: 32768, 9: 36864, 10: 65536, 11: 69632, 12: 98304, 13: 102400}
    else:
        W2L = {0: 98304, 1: 102400, 2: 131072, 3: 135168, 4: 0, 5: 4096, 6: 32768, 7: 36864,
               8: 65536, 9: 69632, 10: 98304, 11: 102400, 12: 131072, 13: 135168}

    def w2_dma(n):
        kd = KS4[n]
        o = []
        for i in range(4):
            pre = []
            if i == 0:
                if kd[0] == "r":
                    pre.append("s_add_u32 s%d, s%d, %d" % (s_t2, s_w2c[kd[1]], kd[2] * 32768))
                else:
                    pre.append("s_add_u32 s%d, s%d, %d" % (s_t2, s_w2c[2 * kd[1]], 6 * 16384))
                pre.append("s_add_u32 m0, s%d, %d" % (s_w8, W2L[n]))
                prev = [x for x in range(n) if W2L[x] == W2L[n]]
                if prev:
                    pre.append("WAITLG r2_%d" % prev[-1])
            if i == 2 and kd[0] == "s":
                pre.append("s_add_u32 s%d, s%d, %d" % (s_t2, s_w2c[2 * kd[1] + 1], 5 * 16384))
            o.append((pre, "buffer_load_dwordx4 %s, %s, s%d offen offset:%d lds ;@w2_%d_%d" % (vr(VD + i), sr(SW2, 4), s_t2, i * 1024, n, i)))
        return o

    W2R = {}
    for n in range(8):
        W2R[n] = A0 + 128 + 16 * n
    W2A = {1: TA}

    def w2_rd(n, wait=True):
        addr = W2A[W2L[n] >> 16]
        off = W2L[n] & 0xffff
        o = ["ds_read_b64_tr_b16 %s, %s offset:%d" % (vr(W2R[n] + 4 * nt + 2 * hf, 2), vr(addr + nt), off + hf * 2048)
             for nt in range(4) for hf in range(2)]
        o[-1] += " ;@r2_%d" % n
        if wait:
            o[0] = "WAITVM w2_%d_3\n" % n + o[0]
        return o

    CS = ACC

    def w1pos(t):
        p = L_W1[t >> 2] + (t & 3) * 7168
        return p >> 16, p & 0xffff

    CB = WB[0]

    def colsum(ta, tb):
        cr = {}
        for t in range(ta, tb):
            b, off = w1pos(t)
            cr[t] = [("ds_read_b64_tr_b16 %s, %s offset:%d ;@cs%d" % (vr(CB + 8 * (t % 6) + 4 * c + 2 * hf, 2), vr(vc + 2 * b + c), off + hf * 3584, t))
                     for c in range(2) for hf in range(2)]
        o = []
        for t in range(ta, min(tb, ta + 3)):
            o += cr[t]
        for t in range(ta, tb):
            z = "0" if t == 0 else None
            o.append("WAITLG cs%d\n" % t + mfma32(CS, CB + 8 * (t % 6), ones, z))
            if t + 3 < tb:
                o += cr[t + 3][:2]
            o.append(mfma32(CS + 4, CB + 8 * (t % 6) + 4, ones, z))
            if t + 3 < tb:
                o += cr[t + 3][2:]
        return o

    s_rt3 = s_a[0]
    st = colsum(0, 4 * NA)
    st += ["s_lshl_b32 s%d, s%d, 2" % (s_rt3, s_g3),
           "s_add_u32 s%d, s%d, s%d" % (s_rt3, s_rt3, s_w),
           "s_lshl_b32 s%d, s%d, 11" % (s_t, s_rt3),
           "s_add_u32 s%d, s%d, 0x%x" % (s_st, s_t, WS_ST),
           "s_add_u32 s%d, s%d, 0x%x" % (s_t, s_t, WS_FC),
           "s_lshl_b32 s%d, s%d, 3" % (s_b[0], s_rt3),
           "s_add_u32 s%d, s%d, s%d" % (s_b[0], s_b[0], s_r),
           "s_lshl_b32 s%d, s%d, 12" % (s_b[0], s_b[0]),
           "s_add_u32 s%d, s%d, 0x%x" % (s_b[0], s_b[0], WS_H)]
    for p in range(1, 4):
        st.append("s_xor_b32 s%d, s%d, 0x%x" % (s_b[p], s_b[0], p << 12))
    W2Q = sum([w2_dma(n) for n in range(14)], [])
    G3A = opt("g3a", 7)
    q = W1Q[:G3A] + mall(opt("me", 0))
    W1Q = W1Q[G3A:]
    W = Weave(st)
    left = W.every(q, 1, max(2, min(10, len(st) // max(len(q), 1))))
    e(W.out())
    e(flat(left))
    e(flag(s_fc, "hst"))
    k.stamp("flagC")
    k.flush()
    e(flat(W1Q + mall(opt("mf", 0))))
    if W2E:
        e(flat(W2Q[:8]))
        W2Q = W2Q[8:]
    if NA < 4:
        e("WAITVM w1g3")
        e("s_barrier")
        e(colsum(4 * NA, 16))
    setexec(16)
    e(poll_load(l128, SWS, "s%d" % s_t, vP) + " ;@pc")
    e("s_mov_b64 exec, -1")
    e("ds_write_b128 %s, %s" % (vr(vcw), vr(CS, 4)))
    e("ds_write_b128 %s, %s offset:256" % (vr(vcw), vr(CS + 4, 4)))

    def w1reads(t):
        b, off = w1pos(t)
        return ["ds_read_b64_tr_b16 %s, %s offset:%d ;@a%d_%d" % (vr(WB[t & 1] + 4 * u + 2 * hf, 2), vr(va + b), off + 32 * u + hf * 3584, t, u)
                for u in range(7) for hf in range(2)]
    e(w1reads(0))
    k.stamp("cs_done")
    e("WAITVM pc")
    poll(l128, 16, SWS, "s%d" % s_t, first=vP)
    k.stamp("pollC")
    HF = A0
    hl = []
    for t in range(16):
        for rt in range(2):
            hl.append(([], "buffer_load_dwordx4 %s, %s, %s, s%d offen offset:%d sc1 ;@h%d" % (vr(HF + 8 * t + 4 * rt, 4), vr(l16b if rt else l16), sr(SWS, 4), s_b[t >> 2], (t & 3) * 1024, t)))
    stl = [([], "buffer_load_dwordx2 %s, %s, %s, s%d offen offset:%d sc1 ;@st" % (vr(STR + 4 * rt + 2 * i, 2), vr(vst), sr(SWS, 4), s_st, rt * 1024 + i * 128))
           for rt in range(2) for i in range(2)]
    P3N = opt("p3n", 10)
    W = Weave(flat(hl[:P3N]))
    if W2E:
        W.fill(w2_rd(0, False) + w2_rd(1, False), 2, cap=3)
    e(W.out())
    mm = []
    for t in range(16):
        z = "0" if t == 0 else None
        x = [mfma32(ACC + 8 * u + 4 * rt, WB[t & 1] + 4 * u, HF + 8 * t + 4 * rt, z) for u in range(7) for rt in range(2)]
        pre = "WAITVM h%d\nWAITLG a%d_2\n" % (t, t)
        if t == 8:
            pre = "s_barrier\n" + pre
        if t in (0, 1, 8, 15):
            pre += k.stamp_text("t%d" % t) + "\n"
        x[0] = pre + x[0]
        x[6] = "WAITLG a%d_6\n" % t + x[6]
        mm += x
    W = Weave(mm)
    for t in range(15):
        for i, r in enumerate(w1reads(t + 1)):
            W.at(14 * t + i + 1, r)
    q = hl[P3N:] + stl
    HS = opt("p3s", 4)
    W.every(q, 2, HS)
    P3T = opt("p3t", 4)
    pos = 2 + HS * len(q)
    W.every(W2Q[:8], pos, P3T)
    pos = max(pos + 8 * P3T, 14 * 8 + 2)
    left = W.every(W2Q[8:24], pos, P3T)
    W2Q = left + W2Q[24:]
    cfr = ["ds_read_b128 %s, %s offset:%d" % (vr(CF + 4 * u, 4), vr(vcr), u * 64) for u in range(7)]
    W.fill(cfr, 14 * 8 + 3, cap=2)
    sv = []
    for rt in range(2):
        sv.append(("WAITVM st\n" if rt == 0 else "") + "v_add_f32 %s, %s, %s" % (vr(STR + 4 * rt), vr(STR + 4 * rt), vr(STR + 4 * rt + 2)))
        sv.append("v_add_f32 %s, %s, %s" % (vr(STR + 4 * rt + 1), vr(STR + 4 * rt + 1), vr(STR + 4 * rt + 3)))
    sv += xg_reduce([STR, STR + 1, STR + 4, STR + 5], tmp4)
    for op in range(8):
        for rt in range(2):
            a, b = STR + 4 * rt, STR + 4 * rt + 1
            sv.append(["v_mul_f32 %s, %s, %s" % (vr(a), f32(-1.0 / 512), vr(a)),
                       "v_mul_f32 %s, %s, %s" % (vr(b), f32(1.0 / 512), vr(b)),
                       "v_fma_f32 %s, -%s, %s, %s" % (vr(b), vr(a), vr(a), vr(b)),
                       "v_max_f32 %s, 0, %s" % (vr(b), vr(b)),
                       "v_add_f32 %s, %s, %s" % (vr(b), f32(1e-5), vr(b)),
                       "v_rsq_f32 %s, %s" % (vr(b), vr(b)),
                       "v_mul_f32 %s, %s, %s" % (vr(b), f32(LOG2E), vr(b)),
                       "v_mul_f32 %s, %s, %s" % (vr(a), vr(a), vr(b))][op])
    s_ac0, s_ac1, s_fd = s_a[1], s_a[2], s_a[3]
    sv += ["s_lshl_b32 s%d, s%d, 4" % (s_t, s_rt3),
           "s_add_u32 s%d, s%d, s%d" % (s_t, s_t, s_cb3),
           "s_mul_i32 s%d, s%d, 7168" % (s_ac0, s_t),
           "s_add_u32 s%d, s%d, 0x%x" % (s_ac0, s_ac0, WS_ACT),
           "s_add_u32 s%d, s%d, 3072" % (s_ac1, s_ac0),
           "s_lshl_b32 s%d, s%d, 7" % (s_fd, s_t),
           "s_add_u32 s%d, s%d, 0x%x" % (s_fd, s_fd, WS_FD)]
    W.fill(sv, 14 * 10, cap=2)
    nrd = 2 * W2E
    if opt("rdl", 1):
        W.fill(w2_rd(nrd) + w2_rd(nrd + 1), 14 * 15 + 1, cap=2)
        nrd += 2
    e(W.out())
    e("s_waitcnt lgkmcnt(0)")
    k.stamp("p3_mm")
    e("s_barrier")
    tm = BR
    OB = WB[0]

    def mish(u, rt, ob):
        S2 = STR + 4 * rt
        o = []
        for hp in range(2):
            a = ACC + 8 * u + 4 * rt + 2 * hp
            C, E = tm + 4 * hp, tm + 4 * hp + 2
            o.append("v_pk_fma_f32 %s, %s, %s, %s op_sel_hi:[1,0,1]" % (vr(C, 2), vr(CF + 4 * u + 2 * hp, 2), vr(S2, 2), vr(BF + 4 * u + 2 * hp, 2)))
            o.append("v_pk_fma_f32 %s, %s, %s, %s op_sel:[0,1,0] op_sel_hi:[1,1,1]" % (vr(a, 2), vr(a, 2), vr(S2, 2), vr(C, 2)))
            o.append("v_exp_f32 %s, %s" % (vr(E), vr(a)))
            o.append("v_exp_f32 %s, %s" % (vr(E + 1), vr(a + 1)))
        for hp in range(2):
            C, E = tm + 4 * hp, tm + 4 * hp + 2
            o.append("v_pk_fma_f32 %s, %s, -0.5, -1.0 op_sel_hi:[1,0,0]" % (vr(C, 2), vr(E, 2)))
            o.append("v_pk_fma_f32 %s, %s, %s, -1.0 op_sel_hi:[1,1,0]" % (vr(C, 2), vr(E, 2), vr(C, 2)))
            o.append("v_rcp_f32 %s, %s" % (vr(C), vr(C)))
            o.append("v_rcp_f32 %s, %s" % (vr(C + 1), vr(C + 1)))
        for hp in range(2):
            a = ACC + 8 * u + 4 * rt + 2 * hp
            C = tm + 4 * hp
            o.append("v_pk_fma_f32 %s, %s, %s, %s" % (vr(a, 2), vr(C, 2), vr(a, 2), vr(a, 2)))
            o.append("v_cvt_pk_bf16_f32 %s, %s, %s" % (vr(ob + hp), vr(a), vr(a + 1)))
        return o

    pieces = [(rt, a) for a in range(3) for rt in range(2)] + [None]
    EPW = opt("epw", 0)
    for pi, pc in enumerate(pieces):
        ob = OB + 4 * pi
        if pc is None:
            body = mish(6, 0, ob) + mish(6, 1, ob + 2)
            stx = "buffer_store_dwordx4 %s, %s, %s, s%d offen offset:3072 sc1 ;@ast" % (vr(ob, 4), vr(l16), sr(SWS, 4), s_ac1)
        else:
            rt, a = pc
            body = mish(2 * a, rt, ob) + mish(2 * a + 1, rt, ob + 2)
            stx = "buffer_store_dwordx4 %s, %s, %s, s%d offen offset:%d sc1 ;@ast" % (vr(ob, 4), vr(l16), sr(SWS, 4), (s_ac0, s_ac1)[rt], a * 1024)
        W = Weave(body)
        if EPW:
            W.every(W2Q[:EPW], 12, 12)
            W2Q = W2Q[EPW:]
        e(W.out())
        e(stx)
    k.stamp("act_st")
    k.nv = PERS
    VA = k.alloc(4)
    VS = k.alloc(2)
    vrw = k.alloc()
    vrr = k.alloc(3)
    W2A[0] = k.alloc(4)
    W2A[2] = k.alloc(4)
    assert k.nv <= ACC
    AC4 = k.alloc(64, 4)
    SG = k.alloc(32, 4)
    for n in range(8, 14):
        W2R[n] = k.alloc(16, 4)
    st = []
    for nt in range(4):
        st.append("v_add_u32 %s, 65536, %s" % (vr(W2A[2] + nt), vr(TA + nt)))
        st.append("v_subrev_u32 %s, 65536, %s" % (vr(W2A[0] + nt), vr(TA + nt)))
    niss = (56 - len(W2Q)) // 4
    while nrd < min(niss, 8):
        st += w2_rd(nrd)
        nrd += 1
    st.append("v_add_u32 %s, s%d, %s" % (vr(vrw), s_w8, vr(l16)))
    for v in range(4):
        st.append("s_xor_b32 s%d, s%d, %d" % (s_to, s_w, v))
        if v:
            st.append("v_xor_b32 %s, 0x%x, %s" % (vr(vrr + v - 1), v << 13, vr(vrw)))
        st.append("s_lshr_b32 s%d, s%d, 1" % (s_t, s_to))
        st.append("s_mul_i32 s%d, s%d, %d" % (s_t, s_t, 16 * 7168))
        if v & 1 == 0:
            st.append("v_add_u32 %s, s%d, %s" % (vr(VS + (v >> 1)), s_t, vr(l16)))
            st.append("v_add_u32 %s, 6144, %s" % (vr(VS + (v >> 1)), vr(VS + (v >> 1))))
        st.append("s_and_b32 s%d, s%d, 1" % (s_to, s_to))
        st.append("s_mul_i32 s%d, s%d, 3072" % (s_to, s_to))
        st.append("s_add_u32 s%d, s%d, s%d" % (s_t, s_t, s_to))
        st.append("v_add_u32 %s, s%d, %s" % (vr(VA + v), s_t, vr(l16)))
    G4A = opt("g4a", 8)
    W = Weave(st)
    left = W.every(W2Q[:G4A], 1, max(2, len(st) // max(G4A, 1)))
    assert not left
    W2Q = W2Q[G4A:]
    niss = (56 - len(W2Q)) // 4
    e(W.out())
    e(flag(s_fd, "ast"))
    k.stamp("flagD")
    k.flush()
    s_ap = s_c[0:4]
    st = []
    st.append("s_lshl_b32 s%d, s%d, 3" % (s_t, s_rb2))
    st.append("s_add_u32 s%d, s%d, s%d" % (s_t, s_t, s_w))
    st.append("s_lshl_b32 s%d, s%d, 2" % (s_t, s_t))
    for p in range(4):
        st.append("s_xor_b32 s%d, s%d, %d" % (s_to, s_r, p))
        st.append("s_add_u32 s%d, s%d, s%d" % (s_to, s_to, s_t))
        st.append("s_mul_i32 s%d, s%d, 7168" % (s_to, s_to))
        st.append("s_add_u32 s%d, s%d, 0x%x" % (s_ap[p], s_to, WS_ACT))
    st.append("\n".join(["s_bitcmp1_b32 s%d, 0" % s_w] + ["s_cselect_b32 s%d, s%d, s%d" % (s_b[c], s_ap[c ^ 1], s_ap[c]) for c in range(4)]))
    st.append("s_lshl_b32 s%d, s%d, 7" % (s_t, s_t))
    st.append("s_add_u32 s%d, s%d, 0x%x" % (s_t, s_t, WS_FD))
    st.append("v_bfe_u32 %s, v0, 2, 1" % vr(t0))
    st.append("v_lshlrev_b32 %s, 11, %s" % (vr(t0), vr(t0)))
    st.append("v_and_b32 %s, 3, v0" % vr(t1))
    st.append("v_lshl_add_u32 %s, %s, 7, %s" % (vr(t0), vr(t1), vr(t0)))
    st0 = []
    while nrd < min(niss, 4):
        st0 += w2_rd(nrd)
        nrd += 1
    W = Weave(st0 + st)
    left = W.every(W2Q, 1, 2)
    e(W.out())
    e(flat(left))
    setexec(8)
    e(poll_load(t0, SWS, "s%d" % s_t, vP) + " ;@pd")
    e("s_mov_b64 exec, -1")
    for n in range(nrd, 12):
        e(w2_rd(n))
    k.stamp("w2_in")
    e("WAITVM pd")
    poll(t0, 8, SWS, "s%d" % s_t, first=vP)
    k.stamp("pollD")
    ring = [0]
    AF = {}
    loads = []
    order = (2, 3, 1, 0)
    for v in order:
        for n, kd in enumerate(KS4):
            if kd[0] == "r":
                _, c, a = kd
                AF[(n, v)] = A0 + 4 * (ring[0] % 32)
                ring[0] += 1
                loads.append(([], "buffer_load_dwordx4 %s, %s, %s, s%d offen offset:%d sc1 ;@x%d_%d" % (vr(AF[(n, v)], 4), vr(VA + v), sr(SWS, 4), s_ap[c], a * 1024, v, n)))
            elif v in (2, 1):
                ee, pp = kd[1], v >> 1
                for ab in range(2):
                    AF[(n, 2 * pp + ab)] = SG + 16 * ee + 8 * pp + 4 * ab
                    loads.append(([], "buffer_load_dwordx4 %s, %s, %s, s%d offen sc1 ;@x%d_%d" % (vr(AF[(n, 2 * pp + ab)], 4), vr(VS + pp), sr(SWS, 4), s_b[2 * ee + ab], v, n)))
    N0 = opt("p4n0", 12)
    assert N0 <= 26
    W = Weave(flat(loads[:N0]))
    W.fill(w2_rd(12, False) + w2_rd(13, False), 2, cap=3)
    e(W.out())
    mm = []
    for v in order:
        for n, kd in enumerate(KS4):
            x = [mfma32(AC4 + 16 * v + 4 * nt, W2R[n] + 4 * nt, AF[(n, v)], "0" if n == 0 else None) for nt in range(4)]
            pre = []
            if kd[0] == "r" or v in (2, 1):
                pre.append("WAITVM x%d_%d" % (v, n))
            if v == 2 and n == 0:
                pre.append("WAITLG r2_11")
            if v == 2 and n == 12:
                pre.append("WAITLG r2_13")
            if kd[0] == "s" and v in (2, 1):
                ee, pp = kd[1], v >> 1
                A = SG + 16 * ee + 8 * pp
                lb = "%d_%d" % (ee, pp)
                pre += ["s_bitcmp1_b32 s%d, 0" % s_w, "s_cbranch_scc1 L_odd" + lb,
                        "v_swap_b32 %s, %s" % (vr(A + 2), vr(A + 4)), "v_swap_b32 %s, %s" % (vr(A + 3), vr(A + 5)),
                        "s_branch L_sw" + lb, "L_odd%s:" % lb,
                        "v_swap_b32 %s, %s" % (vr(A + 0), vr(A + 6)), "v_swap_b32 %s, %s" % (vr(A + 1), vr(A + 7)),
                        "L_sw%s:" % lb, "s_nop 1"]
            if n == 0:
                pre.append(k.stamp_text("v%d" % v))
            x[0] = "\n".join(pre + [x[0]])
            mm += x
    W = Weave(mm)
    left = W.every(loads[N0:], 2, 4)
    assert not left
    ROFF = {1: 0, 2: 4096, 3: 32768}
    for i, v in enumerate(order[:3]):
        for nt in range(4):
            W.at(56 * (i + 1) + 3 + 4 * nt, "ds_write_b128 %s, %s offset:%d" % (vr(vrw), vr(AC4 + 16 * v + 4 * nt, 4), ROFF[v] + nt * 1024), cost=2)
    XF = SG + 8
    XR_ = [SG + 8 + j for j in range(8)] + [SG + 24 + j for j in range(8)]
    cl = t2
    unp = ["v_mov_b32 %s, %s" % (vr(cl), f32(LN2))]
    for j in range(8):
        unp.append("v_lshlrev_b32 %s, 16, %s" % (vr(XR_[2 * j]), vr(HB + j)))
        unp.append("v_and_b32 %s, 0xffff0000, %s" % (vr(XR_[2 * j + 1]), vr(HB + j)))
    W.fill(unp, 56 * 2 + 24, cap=1)
    YB = 56 * 3 + opt("yb", 20)
    W.at(YB, "s_waitcnt lgkmcnt(0)\ns_barrier\n" + k.stamp_text("red_bar"))
    rl = ["ds_read_b128 %s, %s offset:%d ;@p%d" % (vr(AC4 + 16 * v + 4 * nt, 4), vr(vrr + v - 1), ROFF[v] + nt * 1024, v) for v in (1, 2, 3) for nt in range(4)]
    pos = W.fill(rl, YB, cap=3)
    ad = []
    for v in (1, 2, 3):
        for j in range(16):
            x = "v_fmac_f32 %s, %s, %s" % (vr(XR_[j]), vr(AC4 + 16 * v + j), vr(cl))
            if j == 0:
                x = "WAITLG p%d\n" % v + x
            ad.append(x)
    W.fill(ad, pos + 4, cap=2)
    e(W.out())
    k.stamp("y_done")
    for j in range(8):
        e("v_fmac_f32 %s, %s, %s" % (vr(XR_[2 * j]), vr(AC4 + 2 * j), vr(cl)))
        e("v_fmac_f32 %s, %s, %s" % (vr(XR_[2 * j + 1]), vr(AC4 + 2 * j + 1), vr(cl)))
        e("v_cvt_pk_bf16_f32 %s, %s, %s" % (vr(HB + j), vr(XR_[2 * j]), vr(XR_[2 * j + 1])))
        if j & 3 == 3:
            P = j >> 2
            e("v_permlane16_swap_b32 %s, %s" % (vr(HB + 4 * P), vr(HB + 4 * P + 2)))
            e("v_permlane16_swap_b32 %s, %s" % (vr(HB + 4 * P + 1), vr(HB + 4 * P + 3)))
            e("buffer_store_dwordx4 %s, %s, %s, s%d offen offset:%d" % (vr(HB + 4 * P, 4), vr(vxo), sr(SOUT, 4), s_xo, P * 64))
    if FINE:
        k.stamp("issued")
        e("s_waitcnt vmcnt(0)")
        k.stamp("drained")
        k.flush()
        e("v_lshlrev_b32 %s, 2, v0" % vr(t0))
        e("s_lshl_b32 s%d, s2, 10" % s_t)
        e("s_add_u32 s%d, s%d, 0x%x" % (s_t, s_t, WS_STAMP))
        e("buffer_store_dword v255, %s, %s, s%d offen" % (vr(t0), sr(SWS, 4), s_t))
        open(OUT + ".txt", "w").write(" ".join(k.stamps))
    e("L_done:\ns_endpgm")
    return k


def main():
    k = build()
    L = []
    L.append("; @launch grid=(256,1,1) block=(256,1,1) lds=163840")
    L.append('.amdgcn_target "amdgcn-amd-amdhsa--gfx950"')
    L.append(".text")
    L += hz.fix(resolve(k.L))
    L.append("L_code_end:")
    L.append('.section .rodata,"a"')
    L.append(".p2align 6\n.amdhsa_kernel %s" % NAME)
    L.append("  .amdhsa_next_free_vgpr 512\n  .amdhsa_next_free_sgpr 102\n  .amdhsa_accum_offset 256")
    L.append("  .amdhsa_group_segment_fixed_size 0\n  .amdhsa_kernarg_size 80\n  .amdhsa_user_sgpr_count 2\n"
             "  .amdhsa_user_sgpr_kernarg_segment_ptr 1\n  .amdhsa_system_sgpr_workgroup_id_x 1\n.end_amdhsa_kernel")
    print("max vgpr", k.maxv, "lines", len(L))
    open(OUT, "w").write("\n".join(L) + "\n")


main()
```

```python
import sys, struct
sys.path.insert(0, "tools")
import hz

OUT = sys.argv[1]
OPTS = set(sys.argv[2:])
FINE = "fine" in OPTS
NAME = "sequential_preLN__linear_attn_block__dense_activation_mish__prompt_kernel"

WS_PART = 0x000000
WS_O = 0x100000
WS_H = 0x400000
WS_ST = 0x600000
WS_FA, WS_FC, WS_FD = 0x700000, 0x740000, 0x760000
FDS = 0x20000
WS_ACT = 0x800000
WS_STAMP = 0x8000000

L_RING = 65536
SLOT = 24576
L_SCR = 159744
L_WO = 65536
L_W1 = [131072, 0, 32768, 65536]
L_CS = 61440
TIMEOUT = 1000000
NSTAMP = 12

LOG2E = 1.4426950408889634
LN2 = 0.6931471805599453


def f32(x):
    return "0x%08x" % struct.unpack("<I", struct.pack("<f", x))[0]


def opt(name, default):
    for o in OPTS:
        if o.startswith(name + "="):
            return int(o.split("=")[1])
    return default


def opt_s(name, default):
    for o in OPTS:
        if o.startswith(name + "="):
            return o.split("=")[1]
    return default


NFD = opt("nfd", 2)


class K:
    def __init__(self):
        self.L = []
        self.nv = 1
        self.maxv = 1
        self.stamps = []
        self.pend = 0

    def e(self, s):
        if isinstance(s, (list, tuple)):
            for x in s:
                self.e(x)
        elif s:
            self.L.append(s)

    def stamp_text(self, name):
        if not FINE:
            return ""
        assert self.pend < NSTAMP, name
        t = "%s s[%d:%d]" % ("s_memtime" if "clk" in OPTS else "s_memrealtime", 72 + 2 * self.pend, 73 + 2 * self.pend)
        self.stamps.append(name)
        self.pend += 1
        return t

    def stamp(self, name=""):
        self.e(self.stamp_text(name))

    def flush(self):
        if not FINE or not self.pend:
            return
        self.e("s_waitcnt lgkmcnt(0)")
        base = len(self.stamps) - self.pend
        for n in range(self.pend):
            self.e("v_writelane_b32 v255, s%d, %d" % (72 + 2 * n, base + n))
        self.e("s_nop 3")
        self.pend = 0

    def alloc(self, n=1, align=1):
        if n >= 2 and align < 2:
            align = 2
        self.nv = (self.nv + align - 1) // align * align
        r = self.nv
        self.nv += n
        self.maxv = max(self.maxv, self.nv)
        assert self.nv <= (255 if FINE else 256), "out of VGPRs"
        return r


def resolve(lines):
    flat = []
    for l in lines:
        flat += l.split("\n")
    out = []
    vm, lg = [], []
    for l in flat:
        t = l.strip()
        if not t:
            continue
        if t.startswith("WAITVM") or t.startswith("WAITLG"):
            isvm = t.startswith("WAITVM")
            lst = vm if isvm else lg
            n = None
            for tag in t.split()[1:]:
                idx = max(i for i, x in enumerate(lst) if x == tag)
                c = len(lst) - 1 - idx
                n = c if n is None else min(n, c)
            n = min(n, 63 if isvm else 15)
            out.append("s_waitcnt %s(%d)" % ("vmcnt" if isvm else "lgkmcnt", n))
            continue
        tag = t.split(";@")[1].strip() if ";@" in t else "_"
        if t.startswith(("buffer_", "global_")):
            if tag != "cond":
                vm.append(tag)
        elif t.startswith("ds_"):
            lg.append(tag)
        out.append(l.split(";@")[0].rstrip())
    return out


class Weave:
    def __init__(self, main):
        self.main = list(main)
        self.s = [[] for _ in range(len(self.main) + 1)]
        self.c = [0] * (len(self.main) + 1)

    def at(self, i, items, cost=1):
        if not isinstance(items, (list, tuple)):
            items = [items]
        i = min(i, len(self.main))
        for x in items:
            if x:
                self.s[i].append(x)
                self.c[i] += cost

    def every(self, items, start, step, stop=None):
        stop = len(self.main) if stop is None else stop
        i = start
        items = list(items)
        while items and i <= stop:
            pre, ins = items.pop(0)
            self.at(max(i - 1, 0), pre)
            self.at(i, ins, cost=2)
            i += step
        return items

    def fill(self, items, start, cap=1, stop=None):
        stop = len(self.main) if stop is None else stop
        i = start
        for x in items:
            while i < stop and self.c[i] >= cap:
                i += 1
            self.at(i, x)
        return i

    def out(self):
        o = []
        for i, m in enumerate(self.main):
            o += self.s[i]
            o.append(m)
        o += self.s[-1]
        return o


def flat(items):
    o = []
    for pre, ins in items:
        o += list(pre)
        o.append(ins)
    return o


def vr(n, c=1):
    p = "v"
    if n >= 256:
        p = "a"
        n -= 256
    if c == 1:
        return "%s%d" % (p, n)
    return "%s[%d:%d]" % (p, n, n + c - 1)


def sr(n, c=1):
    return "s%d" % n if c == 1 else "s[%d:%d]" % (n, n + c - 1)


def mfma32(d, a, b, c=None):
    cs = vr(d, 4) if c is None else (c if isinstance(c, str) else vr(c, 4))
    return "v_mfma_f32_16x16x32_bf16 %s, %s, %s, %s" % (vr(d, 4), vr(a, 4), vr(b, 4), cs)


def mfma16(d, a, b, c):
    cs = c if isinstance(c, str) else vr(c, 4)
    return "v_mfma_f32_16x16x16_bf16 %s, %s, %s, %s" % (vr(d, 4), vr(a, 2), vr(b, 2), cs)


SX, SWQ, SWS, SDB, SWO, SW1, SW2, SB1, SOUT = 8, 12, 16, 20, 24, 28, 32, 36, 40
s_w, s_rb, s_cg, s_r, s_t = 3, 4, 5, 6, 7
s_t2, s_ox, s_w1b, s_m0x, s_m0w, s_xo, s_wob = 44, 45, 46, 47, 48, 49, 50
s_rb2, s_cb, s_g3, s_cb3 = 51, 52, 53, 54
s_a = [55, 56, 57, 58]
s_b = [59, 60, 61, 62]
s_to = 63
s_c = list(range(64, 72))
A0 = 256


def build():
    k = K()
    e = k.e
    e(".globl %s\n.p2align 8\n.type %s,@function\n%s:" % (NAME, NAME, NAME))
    e("s_cmp_ge_u32 s2, 256")
    e("s_cbranch_scc1 L_done")
    k.stamp("start")
    for base, off, size in ((SX, 0, 2048 * 1024), (SWQ, 8, 512 * 3072), (SWS, 72, 0x10000000), (SDB, 64, 256),
                            (SWO, 16, 512 * 1024), (SW1, 32, 512 * 3584), (SW2, 48, 1792 * 1024), (SB1, 40, 3584),
                            (SOUT, 56, 2048 * 1024)):
        e("s_load_dwordx2 %s, s[0:1], %d" % (sr(base, 2), off))
    for base, off, size in ((SX, 0, 2048 * 1024), (SWQ, 8, 512 * 3072), (SWS, 72, 0x10000000), (SDB, 64, 256),
                            (SWO, 16, 512 * 1024), (SW1, 32, 512 * 3584), (SW2, 48, 1792 * 1024), (SB1, 40, 3584),
                            (SOUT, 56, 2048 * 1024)):
        e("s_mov_b32 s%d, 0x%x" % (base + 2, size))
        e("s_mov_b32 s%d, 0x20000" % (base + 3))
    t0, t1, t2, t3 = k.alloc(), k.alloc(), k.alloc(), k.alloc()
    l16, l128, vone, vP = k.alloc(), k.alloc(), k.alloc(), k.alloc()
    vxo = k.alloc()
    VD = k.alloc(4)
    TA = k.alloc(4)
    HB = k.alloc(8, 4)
    ones = k.alloc(4, 4)
    PERS = k.nv
    V1 = k.alloc(7)
    vM14, vMd = k.alloc(), k.alloc()
    PERS2 = k.nv
    if FINE:
        e("v_mov_b32 v255, 0")
    e("v_lshrrev_b32 %s, 6, v0" % vr(t1))
    if opt("pfcode", 1):
        e("s_getpc_b64 s[96:97]")
        e("L_pc:")
        e("v_and_b32 %s, 3, v0" % vr(t0))
        e("v_lshl_add_u32 %s, %s, 2, %s" % (vr(t0), vr(t1), vr(t0)))
        e("s_lshr_b32 s%d, s2, 3" % s_t)
        e("s_lshl_b32 s%d, s%d, 11" % (s_t, s_t))
        e("v_lshl_add_u32 %s, %s, 7, s%d" % (vr(t0), vr(t0), s_t))
        e("v_min_u32 %s, L_code_end-L_pc-4, %s" % (vr(vP), vr(t0)))
        e("global_load_dword %s, %s, s[96:97]" % (vr(vP), vr(vP)))
    s_ph = s_a[3]
    e("s_bfe_u32 s%d, s2, 0x20001" % s_rb)
    e("s_lshl_b32 s%d, s%d, 3" % (s_rb, s_rb))
    e("s_bfe_u32 s%d, s2, 0x30003" % s_ph)
    e("s_add_u32 s%d, s%d, s%d" % (s_rb, s_rb, s_ph))
    e("s_and_b32 s%d, s2, 1" % s_cg)
    e("s_lshl_b32 s%d, s%d, 2" % (s_cg, s_cg))
    e("s_lshr_b32 s%d, s2, 6" % s_t2)
    e("s_add_u32 s%d, s%d, s%d" % (s_cg, s_cg, s_t2))
    e("s_lshl_b32 s%d, s%d, 1" % (s_t2, s_t2))
    e("s_add_u32 s%d, s%d, s%d" % (s_ph, s_ph, s_t2))
    vx0, vx1, vw0, vw1 = k.alloc(), k.alloc(), k.alloc(), k.alloc()
    e("v_lshrrev_b32 %s, 3, v0" % vr(t0))
    e("v_readfirstlane_b32 s%d, %s" % (s_w, vr(t1)))
    e("v_lshl_add_u32 %s, %s, 3, %s" % (vr(t0), vr(t1), vr(t0)))
    e("v_bfe_u32 %s, v0, 4, 2" % vr(t1))
    e("v_and_b32 %s, 7, v0" % vr(t2))
    e("v_xor_b32 %s, %s, %s" % (vr(t1), vr(t1), vr(t2)))
    e("v_lshlrev_b32 %s, 4, %s" % (vr(t1), vr(t1)))
    e("v_lshl_add_u32 %s, %s, 10, %s" % (vr(vx0), vr(t0), vr(t1)))
    e("s_lshl_b32 s%d, s%d, 16" % (s_t, s_rb))
    e("v_add_u32 %s, s%d, %s" % (vr(vx0), s_t, vr(vx0)))
    e("v_xor_b32 %s, 64, %s" % (vr(vx1), vr(vx0)))
    e("v_add_u32 %s, %d, %s" % (vr(vx1), 8192 - 1024, vr(vx1)))
    e("v_bfe_u32 %s, v0, 4, 1" % vr(t1))
    e("v_lshlrev_b32 %s, 1, %s" % (vr(t1), vr(t1)))
    e("v_xor_b32 %s, %s, %s" % (vr(t1), vr(t1), vr(t2)))
    e("v_lshlrev_b32 %s, 4, %s" % (vr(t3), vr(t1)))
    e("v_mul_u32_u24 %s, 3072, %s" % (vr(vw0), vr(t0)))
    e("s_lshl_b32 s%d, s%d, 7" % (s_t, s_cg))
    e("v_add3_u32 %s, %s, %s, s%d" % (vr(vw0), vr(vw0), vr(t3), s_t))
    e("v_xor_b32 %s, 64, %s" % (vr(vw1), vr(vw0)))
    e("v_add_u32 %s, %d, %s" % (vr(vw1), 8 * 3072, vr(vw1)))
    e("v_and_b32 %s, 63, v0" % vr(l128))
    e("v_lshlrev_b32 %s, 4, %s" % (vr(l16), vr(l128)))
    e("s_lshl_b32 s%d, s%d, 11" % (s_m0x, s_w))
    e("s_lshl_b32 s%d, s%d, 12" % (s_m0w, s_w))
    e("s_add_u32 s%d, s%d, %d" % (s_m0w, s_m0w, L_RING + 8192))
    for c in range(8):
        e("s_add_u32 s%d, s%d, %d" % (s_t, s_ph, c))
        e("s_and_b32 s%d, s%d, 7" % (s_t, s_t))
        if c == 0:
            e("s_lshl_b32 s%d, s%d, 7" % (s_ox, s_t))
        e("s_mul_i32 s%d, s%d, %d" % (s_c[c], s_t, 64 * 3072))
    for r in range(4):
        e("v_mov_b32 %s, 0" % vr(ones + r))
    NZ = opt("nz", 32)
    s_zf = s_a[0]
    e("s_cmp_ge_u32 s2, %d" % NZ)
    e("s_cselect_b32 s%d, 1, 0" % s_zf)
    e("s_xor_b32 s%d, s%d, 3" % (s_t, s_w))
    e("s_or_b32 s%d, s%d, s%d" % (s_zf, s_zf, s_t))
    e("s_waitcnt lgkmcnt(0)")
    k.stamp("karg")

    def zero_fa():
        e("s_cmp_lg_u32 s%d, 0" % s_zf)
        e("s_cbranch_scc1 L_nz")
        e("s_mul_i32 s%d, s2, %d" % (s_t, 131072 // NZ))
        e("s_add_u32 s%d, s%d, 0x%x" % (s_t, s_t, WS_FA))
        for q in range(128 // NZ):
            e("buffer_store_dwordx4 %s, %s, %s, s%d offen offset:%d sc1 ;@cond" % (vr(ones, 4), vr(l16), sr(SWS, 4), s_t, (q & 3) * 1024))
            if q & 3 == 3:
                e("s_add_u32 s%d, s%d, 4096" % (s_t, s_t))
        e("L_nz:")

    def dma_x(c, tg):
        base = L_RING - 8192 if c == 0 else L_RING + ((c - 1) % 3) * SLOT
        pre = []
        if c:
            pre += ["s_add_u32 s%d, s%d, 128" % (s_ox, s_ox), "s_and_b32 s%d, s%d, 0x3ff" % (s_ox, s_ox)]
        pre.append("s_add_u32 m0, s%d, %d" % (s_m0x, base))
        return [(pre, "buffer_load_dwordx4 %s, %s, s%d offen lds ;@%s" % (vr(vx0), sr(SX, 4), s_ox, tg)),
                ([], "buffer_load_dwordx4 %s, %s, s%d offen offset:1024 lds ;@%s" % (vr(vx1), sr(SX, 4), s_ox, tg))]

    def dma_w(c, tg):
        o = []
        for uu, vw in enumerate((vw0, vw1)):
            pre = ["s_add_u32 m0, s%d, %d" % (s_m0w, (c % 3) * SLOT + uu * 2048 - 1024)]
            for sg in range(2):
                o.append((pre, "buffer_load_dwordx4 %s, %s, s%d offen offset:%d lds ;@%s" % (vr(vw), sr(SWQ, 4), s_c[c], 1024 + sg * 1024, tg)))
                pre = []
        return o

    def dma(c):
        tg = "c%d" % c
        o = dma_x(0, tg) if c == 0 else []
        o += dma_w(c, tg)
        if c < 7:
            o += dma_x(c + 1, tg)
        return o

    WQ = []
    for c in range(8):
        for uu, vw in enumerate((vw0, vw1)):
            WQ.append((["s_add_u32 m0, s%d, %d" % (s_m0x, c * 8192 + uu * 1024)],
                       "buffer_load_dwordx4 %s, %s, s%d offen lds ;@wq" % (vr(vw), sr(SWQ, 4), s_c[c])))

    if opt("zfirst", 1):
        zero_fa()
    e(flat(dma(0)))
    if not opt("zfirst", 1):
        zero_fa()
    e("s_bfe_u32 s%d, s2, 0x20003" % s_r)
    e("s_and_b32 s%d, s2, 7" % s_rb2)
    e("s_lshl_b32 s%d, s%d, 2" % (s_rb2, s_rb2))
    e("s_add_u32 s%d, s%d, s%d" % (s_rb2, s_rb2, s_r))
    e("s_lshr_b32 s%d, s2, 5" % s_cb)
    e("s_bfe_u32 s%d, s2, 0x20001" % s_g3)
    e("s_lshl_b32 s%d, s%d, 2" % (s_g3, s_g3))
    e("s_add_u32 s%d, s%d, s%d" % (s_g3, s_g3, s_r))
    e("s_and_b32 s%d, s2, 1" % s_cb3)
    e("s_lshl_b32 s%d, s%d, 3" % (s_cb3, s_cb3))
    e("s_add_u32 s%d, s%d, s%d" % (s_cb3, s_cb3, s_cb))
    if not opt("rot", 1):
        e("s_mov_b32 s%d, 0" % s_r)
    if opt("rot", 1) == 2:
        e("s_xor_b32 s%d, s%d, s%d" % (s_r, s_r, s_cb))
        e("s_and_b32 s%d, s%d, 3" % (s_r, s_r))
    e("s_lshl_b32 s%d, s%d, 2" % (s_t, s_rb2))
    e("s_add_u32 s%d, s%d, s%d" % (s_t, s_t, s_w))
    e("s_lshl_b32 s%d, s%d, 3" % (s_t, s_t))
    e("s_add_u32 s%d, s%d, s%d" % (s_t, s_t, s_cb))
    e("s_lshl_b32 s%d, s%d, 7" % (s_t, s_t))
    e("s_add_u32 s%d, s%d, 0x%x" % (s_t, s_t, WS_ST))
    e("s_lshl_b32 s%d, s%d, 2" % (s_t2, s_g3))
    e("s_add_u32 s%d, s%d, s%d" % (s_t2, s_t2, s_w))
    e("s_lshl_b32 s%d, s%d, 4" % (s_t2, s_t2))
    e("s_add_u32 s%d, s%d, s%d" % (s_t2, s_t2, s_cb3))
    e("s_lshl_b32 s%d, s%d, 7" % (s_t2, s_t2))
    e("s_add_u32 s%d, s%d, 0x%x" % (s_t2, s_t2, WS_FD - FDS))
    e("v_add_u32 %s, s%d, %s" % (vr(t0), s_t, vr(l16)))
    e("v_lshrrev_b32 %s, 3, %s" % (vr(t1), vr(l128)))
    e("v_lshl_add_u32 %s, %s, 17, s%d" % (vr(t1), vr(t1), s_t2))
    e("v_lshl_add_u32 %s, %s, 4, %s" % (vr(t1), vr(t2), vr(t1)))
    e("v_cmp_gt_u32 vcc, 8, %s" % vr(l128))
    e("v_cndmask_b32 %s, %s, %s, vcc" % (vr(t0), vr(t1), vr(t0)))
    e("s_mov_b64 exec, 0xffffff" if NFD == 2 else "s_mov_b32 exec_hi, 0")
    e("buffer_store_dwordx4 %s, %s, %s, 0 offen sc1" % (vr(ones, 4), vr(t0), sr(SWS, 4)))
    e("s_mov_b64 exec, -1")
    k.stamp("dma_issued")
    vM4 = k.alloc()
    e("v_min_u32 %s, 13, %s" % (vr(vM14), vr(l128)))
    e("v_lshlrev_b32 %s, 7, %s" % (vr(vM14), vr(vM14)))
    e("v_min_u32 %s, 0x180, %s" % (vr(vM4), vr(vM14)))
    e("s_lshl_b32 s%d, s2, 2" % s_t)
    e("s_add_u32 s%d, s%d, s%d" % (s_t, s_t, s_w))
    e("s_mul_i32 s%d, s%d, 1792" % (s_t2, s_t))
    e("v_add_u32 %s, s%d, %s" % (vr(vM14), s_t2, vr(vM14)))
    e("s_lshl_b32 s%d, s%d, 9" % (s_t2, s_t))
    e("v_add_u32 %s, s%d, %s" % (vr(vM4), s_t2, vr(vM4)))
    vMq = k.alloc()
    e("s_lshr_b32 s%d, s%d, 1" % (s_t, s_t))
    e("s_lshl_b32 s%d, s%d, 11" % (s_t, s_t))
    e("v_add_u32 %s, s%d, %s" % (vr(vMq), s_t, vr(vM4)))

    def mall(mask):
        o = []
        for bit, va_, srd in ((1, vMq, SWQ), (2, vM4, SWO), (4, vM14, SW1), (8, vM14, SW2)):
            if mask & bit:
                o.append(([], "buffer_load_dword %s, %s, %s, 0 offen" % (vr(vMd), vr(va_), sr(srd, 4))))
        return o
    e(flat(mall(opt("m0", 0))))
    e("v_lshlrev_b32 %s, 7, %s" % (vr(l128), vr(l128)))
    e("v_mov_b32 %s, 1" % vr(vone))
    for r in range(4):
        e("v_mov_b32 %s, 0x3f803f80" % vr(ones + r))
    g, i15 = k.alloc(), k.alloc()
    xa = [[k.alloc(), k.alloc()] for _ in range(4)]
    wa = k.alloc()
    qa = k.alloc()
    VO = k.alloc(4)
    TO = k.alloc(4)
    vOS = k.alloc(2)
    e("v_bfe_u32 %s, v0, 4, 2" % vr(g))
    e("v_and_b32 %s, 15, v0" % vr(i15))
    e("v_bfe_u32 %s, v0, 3, 3" % vr(t1))
    e("v_lshl_add_u32 %s, %s, 10, %s" % (vr(VO), vr(t1), vr(t3)))
    e("v_xor_b32 %s, 64, %s" % (vr(t3), vr(VO)))
    e("v_add_u32 %s, %d, %s" % (vr(VO + 1), 7168, vr(t3)))
    e("v_add_u32 %s, %d, %s" % (vr(VO + 2), 2 * 7168, vr(VO)))
    e("v_add_u32 %s, %d, %s" % (vr(VO + 3), 3 * 7168, vr(t3)))
    e("v_lshlrev_b32 %s, 1, %s" % (vr(t0), vr(g)))
    e("v_and_b32 %s, 7, v0" % vr(t2))
    e("v_xor_b32 %s, %s, %s" % (vr(t0), vr(t0), vr(t2)))
    e("v_lshlrev_b32 %s, 4, %s" % (vr(t0), vr(t0)))
    e("v_lshl_add_u32 %s, %s, 10, %s" % (vr(VD), vr(t1), vr(t0)))
    for i in range(1, 4):
        e("v_add_u32 %s, %d, %s" % (vr(VD + i), i * (8192 - 1024), vr(VD)))
    e("v_lshrrev_b32 %s, 1, %s" % (vr(t0), vr(i15)))
    e("v_xor_b32 %s, %s, %s" % (vr(t0), vr(t0), vr(g)))
    e("v_lshlrev_b32 %s, 4, %s" % (vr(t0), vr(t0)))
    e("v_lshl_add_u32 %s, %s, 7, %s" % (vr(t0), vr(i15), vr(t0)))
    for u in range(4):
        e("s_add_u32 s%d, s%d, %d" % (s_t, s_w, u))
        e("s_and_b32 s%d, s%d, 3" % (s_b[u], s_t))
        e("s_lshl_b32 s%d, s%d, 11" % (s_t, s_b[u]))
        e("s_add_u32 s%d, s%d, %d" % (s_t, s_t, L_RING - 8192))
        e("v_add_u32 %s, s%d, %s" % (vr(xa[u][0]), s_t, vr(t0)))
        e("v_xor_b32 %s, 64, %s" % (vr(xa[u][1]), vr(xa[u][0])))
    e("v_lshrrev_b32 %s, 1, %s" % (vr(t0), vr(g)))
    e("v_lshlrev_b32 %s, 8, %s" % (vr(t0), vr(t0)))
    e("v_lshl_add_u32 %s, %s, 4, %s" % (vr(t0), vr(i15), vr(t0)))
    e("v_and_b32 %s, 1, %s" % (vr(t1), vr(g)))
    e("v_cmp_eq_u32 vcc, 1, %s" % vr(t1))
    for P in range(2):
        e("v_mov_b32 %s, s%d" % (vr(t1), s_b[2 * P]))
        e("v_mov_b32 %s, s%d" % (vr(t2), s_b[2 * P + 1]))
        e("v_cndmask_b32 %s, %s, %s, vcc" % (vr(t1), vr(t1), vr(t2)))
        e("v_lshl_add_u32 %s, %s, 14, %s" % (vr(vOS + P), vr(t1), vr(t0)))
    e("v_bfe_u32 %s, v0, 3, 2" % vr(t0))
    e("v_lshlrev_b32 %s, 5, %s" % (vr(t0), vr(t0)))
    e("v_and_b32 %s, 3, v0" % vr(t1))
    e("v_lshl_add_u32 %s, %s, 3, %s" % (vr(t0), vr(t1), vr(t0)))
    e("v_bfe_u32 %s, v0, 2, 2" % vr(t1))
    e("v_lshl_add_u32 %s, %s, 7, %s" % (vr(t0), vr(t1), vr(t0)))
    e("v_lshl_add_u32 %s, %s, 10, %s" % (vr(qa), vr(g), vr(t0)))
    e("v_add_u32 %s, %d, %s" % (vr(TO), L_WO, vr(qa)))
    for nt in range(1, 4):
        e("v_xor_b32 %s, %d, %s" % (vr(TO + nt), nt * 32, vr(TO)))
    e("s_lshl_b32 s%d, s%d, 5" % (s_t, s_w))
    e("v_xor_b32 %s, s%d, %s" % (vr(qa), s_t, vr(qa)))
    e("v_lshl_add_u32 %s, %s, 11, %s" % (vr(wa), vr(g), vr(t0)))
    e("v_xor_b32 %s, s%d, %s" % (vr(wa), s_t, vr(wa)))
    e("v_add_u32 %s, %d, %s" % (vr(wa), L_RING + 8192, vr(wa)))
    e("v_lshl_add_u32 %s, %s, 9, %s" % (vr(TA), vr(g), vr(t0)))
    e("s_lshl_b32 s%d, s%d, 13" % (s_t, s_w))
    e("s_add_u32 s%d, s%d, 65536" % (s_t, s_t))
    e("v_add_u32 %s, s%d, %s" % (vr(TA), s_t, vr(TA)))
    for nt in range(1, 4):
        e("v_xor_b32 %s, %d, %s" % (vr(TA + nt), nt * 32, vr(TA)))
    e("v_bfe_u32 %s, v0, 4, 1" % vr(t0))
    e("v_lshlrev_b32 %s, 5, %s" % (vr(t0), vr(t0)))
    e("v_bfe_u32 %s, v0, 5, 1" % vr(t1))
    e("v_lshl_add_u32 %s, %s, 4, %s" % (vr(t0), vr(t1), vr(t0)))
    e("v_lshl_add_u32 %s, %s, 10, %s" % (vr(vxo), vr(i15), vr(t0)))
    IDM = k.alloc(4, 4)
    e("v_bfe_u32 %s, v0, 4, 1" % vr(t0))
    e("v_lshlrev_b32 %s, 2, %s" % (vr(t0), vr(t0)))
    e("v_sub_u32 %s, %s, %s" % (vr(t0), vr(i15), vr(t0)))
    e("v_mov_b32 %s, 0x3f80" % vr(t1))
    e("v_mov_b32 %s, 0x3f800000" % vr(t2))
    for r, c in enumerate((0, 2, 8, 10)):
        e("v_cmp_eq_u32 vcc, %d, %s" % (c, vr(t0)))
        e("v_cndmask_b32 %s, 0, %s, vcc" % (vr(IDM + r), vr(t1)))
        e("v_cmp_eq_u32 vcc, %d, %s" % (c + 1, vr(t0)))
        e("v_cndmask_b32 %s, %s, %s, vcc" % (vr(IDM + r), vr(IDM + r), vr(t2)))
    vZ, vGZ = k.alloc(), k.alloc()
    e("v_and_b32 %s, 16, v0" % vr(vZ))
    e("v_bfe_u32 %s, v0, 5, 1" % vr(t1))
    e("v_lshl_add_u32 %s, %s, 4, %s" % (vr(t1), vr(t1), vr(i15)))
    e("v_lshl_add_u32 %s, %s, 7, %s" % (vr(vGZ), vr(t1), vr(vZ)))
    e("s_movk_i32 s%d, 3584 - 224" % s_t)
    for m in range(7):
        e("v_add_u32 %s, %d, v0" % (vr(t0), 256 * m))
        e("v_mul_u32_u24 %s, 4682, %s" % (vr(t1), vr(t0)))
        e("v_lshrrev_b32 %s, 16, %s" % (vr(t1), vr(t1)))
        e("v_lshlrev_b32 %s, 4, %s" % (vr(t0), vr(t0)))
        e("v_mad_u32_u24 %s, %s, s%d, %s" % (vr(V1 + m), vr(t1), s_t, vr(t0)))
    e("v_and_b32 %s, 3, v0" % vr(t0))
    e("v_cmp_eq_u32 s[96:97], 1, %s" % vr(t0))
    e("v_cmp_eq_u32 s[98:99], 2, %s" % vr(t0))
    e("v_cmp_eq_u32 s[100:101], 3, %s" % vr(t0))
    cst = k.alloc(2, 2)
    ceps = k.alloc(4, 4)
    e("v_mov_b32 %s, %s" % (vr(cst), f32(LN2)))
    e("v_mov_b32 %s, %s" % (vr(cst + 1), f32(1.000001)))
    for r in range(4):
        e("v_mov_b32 %s, %s" % (vr(ceps + r), f32(1e-6)))
    vS0, vsw, vsr, l4 = k.alloc(), k.alloc(), k.alloc(), k.alloc()
    e("s_lshl_b32 s%d, s%d, 6" % (s_t, s_w))
    e("s_add_u32 s%d, s%d, %d" % (s_t, s_t, L_SCR))
    e("v_lshl_add_u32 %s, %s, 2, s%d" % (vr(vsw), vr(i15), s_t))
    e("v_lshl_add_u32 %s, %s, 4, s%d" % (vr(vsr), vr(g), s_t))
    e("v_lshlrev_b32 %s, %d, %s" % (vr(l4), {64: 2, 32: 3, 16: 4, 8: 5}[NZ], vr(l16)))
    e("v_lshrrev_b32 %s, 4, %s" % (vr(l4), vr(l4)))
    s_hd, s_pa, s_fa = s_a[1], s_a[2], s_a[3]
    e("s_lshl_b32 s%d, s%d, 2" % (s_hd, s_cg))
    e("s_add_u32 s%d, s%d, s%d" % (s_hd, s_hd, s_w))
    e("s_lshl_b32 s%d, s%d, 5" % (s_t, s_hd))
    e("s_add_u32 s%d, s%d, s%d" % (s_t, s_t, s_rb))
    e("s_lshl_b32 s%d, s%d, 9" % (s_pa, s_t))
    e("s_lshl_b32 s%d, s%d, 7" % (s_fa, s_t))
    e("s_add_u32 s%d, s%d, 0x%x" % (s_fa, s_fa, WS_FA))
    e("s_lshl_b32 s%d, s%d, 7" % (s_t, s_cb))
    e("s_lshl_b32 s%d, s%d, 17" % (s_wob, s_r))
    e("s_lshl_b32 s%d, s%d, 15" % (s_t2, s_w))
    e("s_add_u32 s%d, s%d, s%d" % (s_wob, s_wob, s_t2))
    e("s_add_u32 s%d, s%d, s%d" % (s_wob, s_wob, s_t))
    e("s_lshl_b32 s%d, s%d, 16" % (s_xo, s_rb2))
    e("s_lshl_b32 s%d, s%d, 14" % (s_t2, s_w))
    e("s_add_u32 s%d, s%d, s%d" % (s_xo, s_xo, s_t2))
    e("s_add_u32 s%d, s%d, s%d" % (s_xo, s_xo, s_t))
    e("s_mul_i32 s%d, s%d, 224" % (s_w1b, s_cb3))
    P1BASE = k.nv
    ak = k.alloc(16, 4)
    av = k.alloc(16, 4)
    stq, sts = k.alloc(4, 4), k.alloc(4, 4)
    NM = k.alloc(16, 4)
    RL = k.alloc(16, 4)
    WB3 = [k.alloc(8, 4) for _ in range(3)]
    cs = k.alloc(8, 4)
    QN = k.alloc(8, 2)
    tm = k.alloc(8, 2)

    def XS(u, n):
        return A0 + 64 * u + 4 * n

    def rd_w(n):
        so = ((n >> 1) % 3) * SLOT + (n & 1) * 8192
        return ["ds_read_b64_tr_b16 %s, %s offset:%d ;@w%d" % (vr(WB3[n % 3] + sg * 4 + hf * 2, 2), vr(wa), so + sg * 1024 + hf * 512, n)
                for sg in range(2) for hf in range(2)]

    def rd_x(u, n):
        c = n >> 1
        so = 0 if c == 0 else 8192 + ((c - 1) % 3) * SLOT
        return "ds_read_b128 %s, %s offset:%d ;@x%d_%d" % (vr(XS(u, n), 4), vr(xa[u][n & 1]), so, u, n)

    def mf_cs(n):
        z = "0" if n == 0 else None
        return [mfma32(cs + 0, ones, WB3[n % 3] + 0, z), mfma32(cs + 4, ones, WB3[n % 3] + 4, z)]

    def mf_main(n, u):
        z = "0" if n == 0 else None
        return [mfma32(ak + 4 * u, XS(u, n), WB3[n % 3] + 0, z), mfma32(av + 4 * u, XS(u, n), WB3[n % 3] + 4, z)]

    def mf(n):
        return mf_cs(n) + sum([mf_main(n, u) for u in range(4)], [])

    def mf_st(n):
        z = "0" if n == 0 else None
        return [mfma32(stq, XS(0, n), XS(0, n), z), mfma32(sts, ones, XS(0, n), z)]

    k.flush()
    e(flat(dma(1)))
    e(flat(mall(opt("m1", 0))))
    k.stamp("g1_issued")
    wq = list(WQ)
    ZIT = opt("zit", 5)
    arrive = "\n".join(["s_cmp_lg_u32 s%d, 0" % s_zf, "s_cbranch_scc1 L_nz2", "s_mul_i32 s%d, s2, %d" % (s_t, 256 // NZ), "s_mov_b64 exec, 1",
                        "buffer_store_dword %s, off, %s, s%d sc1 ;@cond" % (vr(vone), sr(SDB, 4), s_t), "s_mov_b64 exec, -1", "L_nz2:"])
    for it in range(8):
        e("WAITVM c%d" % it)
        e("s_barrier")
        if it in (0, 1, 4, 7):
            k.stamp("it%d" % it)
        extra = dma(it + 2) if it + 2 < 8 else []
        if it == 5:
            extra = extra + mall(opt("m5", 0))
        if it == 0:
            e(rd_w(0) + [rd_x(u, 0) for u in range(4)] + [rd_x(0, 1), rd_x(0, 2), rd_x(0, 3)])
            e(flat(extra[:1]))
            m = mf(0) + mf_st(0) + mf_st(1) + mf_st(2) + mf_st(3)
            m[0] = "WAITLG w0\n" + m[0]
            m[2] = "WAITLG x1_0\n" + m[2]
            m[6] = "WAITLG x0_3\n" + m[6]
            W = Weave(m)
            W.every(extra[1:], 2, 3)
            W.fill(rd_w(1) + [rd_x(u, 1) for u in range(1, 4)] + [rd_x(u, n) for n in (2, 3) for u in range(1, 4)], 1, cap=2)
            e(W.out())
            e("s_waitcnt lgkmcnt(0)")
        elif it < 7:
            n = 2 * it
            sp = 10 if it < 6 else 5
            m = mf(n - 1)[:sp] + mf_st(n + 2) + mf_st(n + 3) + mf(n - 1)[sp:] + mf(n)
            m[sp] = "WAITLG x0_%d\n" % (n + 3) + m[sp]
            if it == 6:
                m[14] = "WAITLG w%d\n" % n + m[14]
            W = Weave(m)
            if it == ZIT:
                W.at(16 if it == 5 else 24, arrive)
            if it >= 5:
                c = max(0, 6 - len(extra))
                extra = extra + wq[:c]
                wq = wq[c:]
            left = W.every(extra, 2, 4)
            W.at(24, flat(left))
            rs = rd_w(n) + [rd_x(0, n + 2), rd_x(0, n + 3)] + rd_w(n + 1) + [rd_x(u, nn) for nn in (n + 2, n + 3) for u in range(1, 4)]
            if it == 6:
                rs = rs[4:6] + rs[:4] + rs[6:]
            W.at(0, rs[:2])
            if it < 6:
                W.fill(rs[2:], 1, cap=opt("p1cap", 2))
            else:
                W.fill(rs[2:], 1, cap=2)
                sm = ["v_cndmask_b32 %s, %s, %s, s[96:97]" % (vr(t0), vr(stq), vr(stq + 1)),
                      "v_cndmask_b32 %s, %s, %s, s[98:99]" % (vr(t0), vr(t0), vr(stq + 2)),
                      "v_cndmask_b32 %s, %s, %s, s[100:101]" % (vr(t0), vr(t0), vr(stq + 3)),
                      "v_mul_f32 %s, %s, %s" % (vr(t1), f32(-1.0 / 512), vr(sts)),
                      "v_mul_f32 %s, %s, %s" % (vr(t0), f32(1.0 / 512), vr(t0)),
                      "v_fma_f32 %s, -%s, %s, %s" % (vr(t0), vr(t1), vr(t1), vr(t0)),
                      "v_max_f32 %s, 0, %s" % (vr(t0), vr(t0)),
                      "v_add_f32 %s, %s, %s" % (vr(t0), f32(1e-5), vr(t0)),
                      "v_rsq_f32 %s, %s" % (vr(t0), vr(t0)),
                      "s_nop 0",
                      "v_mul_f32 %s, %s, %s" % (vr(t0), f32(LOG2E), vr(t0)),
                      "\n".join(["s_mov_b32 exec_lo, 0x00f0000f", "s_mov_b32 exec_hi, 0xf0000f00",
                                 "ds_write2st64_b32 %s, %s, %s offset0:0 offset1:1" % (vr(vsw), vr(t1), vr(t1)),
                                 "ds_write2st64_b32 %s, %s, %s offset0:2 offset1:3" % (vr(vsw), vr(t0), vr(t0)),
                                 "s_mov_b64 exec, -1"])]
                W.fill(sm, 12, cap=3, stop=19)
            e(W.out())
            e("s_waitcnt lgkmcnt(0)")
        else:
            m = mf(13) + mf_cs(14) + mf_cs(15)
            for u in range(4):
                m += mf_main(14, u) + mf_main(15, u)
            m[10] = "WAITLG w15\n" + m[10]
            W = Weave(m)
            wq = W.every(wq + [([], "buffer_load_dword %s, %s, %s, 0 offen sc1 ;@s0" % (vr(vS0), vr(l4), sr(SDB, 4)))], 1, opt("wq7", 3))
            W.at(30, flat(wq))
            rs = rd_w(14) + rd_w(15)
            for u in range(4):
                rs.append("ds_read_b128 %s, %s offset:%d" % (vr(NM + 4 * u, 4), vr(vsr), u * 64))
                rs.append("ds_read_b128 %s, %s offset:%d" % (vr(RL + 4 * u, 4), vr(vsr), 512 + u * 64))
            for u in range(4):
                rs.append("ds_read2_b32 %s, %s offset0:%d offset1:%d" % (vr(QN + 2 * u, 2), vr(vsw), 16 * u, 128 + 16 * u))
            W.at(0, rs[:2])
            W.fill(rs[2:], 1, cap=2)
            e(W.out())
    e("s_waitcnt lgkmcnt(0)")
    k.stamp("loop_end")

    def phi(a, dst, alt=0, keep=None):
        E = tm + 4 * alt
        U = tm + 4 * alt + 2 if keep is None else keep
        e("v_exp_f32_e64 %s, %s clamp" % (vr(E), vr(a)))
        e("v_exp_f32_e64 %s, %s clamp" % (vr(E + 1), vr(a + 1)))
        e("v_pk_fma_f32 %s, %s, %s, %s op_sel:[0,0,1] op_sel_hi:[1,0,1]" % (vr(U, 2), vr(a, 2), vr(cst, 2), vr(cst, 2)))
        e("v_pk_add_f32 %s, %s, %s" % (vr(E, 2), vr(E, 2), vr(ceps, 2)))
        e("v_max_f32 %s, %s, %s" % (vr(U), vr(U), vr(E)))
        e("v_max_f32 %s, %s, %s" % (vr(U + 1), vr(U + 1), vr(E + 1)))
        e("v_cvt_pk_bf16_f32 %s, %s, %s" % (vr(dst), vr(U), vr(U + 1)))

    kv, zz = stq, sts
    PK = k.alloc(8, 4)
    PV = WB3[1]
    for u in range(4):
        for hp in range(2):
            o = 4 * u + 2 * hp
            e("v_pk_fma_f32 %s, %s, %s, %s" % (vr(ak + o, 2), vr(NM + o, 2), vr(cs + 0, 2), vr(ak + o, 2)))
            e("v_pk_fma_f32 %s, %s, %s, %s" % (vr(av + o, 2), vr(NM + o, 2), vr(cs + 4, 2), vr(av + o, 2)))
            e("v_pk_mul_f32 %s, %s, %s" % (vr(ak + o, 2), vr(ak + o, 2), vr(RL + o, 2)))
            e("v_pk_mul_f32 %s, %s, %s" % (vr(av + o, 2), vr(av + o, 2), vr(RL + o, 2)))
            e("v_cvt_pk_bf16_f32 %s, %s, %s" % (vr(PV + 2 * u + hp), vr(av + o), vr(av + o + 1)))
            if u == 3 and hp == 1:
                E, U, a = tm + 4, tm + 6, ak + o
                e("v_exp_f32_e64 %s, %s clamp" % (vr(E), vr(a)))
                e("v_exp_f32_e64 %s, %s clamp" % (vr(E + 1), vr(a + 1)))
                e("v_pk_fma_f32 %s, %s, %s, %s op_sel:[0,0,1] op_sel_hi:[1,0,1]" % (vr(U, 2), vr(a, 2), vr(cst, 2), vr(cst, 2)))
                e("v_pk_add_f32 %s, %s, %s" % (vr(E, 2), vr(E, 2), vr(ceps, 2)))
                e(mfma32(kv, PK, PV, "0"))
                e("v_max_f32 %s, %s, %s" % (vr(U), vr(U), vr(E)))
                e("v_max_f32 %s, %s, %s" % (vr(U + 1), vr(U + 1), vr(E + 1)))
                e("v_cvt_pk_bf16_f32 %s, %s, %s" % (vr(PK + 7), vr(U), vr(U + 1)))
            else:
                phi(ak + o, PK + 2 * u + hp, hp)
    e(mfma32(kv, PK + 4, PV + 4))
    e(mfma32(zz, PK, ones, "0"))
    e(mfma32(zz, PK + 4, ones))
    PR = NM
    PZ = NM + 4
    e("v_cvt_pk_bf16_f32 %s, %s, %s" % (vr(PR), vr(kv), vr(kv + 1)))
    e("v_cvt_pk_bf16_f32 %s, %s, %s" % (vr(PR + 1), vr(kv + 2), vr(kv + 3)))
    e("v_permlane32_swap_b32 %s, %s" % (vr(PR), vr(PR + 2)))
    e("v_permlane32_swap_b32 %s, %s" % (vr(PR + 1), vr(PR + 3)))
    e("s_mov_b32 exec_hi, 0")
    e("buffer_store_dwordx4 %s, %s, %s, s%d offen sc1 ;@part" % (vr(PR, 4), vr(l16), sr(SWS, 4), s_pa))
    e("s_mov_b64 exec, -1")
    k.stamp("part_st")
    e("v_cvt_pk_bf16_f32 %s, %s, %s" % (vr(PZ), vr(zz), vr(zz + 1)))
    e("v_cvt_pk_bf16_f32 %s, %s, %s" % (vr(PZ + 1), vr(zz + 2), vr(zz + 3)))
    e("v_permlane32_swap_b32 %s, %s" % (vr(PZ), vr(PZ + 2)))
    e("v_permlane32_swap_b32 %s, %s" % (vr(PZ + 1), vr(PZ + 3)))

    npoll = [0]

    def setexec(lanes, e=e):
        if lanes < 64:
            e("s_mov_b64 exec, 0x%x" % ((1 << lanes) - 1) if lanes < 32 else "s_mov_b32 exec_hi, 0")

    def poll(voff, lanes, srd, soff, first=None, dst=vP, wide=False, imm=0, e=e):
        n = npoll[0]
        npoll[0] += 1
        setexec(lanes, e)
        e("s_mov_b32 s%d, %d" % (s_to, 20000 if FINE else TIMEOUT))
        if first is not None:
            e("v_cmp_eq_u32 vcc, 0, %s" % vr(first))
            e("s_cbranch_vccz L_ok%d" % n)
        e("L_poll%d:" % n)
        e(poll_load(voff, srd, soff, dst, wide, imm) + " ;@cond")
        e("s_waitcnt vmcnt(0)")
        e("v_cmp_eq_u32 vcc, 0, %s" % vr(dst))
        e("s_cbranch_vccz L_ok%d" % n)
        e("s_sub_u32 s%d, s%d, 1" % (s_to, s_to))
        e("s_cbranch_scc0 L_poll%d" % n)
        e("L_ok%d:" % n)
        if lanes < 64:
            e("s_mov_b64 exec, -1")

    def poll_load(voff, srd, soff, dst, wide=False, imm=0):
        return "buffer_load_dword%s %s, %s, %s, %s offen offset:%d sc1" % ("x4" if wide else "", vr(dst, 4 if wide else 1), vr(voff), sr(srd, 4), soff, imm)

    def flag(soff, wait, imm=0):
        return "\n".join(["WAITVM " + wait, "s_mov_b64 exec, 1",
                          "buffer_store_dword %s, off, %s, s%d offset:%d sc1" % (vr(vone), sr(SWS, 4), soff, imm),
                          "s_mov_b64 exec, -1"])

    e("WAITVM wq")
    s0t = []
    poll(l4, NZ, SDB, "0", first=vS0, e=s0t.append)
    e("s_barrier")
    k.stamp("wq_bar")
    aq = ak
    csq = cs
    QF = RL

    def qreads(n):
        return ["ds_read_b64_tr_b16 %s, %s offset:%d ;@q%d" % (vr(QF + 4 * (n & 3) + 2 * hf, 2), vr(qa), n * 4096 + hf * 512, n)
                for hf in range(2)]

    def wo_dma(p):
        pre = ["s_xor_b32 s%d, s%d, 0x%x" % (s_t2, s_wob, p << 17), "s_add_u32 m0, s%d, %d" % (s_m0w, L_WO + p * 16384 - (L_RING + 8192))]
        o = []
        for i in range(4):
            o.append((pre, "buffer_load_dwordx4 %s, %s, s%d offen offset:%d lds ;@wo" % (vr(VO + i), sr(SWO, 4), s_t2, i * 1024)))
            pre = []
        return o

    s_w1m = s_m0x
    s_w1g = s_c[0:4]

    def w1_dma(p):
        return [(["s_add_u32 m0, s%d, %d" % (s_w1m, L_W1[p] + m * 4096)],
                 "buffer_load_dwordx4 %s, %s, s%d offen lds ;@w1g%d" % (vr(V1 + m), sr(SW1, 4), s_w1g[p], p)) for m in range(7)]

    e(qreads(0) + qreads(1) + qreads(2))
    e("s_lshl_b32 s%d, s%d, 10" % (s_w1m, s_w))
    for p in range(4):
        e("s_xor_b32 s%d, s%d, %d" % (s_t, s_r, p))
        e("s_mul_i32 s%d, s%d, %d" % (s_t, s_t, 128 * 3584))
        e("s_add_u32 s%d, s%d, s%d" % (s_w1g[p], s_t, s_w1b))
    XR = [([], "buffer_load_dwordx4 %s, %s, %s, s%d offen offset:%d ;@x" % (vr(HB + 4 * P, 4), vr(vxo), sr(SX, 4), s_xo, P * 64)) for P in range(2)]
    W1Q = w1_dma(0) + w1_dma(1) + w1_dma(2) + w1_dma(3)
    m = []
    for n in range(16):
        z = "0" if n == 0 else None
        mm = [mfma32(aq + 4 * u, QF + 4 * (n & 3), XS(u, n), z) for u in range(4)] + [mfma32(csq, QF + 4 * (n & 3), ones, z)]
        mm[0] = "WAITLG q%d\n" % n + mm[0]
        m += mm
    W = Weave(m)
    FLA = opt("fla", 36)
    G1A = opt("g1a", 3)
    G1B = opt("g1b", 0)
    WOQ = wo_dma(0) + wo_dma(1) + wo_dma(2) + wo_dma(3)
    WOA = opt("woa", 4)
    pre_items = mall(opt("ma", 0)) + WOQ[:WOA] + W1Q[:G1A]
    W1Q = W1Q[G1A:]
    left = W.every(pre_items, 1, opt("g1s", 4), stop=FLA - 2)
    assert not left
    W.at(FLA, "\n".join(["WAITVM part"] + s0t + ["s_mov_b32 exec_lo, 0x00010001", "s_mov_b32 exec_hi, 0",
                         "buffer_store_dwordx4 %s, %s, %s, s%d offen sc1" % (vr(PZ, 4), vr(vZ), sr(SWS, 4), s_fa),
                         "s_mov_b64 exec, -1", k.stamp_text("flagA")]), cost=4)
    assert WOA % 4 == 0 or (G1A == 0 and G1B == 0)
    post = mall(opt("mb", 0)) + W1Q[:G1B] + XR + WOQ[WOA:]
    W1Q = W1Q[G1B:]
    post = W.every(post, FLA + 3, opt("g1t", 4))
    for n in range(13):
        W.at(5 * n + 2, qreads(n + 3)[0])
        W.at(5 * n + 4, qreads(n + 3)[1])
    e(W.out())
    k.stamp("q_mm")
    PQ = WB3[0]
    PQF = av
    for u in range(4):
        for hp in range(2):
            o = 4 * u + 2 * hp
            e("v_pk_fma_f32 %s, %s, %s, %s op_sel_hi:[1,0,1]" % (vr(aq + o, 2), vr(csq + 2 * hp, 2), vr(QN + 2 * u, 2), vr(aq + o, 2)))
            e("v_pk_mul_f32 %s, %s, %s op_sel:[0,1] op_sel_hi:[1,1]" % (vr(aq + o, 2), vr(aq + o, 2), vr(QN + 2 * u, 2)))
            phi(aq + o, PQ + 2 * u + hp, hp, keep=PQF + o)
            if post:
                e(flat(post[:1]))
                post = post[1:]
    e(flat(post))
    k.stamp("q_epi")
    k.flush()
    k.nv = WB3[1]
    GR = k.alloc(64, 4)
    GZ = k.alloc(4, 4)
    e("s_lshl_b32 s%d, s%d, 12" % (s_t, s_hd))
    e("s_add_u32 s%d, s%d, 0x%x" % (s_t, s_t, WS_FA))
    e(poll_load(vGZ, SWS, "s%d" % s_t, GZ, True) + " ;@pa")
    e("WAITVM wo")
    e("s_barrier")
    WF = A0
    wr = ["ds_read_b64_tr_b16 %s, %s offset:%d" % (vr(WF + 16 * ks + 4 * nt + 2 * hf, 2), vr(TO + nt), ks * 4096 + hf * 512)
          for ks in range(16) for nt in range(4) for hf in range(2)]
    NW0 = opt("nw0", 32)
    e(wr[:NW0])
    wr = wr[NW0:]
    e("s_lshl_b32 s%d, s%d, 14" % (s_pa, s_hd))
    e("s_lshl_b32 s%d, s%d, 16" % (s_b[0], s_rb))
    e("s_lshl_b32 s%d, s%d, 9" % (s_t2, s_hd))
    e("s_add_u32 s%d, s%d, s%d" % (s_b[0], s_b[0], s_t2))
    e("s_add_u32 s%d, s%d, 0x%x" % (s_b[0], s_b[0], WS_O))
    e("WAITVM pa")
    poll(vGZ, 64, SWS, "s%d" % s_t, first=GZ, dst=GZ, wide=True)
    k.stamp("pollA")
    gl = []
    for i in range(16):
        x = "buffer_load_dwordx4 %s, %s, %s, s%d offen offset:%d sc1 ;@g%d" % (vr(GR + 4 * i, 4), vr(l16), sr(SWS, 4), s_pa, (i & 3) * 1024, i)
        if i & 3 == 3 and i < 15:
            x += "\ns_add_u32 s%d, s%d, 4096" % (s_pa, s_pa)
        gl.append(x)
    G2Z = opt("g2z", 0)
    for pre, ins in W1Q[:G2Z]:
        gl.append("\n".join(pre + [ins]))
    W1Q = W1Q[G2Z:]
    EX = NM
    NUM, DEN = ak, RL
    side = [mfma32(zz, IDM, GZ, "0")] + wr[:10]
    wr = wr[10:]
    for sh in (8, 4, 2, 1):
        for r in range(4):
            side.append("v_add_f32_dpp %s, %s, %s row_ror:%d row_mask:0xf bank_mask:0xf" % (vr(zz + r), vr(zz + r), vr(zz + r), sh))
    side.append("v_cvt_pk_bf16_f32 %s, %s, %s" % (vr(EX + 2), vr(zz), vr(zz + 1)))
    side.append("v_cvt_pk_bf16_f32 %s, %s, %s" % (vr(EX + 3), vr(zz + 2), vr(zz + 3)))
    side += wr[:2]
    side += [mfma16(DEN + 4 * u, EX + 2, PQ + 2 * u, ceps) for u in range(4)]
    side += wr[2:10]
    wr = wr[10:]
    side += ["v_rcp_f32 %s, %s" % (vr(DEN + 4 * u), vr(DEN + 4 * u)) for u in range(4)]
    side += ["v_mul_f32 %s, %s, %s" % (vr(DEN + 4 * u), vr(cst), vr(DEN + 4 * u)) for u in range(4)]
    for u in range(4):
        for hp in range(2):
            side.append("v_pk_mul_f32 %s, %s, %s op_sel_hi:[1,0]" % (vr(PQF + 4 * u + 2 * hp, 2), vr(PQF + 4 * u + 2 * hp, 2), vr(DEN + 4 * u, 2)))
    for j in range(8):
        side.append("v_cvt_pk_bf16_f32 %s, %s, %s" % (vr(PQ + j), vr(PQF + 2 * j), vr(PQF + 2 * j + 1)))
    NW1 = opt("nw1", 40)
    side += wr[:NW1]
    wr = wr[NW1:]
    W = Weave(gl)
    W.fill(side, 2, cap=opt("gcap", 8))
    e(W.out())
    gm = ["WAITVM g%d\n" % i + mfma32(kv, IDM, GR + 4 * i, "0" if i == 0 else None) for i in range(16)]
    W = Weave(gm)
    NW2 = opt("nw2", 12)
    W.fill(wr[:NW2], 1, cap=1)
    wr = wr[NW2:]
    e(W.out())
    k.stamp("gathA")
    e("v_cvt_pk_bf16_f32 %s, %s, %s" % (vr(EX), vr(kv), vr(kv + 1)))
    e("v_cvt_pk_bf16_f32 %s, %s, %s" % (vr(EX + 1), vr(kv + 2), vr(kv + 3)))
    for u in range(4):
        e(mfma16(NUM + 4 * u, EX, PQ + 2 * u, "0"))
    OB = NM + 8
    for P in range(2):
        for j in range(4):
            e("v_cvt_pk_bf16_f32 %s, %s, %s" % (vr(OB + 4 * P + j), vr(NUM + 8 * P + 2 * j), vr(NUM + 8 * P + 2 * j + 1)))
        e("v_permlane16_swap_b32 %s, %s" % (vr(OB + 4 * P), vr(OB + 4 * P + 2)))
        e("v_permlane16_swap_b32 %s, %s" % (vr(OB + 4 * P + 1), vr(OB + 4 * P + 3)))
        e("buffer_store_dwordx4 %s, %s, %s, s%d offen sc1 ;@ost" % (vr(OB + 4 * P, 4), vr(vOS + P), sr(SWS, 4), s_b[0]))
    k.stamp("o_st")
    k.nv = PERS2
    va = k.alloc(3)
    vc = k.alloc(6)
    vst, l16b, vcw, vcr = k.alloc(), k.alloc(), k.alloc(), k.alloc()
    TA2 = k.alloc(4)
    assert k.nv <= 60
    Q = [60 + 4 * i for i in range(48)]
    k.maxv = max(k.maxv, 252)
    STR = Q[0]
    BR = Q[2]
    tmp4 = BR + 8
    BF = Q[6]
    CF = Q[13]
    ACC = Q[20]
    WB = Q[34]
    XF = CF
    SS = CF + 16
    OF = ACC
    assert XF + 16 <= NM and XF > TO + 4 and XF >= av
    st = list(wr)
    for P in range(2):
        st.append("v_permlane16_swap_b32 %s, %s" % (vr(HB + 4 * P), vr(HB + 4 * P + 2)))
        st.append("v_permlane16_swap_b32 %s, %s" % (vr(HB + 4 * P + 1), vr(HB + 4 * P + 3)))
    for j in range(8):
        st.append("v_lshlrev_b32 %s, 16, %s" % (vr(XF + 2 * j), vr(HB + j)))
        st.append("v_and_b32 %s, 0xffff0000, %s" % (vr(XF + 2 * j + 1), vr(HB + j)))
    s_rt2 = s_a[0]
    st.append("s_lshl_b32 s%d, s%d, 2" % (s_rt2, s_rb2))
    st.append("s_add_u32 s%d, s%d, s%d" % (s_rt2, s_rt2, s_w))
    st.append("s_lshl_b32 s%d, s%d, 2" % (s_b[0], s_rt2))
    st.append("s_add_u32 s%d, s%d, s%d" % (s_b[0], s_b[0], s_r))
    st.append("s_lshl_b32 s%d, s%d, 12" % (s_b[0], s_b[0]))
    st.append("s_add_u32 s%d, s%d, 0x%x" % (s_b[0], s_b[0], WS_O))
    for p in range(1, 4):
        st.append("s_xor_b32 s%d, s%d, 0x%x" % (s_b[p], s_b[0], p << 12))
    st.append("v_bfe_u32 %s, v0, 4, 2" % vr(t3))
    st.append("v_lshlrev_b32 %s, 3, %s" % (vr(t3), vr(t3)))
    G2A = opt("g2a", 4)
    done = 28 - len(W1Q)
    assert done + G2A <= 21
    W = Weave(st)
    q = mall(opt("mc", 0)) + W1Q[:G2A]
    W.every(q, 1, max(2, len(st) // max(len(q), 1)))
    W1Q = W1Q[G2A:]
    e(W.out())
    e(flag(s_fa, "ost", 64))
    k.stamp("flagB")
    e("s_waitcnt lgkmcnt(0)")
    e("s_barrier")
    KS4 = [("r", c, a) for a in range(3) for c in range(4)] + [("s", 0), ("s", 1)]
    s_w2c = s_c[4:8]
    s_w8 = s_m0w
    s_s2, s_fp = 96, 97
    s_h, s_st = s_a[1], s_a[2]
    st = []
    st.append("s_lshl_b32 s%d, s%d, 13" % (s_w8, s_w))
    st.append("s_lshl_b32 s%d, s%d, 15" % (s_s2, s_w))
    st.append("s_cmp_eq_u32 s%d, 3\ns_cselect_b32 s%d, 0x20000, s%d" % (s_w, s_s2, s_s2))
    st.append("s_add_u32 s%d, s%d, 28672" % (s_s2, s_s2))
    st.append("s_sub_u32 s%d, s%d, s%d" % (s_t, s_s2, s_w8))
    st.append("s_add_u32 s%d, s%d, -65536" % (s_t, s_t))
    for nt in range(4):
        st.append("v_add_u32 %s, s%d, %s" % (vr(TA2 + nt), s_t, vr(TA + nt)))
    st.append("s_add_u32 s%d, s%d, 98304" % (s_w8, s_w8))
    st.append("s_mul_i32 s%d, s%d, %d" % (s_to, s_w, 448 * 1024))
    st.append("s_lshl_b32 s%d, s%d, 7" % (s_t, s_cb))
    st.append("s_add_u32 s%d, s%d, s%d" % (s_to, s_to, s_t))
    for p in range(4):
        st.append("s_xor_b32 s%d, s%d, %d" % (s_t, s_r, p))
        st.append("s_mul_i32 s%d, s%d, %d" % (s_t, s_t, 112 * 1024))
        st.append("s_add_u32 s%d, s%d, s%d" % (s_w2c[p], s_t, s_to))
    st.append("v_bfe_u32 %s, v0, 2, 4" % vr(t0))
    st.append("v_mul_u32_u24 %s, 224, %s" % (vr(t0), vr(t0)))
    st.append("v_and_b32 %s, 3, v0" % vr(t1))
    st.append("v_lshl_add_u32 %s, %s, 3, %s" % (vr(va), vr(t1), vr(t0)))
    for b in (1, 2):
        st.append("v_add_u32 %s, 0x%x, %s" % (vr(va + b), 65536 * b, vr(va)))
    st.append("s_lshl_b32 s%d, s%d, 5" % (s_t, s_w))
    st.append("s_add_u32 s%d, s%d, 128" % (s_to, s_t))
    st.append("s_cmp_eq_u32 s%d, 3\ns_cselect_b32 s%d, s%d, s%d" % (s_w, s_to, s_t, s_to))
    for b in range(3):
        st.append("v_add_u32 %s, s%d, %s" % (vr(vc + 2 * b), s_t, vr(va + b)))
        st.append("v_add_u32 %s, s%d, %s" % (vr(vc + 2 * b + 1), s_to, vr(va + b)))
    st.append("v_lshl_add_u32 %s, %s, 1, s%d" % (vr(vcr), vr(t3), s_s2))
    st.append("v_add_u32 %s, 1, %s" % (vr(t0), vr(t1)))
    st.append("v_lshrrev_b32 %s, 2, %s" % (vr(t0), vr(t0)))
    st.append("v_add_u32 %s, %s, %s" % (vr(t0), vr(t0), vr(t1)))
    st.append("s_lshl_b32 s%d, s%d, 6" % (s_t, s_w))
    st.append("s_add_u32 s%d, s%d, 28672" % (s_t, s_t))
    st.append("v_lshl_add_u32 %s, %s, 15, s%d" % (vr(t0), vr(t0), s_t))
    st.append("v_lshl_add_u32 %s, %s, 1, %s" % (vr(vcw), vr(t3), vr(t0)))
    st.append("v_and_b32 %s, 15, v0" % vr(t0))
    st.append("v_lshlrev_b32 %s, 5, %s" % (vr(t1), vr(t3)))
    st.append("v_lshl_add_u32 %s, %s, 3, %s" % (vr(vst), vr(t0), vr(t1)))
    st.append("v_add_u32 %s, 16384, %s" % (vr(l16b), vr(l16)))
    st += ["s_lshl_b32 s%d, s%d, 3" % (s_t, s_rt2),
           "s_add_u32 s%d, s%d, s%d" % (s_t, s_t, s_cb),
           "s_lshl_b32 s%d, s%d, 11" % (s_h, s_t),
           "s_add_u32 s%d, s%d, 0x%x" % (s_h, s_h, WS_H),
           "s_lshl_b32 s%d, s%d, 7" % (s_t, s_t),
           "s_add_u32 s%d, s%d, 0x%x" % (s_st, s_t, WS_ST),
           "s_lshl_b32 s%d, s%d, 7" % (s_t, s_rb2),
           "s_add_u32 s%d, s%d, 0x%x" % (s_t, s_t, WS_FA),
           "v_lshlrev_b32 %s, 5, %s" % (vr(t2), vr(l128))]
    G2B = opt("g2b", 7)
    bl = [([], "buffer_load_dwordx2 %s, %s, %s, s%d offen offset:%d ;@bias" % (vr(BR + 2 * u, 2), vr(t3), sr(SB1, 4), s_w1b, 32 * u)) for u in range(7)]
    q = mall(opt("md", 0)) + W1Q[:G2B] + bl
    W1Q = W1Q[G2B:]
    W = Weave(st)
    left = W.every(q, 1, max(2, len(st) // len(q)))
    e(W.out())
    e(flat(left))
    NA = (28 - len(W1Q)) // 7
    k.stamp("g2_iss")
    poll(t2, 32, SWS, "s%d" % s_t, imm=64)
    k.stamp("pollB")
    ol = [([], "buffer_load_dwordx4 %s, %s, %s, s%d offen offset:%d sc1 ;@o%d" % (vr(OF + 4 * ks, 4), vr(l16), sr(SWS, 4), s_b[ks >> 2], (ks & 3) * 1024, ks))
          for ks in range(16)]
    P2N = opt("p2n", 10)
    W = Weave(flat(ol[:P2N]))
    bc = []
    for j in range(14):
        bc.append("v_lshlrev_b32 %s, 16, %s" % (vr(BF + 2 * j), vr(BR + j)))
        bc.append("v_and_b32 %s, 0xffff0000, %s" % (vr(BF + 2 * j + 1), vr(BR + j)))
    bc.append("v_lshrrev_b32 %s, 1, %s" % (vr(t3), vr(l16)))
    W.fill(bc, 3, cap=6)
    e(W.out())
    e("s_barrier")
    mm = []
    for ks in range(16):
        for nt in range(4):
            x = mfma32(XF + 4 * nt, WF + 16 * ks + 4 * nt, OF + 4 * ks)
            if nt == 0:
                x = "WAITVM o%d\n" % ks + x
            mm.append(x)
    W = Weave(mm)
    G3Z = opt("g3z", 7)
    left = W.every(ol[P2N:] + W1Q[:G3Z], 2, 4)
    assert not left
    W1Q = W1Q[G3Z:]
    e(W.out())
    k.stamp("p2_mm")
    for j in range(8):
        e("v_cvt_pk_bf16_f32 %s, %s, %s" % (vr(HB + j), vr(XF + 2 * j), vr(XF + 2 * j + 1)))
        if j & 3 == 3:
            e("buffer_store_dwordx4 %s, %s, %s, s%d offen offset:%d sc1 ;@hst" % (vr(HB + j - 3, 4), vr(l16), sr(SWS, 4), s_h, (j >> 2) * 1024))
    k.stamp("h_st")
    st = []
    for q in range(2):
        st.append("v_dot2_f32_bf16 %s, %s, %s, 0" % (vr(SS + 2 * q), vr(HB + q), vr(ones)))
        st.append("v_dot2_f32_bf16 %s, %s, %s, 0" % (vr(SS + 2 * q + 1), vr(HB + q), vr(HB + q)))
    for j in range(2, 8):
        q = j & 1
        st.append("v_dot2_f32_bf16 %s, %s, %s, %s" % (vr(SS + 2 * q), vr(HB + j), vr(ones), vr(SS + 2 * q)))
        st.append("v_dot2_f32_bf16 %s, %s, %s, %s" % (vr(SS + 2 * q + 1), vr(HB + j), vr(HB + j), vr(SS + 2 * q + 1)))
    st.append("v_pk_add_f32 %s, %s, %s" % (vr(SS, 2), vr(SS, 2), vr(SS + 2, 2)))

    def xg_reduce(regs, tmp):
        o = []
        for sw in ("v_permlane16_swap_b32", "v_permlane32_swap_b32"):
            for j, r in enumerate(regs):
                o.append("v_mov_b32 %s, %s" % (vr(tmp + j), vr(r)))
            for j, r in enumerate(regs):
                o.append("%s %s, %s" % (sw, vr(r), vr(tmp + j)))
            for j, r in enumerate(regs):
                o.append("v_add_f32 %s, %s, %s" % (vr(r), vr(r), vr(tmp + j)))
        return o
    st += xg_reduce([SS, SS + 1], t0)
    st.append("v_or_b32 %s, 0x80000000, %s" % (vr(SS + 1), vr(SS + 1)))

    def w2_dma(n):
        kd = KS4[n]
        o = []
        for i in range(4):
            pre = []
            if i == 0:
                if kd[0] == "r":
                    pre.append("s_add_u32 s%d, s%d, %d" % (s_t2, s_w2c[kd[1]], kd[2] * 32768))
                else:
                    pre.append("s_add_u32 s%d, s%d, %d" % (s_t2, s_w2c[2 * kd[1]], 6 * 16384))
                pre.append("s_mov_b32 m0, s%d" % s_s2 if n % 3 == 2 else "s_add_u32 m0, s%d, %d" % (s_w8, (n % 3) * 4096))
                if n >= 2:
                    pre.append("WAITLG r2_%d" % (n - 3) if n > 2 else "WAITLG cf")
            if i == 2 and kd[0] == "s":
                pre.append("s_add_u32 s%d, s%d, %d" % (s_t2, s_w2c[2 * kd[1] + 1], 5 * 16384))
            o.append((pre, "buffer_load_dwordx4 %s, %s, s%d offen offset:%d lds ;@w2_%d_%d" % (vr(VD + i), sr(SW2, 4), s_t2, i * 1024, n, i)))
        return o

    W2R = {}
    for n in range(8):
        W2R[n] = [A0 + 128 + 16 * n + 4 * nt for nt in range(4)]
    W2R[8], W2R[9], W2R[10] = Q[6:10], Q[10:14], Q[14:18]
    W2R[11], W2R[12] = Q[20:24], Q[24:28]
    W2R[13] = Q[18:20] + Q[46:48]
    AC4 = Q[0:4] + Q[34:46]
    SG = Q[28:34] + Q[4:6]

    def w2_rd(n, wait=True):
        addr = TA2 if n % 3 == 2 else TA
        off = 0 if n % 3 == 2 else 32768 + (n % 3) * 4096
        o = ["ds_read_b64_tr_b16 %s, %s offset:%d" % (vr(W2R[n][nt] + 2 * hf, 2), vr(addr + nt), off + hf * 2048)
             for nt in range(4) for hf in range(2)]
        o[-1] += " ;@r2_%d" % n
        if wait:
            o[0] = "WAITVM w2_%d_3\n" % n + o[0]
        return o

    CS = ACC

    def w1pos(t):
        p = L_W1[t >> 2] + (t & 3) * 7168
        return p >> 16, p & 0xffff

    CB = WB

    def colsum(ta, tb):
        cr = {}
        for t in range(ta, tb):
            b, off = w1pos(t)
            cr[t] = [("ds_read_b64_tr_b16 %s, %s offset:%d ;@cs%d" % (vr(CB + 8 * (t % 6) + 4 * c + 2 * hf, 2), vr(vc + 2 * b + c), off + hf * 3584, t))
                     for c in range(2) for hf in range(2)]
        o = []
        for t in range(ta, min(tb, ta + 3)):
            o += cr[t]
        for t in range(ta, tb):
            z = "0" if t == 0 else None
            o.append("WAITLG cs%d\n" % t + mfma32(CS, CB + 8 * (t % 6), ones, z))
            if t + 3 < tb:
                o += cr[t + 3][:2]
            o.append(mfma32(CS + 4, CB + 8 * (t % 6) + 4, ones, z))
            if t + 3 < tb:
                o += cr[t + 3][2:]
        return o

    s_rt3 = s_a[0]
    CS1 = min(4 * NA, opt("cs1", 16))
    st += colsum(0, CS1)
    st += ["s_lshl_b32 s%d, s%d, 2" % (s_rt3, s_g3),
           "s_add_u32 s%d, s%d, s%d" % (s_rt3, s_rt3, s_w),
           "s_lshl_b32 s%d, s%d, 11" % (s_t, s_rt3),
           "s_add_u32 s%d, s%d, 0x%x" % (s_t, s_t, WS_ST),
           "s_lshl_b32 s%d, s%d, 3" % (s_b[0], s_rt3),
           "s_add_u32 s%d, s%d, s%d" % (s_b[0], s_b[0], s_r),
           "s_lshl_b32 s%d, s%d, 12" % (s_b[0], s_b[0]),
           "s_add_u32 s%d, s%d, 0x%x" % (s_b[0], s_b[0], WS_H)]
    for p in range(1, 4):
        st.append("s_xor_b32 s%d, s%d, 0x%x" % (s_b[p], s_b[0], p << 12))
    W2Q = sum([w2_dma(n) for n in range(14)], [])
    G3A = opt("g3a", 7)
    q = W1Q[:G3A] + mall(opt("me", 0))
    W1Q = W1Q[G3A:]
    W = Weave(st)
    left = W.every(q, 1, max(2, min(10, len(st) // max(len(q), 1))))
    e(W.out())
    e(flat(left))
    e("WAITVM hst")
    e("s_mov_b64 exec, 0xffff")
    e("buffer_store_dwordx2 %s, %s, %s, s%d offen sc1" % (vr(SS, 2), vr(t3), sr(SWS, 4), s_st))
    e("s_mov_b64 exec, -1")
    k.stamp("flagC")
    k.flush()
    e(flat(W1Q + mall(opt("mf", 0))))
    R1 = opt("r1", 8)
    e(flat(W2Q[:R1]))
    W2Q = W2Q[R1:]
    if CS1 < 4 * NA:
        e(colsum(CS1, 4 * NA))
    if NA < 4:
        e("WAITVM w1g3")
        e("s_barrier")
        e(colsum(4 * NA, 16))
    e("ds_write_b128 %s, %s" % (vr(vcw), vr(CS, 4)))
    e("ds_write_b128 %s, %s offset:256" % (vr(vcw), vr(CS + 4, 4)))
    s_ac0, s_ac1, s_fd = s_a[1], s_a[2], s_a[3]
    e(["s_lshl_b32 s%d, s%d, 4" % (s_to, s_rt3),
       "s_add_u32 s%d, s%d, s%d" % (s_to, s_to, s_cb3),
       "s_mul_i32 s%d, s%d, 7168" % (s_ac0, s_to),
       "s_add_u32 s%d, s%d, 0x%x" % (s_ac0, s_ac0, WS_ACT),
       "s_add_u32 s%d, s%d, 3072" % (s_ac1, s_ac0),
       "s_lshl_b32 s%d, s%d, 7" % (s_fd, s_to),
       "s_add_u32 s%d, s%d, 0x%x" % (s_fd, s_fd, WS_FD)])
    e("s_waitcnt lgkmcnt(0)")
    e("s_barrier")
    e(["ds_read_b128 %s, %s offset:%d ;@cf" % (vr(CF + 4 * u, 4), vr(vcr), u * 64) for u in range(7)])

    def w1reads(t, sg):
        b, off = w1pos(t)
        us = (0, 1, 2, 3) if sg == 0 else (4, 5, 6)
        return ["ds_read_b64_tr_b16 %s, %s offset:%d ;@a%d_%d" % (vr(w1buf(t, u) + 2 * hf, 2), vr(va + b), off + 32 * u + hf * 3584, sg, t)
                for u in us for hf in range(2)]

    def w1buf(t, u):
        return WB + 16 * (t % 3) + 4 * u if u < 4 else WB + 12 * (t % 4) + 4 * (u - 4)
    e(w1reads(0, 0) + w1reads(1, 0))
    VA, VS, vrw, vrr = V1, V1 + 4, vc, vc + 2
    vD = vc + 5
    s_ap = s_c[0:4]
    st = []
    st.append("v_add_u32 %s, s%d, %s" % (vr(vrw), s_w8, vr(l16)))
    st.append("v_add_u32 %s, s%d, %s" % (vr(vrw + 1), s_s2, vr(l16)))
    st.append("v_xor_b32 %s, 0x%x, %s" % (vr(vrr), 1 << 13, vr(vrw)))
    st.append("v_xor_b32 %s, 0x%x, %s" % (vr(vrr + 1), 2 << 13, vr(vrw)))
    st.append("s_xor_b32 s%d, s%d, 3" % (s_to, s_w))
    st.append("s_lshl_b32 s%d, s%d, 15" % (s_to, s_to))
    st.append("s_cmp_eq_u32 s%d, 0\ns_cselect_b32 s%d, 0x20000, s%d" % (s_w, s_to, s_to))
    st.append("s_add_u32 s%d, s%d, 28672" % (s_to, s_to))
    st.append("v_add_u32 %s, s%d, %s" % (vr(vrr + 2), s_to, vr(l16)))
    for v in range(4):
        st.append("s_xor_b32 s%d, s%d, %d" % (s_to, s_w, v))
        st.append("s_lshr_b32 s%d, s%d, 1" % (s_fp, s_to))
        st.append("s_mul_i32 s%d, s%d, %d" % (s_fp, s_fp, 16 * 7168))
        if v & 1 == 0:
            st.append("v_add_u32 %s, s%d, %s" % (vr(VS + (v >> 1)), s_fp, vr(l16)))
            st.append("v_add_u32 %s, 6144, %s" % (vr(VS + (v >> 1)), vr(VS + (v >> 1))))
        st.append("s_and_b32 s%d, s%d, 1" % (s_to, s_to))
        st.append("s_mul_i32 s%d, s%d, 3072" % (s_to, s_to))
        st.append("s_add_u32 s%d, s%d, s%d" % (s_fp, s_fp, s_to))
        st.append("v_add_u32 %s, s%d, %s" % (vr(VA + v), s_fp, vr(l16)))
    st.append("s_lshl_b32 s%d, s%d, 3" % (s_fp, s_rb2))
    st.append("s_add_u32 s%d, s%d, s%d" % (s_fp, s_fp, s_w))
    st.append("s_lshl_b32 s%d, s%d, 2" % (s_fp, s_fp))
    for p in range(4):
        st.append("s_xor_b32 s%d, s%d, %d" % (s_to, s_r, p))
        st.append("s_add_u32 s%d, s%d, s%d" % (s_to, s_to, s_fp))
        st.append("s_mul_i32 s%d, s%d, 7168" % (s_to, s_to))
        st.append("s_add_u32 s%d, s%d, 0x%x" % (s_ap[p], s_to, WS_ACT))
    st.append("s_lshl_b32 s%d, s%d, 7" % (s_fp, s_fp))
    st.append("s_add_u32 s%d, s%d, 0x%x" % (s_fp, s_fp, WS_FD))
    st.append("v_bfe_u32 %s, v0, 2, 1" % vr(t0))
    st.append("v_lshlrev_b32 %s, 11, %s" % (vr(t0), vr(t0)))
    st.append("v_and_b32 %s, 3, v0" % vr(t1))
    st.append("v_lshl_add_u32 %s, %s, 7, %s" % (vr(t0), vr(t1), vr(t0)))
    st.append("v_bfe_u32 %s, v0, 3, 2" % vr(t1))
    st.append("v_lshl_add_u32 %s, %s, 17, %s" % (vr(vD), vr(t1), vr(t0)))
    e(st)
    nrd = 0
    R2 = opt("r2", 12)
    stl = ["buffer_load_dwordx2 %s, %s, %s, s%d offen offset:%d sc1" % (vr(STR + 4 * rt + 2 * i, 2), vr(vst), sr(SWS, 4), s_t, rt * 1024 + i * 128)
           for rt in range(2) for i in range(2)]
    if R2:
        assert R1 == 8
        e(flat(W2Q[:4]))
        e(w2_rd(0) + w2_rd(1))
        nrd = 2
        e(flat(W2Q[4:R2]))
        W2Q = W2Q[R2:]
    k.stamp("cs_done")
    e("s_mov_b32 s%d, %d" % (s_to, 20000 if FINE else TIMEOUT))
    e("L_pollC:")
    e([x + " ;@cond" for x in stl])
    e("s_waitcnt vmcnt(0)")
    e("v_min3_u32 %s, %s, %s, %s" % (vr(t0), vr(STR + 1), vr(STR + 3), vr(STR + 5)))
    e("v_min_u32 %s, %s, %s" % (vr(t0), vr(t0), vr(STR + 7)))
    e("v_cmp_eq_u32 vcc, 0, %s" % vr(t0))
    e("s_cbranch_vccz L_okC")
    e("s_sub_u32 s%d, s%d, 1" % (s_to, s_to))
    e("s_cbranch_scc0 L_pollC")
    e("L_okC:")
    k.stamp("pollC")
    HF = A0
    hl = []
    for t in range(16):
        for rt in range(2):
            hl.append(([], "buffer_load_dwordx4 %s, %s, %s, s%d offen offset:%d sc1 ;@h%d" % (vr(HF + 8 * t + 4 * rt, 4), vr(l16b if rt else l16), sr(SWS, 4), s_b[t >> 2], (t & 3) * 1024, t)))
    sv = []
    for rt in range(2):
        sv.append("v_pk_add_f32 %s, %s, %s" % (vr(STR + 4 * rt, 2), vr(STR + 4 * rt, 2), vr(STR + 4 * rt + 2, 2)))
    sv += xg_reduce([STR, STR + 1, STR + 4, STR + 5], tmp4)
    for op in range(8):
        for rt in range(2):
            a, b, c = STR + 4 * rt, STR + 4 * rt + 1, STR + 4 * rt + 2
            sv.append(["v_mul_f32 %s, %s, %s" % (vr(a), f32(-1.0 / 512), vr(a)),
                       "v_mul_f32 %s, %s, %s" % (vr(b), f32(-1.0 / 512), vr(b)),
                       "v_fma_f32 %s, -%s, %s, %s" % (vr(b), vr(a), vr(a), vr(b)),
                       "v_max_f32 %s, 0, %s" % (vr(b), vr(b)),
                       "v_add_f32 %s, %s, %s" % (vr(b), f32(1e-5), vr(b)),
                       "v_rsq_f32 %s, %s" % (vr(c), vr(b)),
                       "v_mul_f32 %s, %s, %s" % (vr(b), vr(b), vr(c)),
                       "v_mul_f32 %s, %s, %s" % (vr(c), f32(LOG2E), vr(c))][op])
    first = True
    for u in range(7):
        for op in range(2):
            for rt in range(2):
                for hp in range(2):
                    a = ACC + 8 * u + 4 * rt + 2 * hp
                    if op == 0:
                        x = "v_pk_mul_f32 %s, %s, %s op_sel:[0,1] op_sel_hi:[1,1]" % (vr(a, 2), vr(BF + 4 * u + 2 * hp, 2), vr(STR + 4 * rt, 2))
                    else:
                        x = "v_pk_fma_f32 %s, %s, %s, %s op_sel_hi:[1,0,1]" % (vr(a, 2), vr(CF + 4 * u + 2 * hp, 2), vr(STR + 4 * rt, 2), vr(a, 2))
                        if first:
                            x = "WAITLG cf\n" + x
                            first = False
                    sv.append(x)
    P3N = opt("p3n", 10)
    W = Weave(flat(hl[:P3N]))
    W.fill(sv, opt("sv0", 3), cap=opt("svc", 12))
    e(W.out())
    mm = []
    for t in range(16):
        x = [mfma32(ACC + 8 * u + 4 * rt, w1buf(t, u), HF + 8 * t + 4 * rt) for u in range(4) for rt in range(2)]
        pre = "WAITVM h%d\nWAITLG a0_%d\n" % (t, t)
        if t in (0, 8):
            pre += k.stamp_text("t%d" % t) + "\n"
        x[0] = pre + x[0]
        mm += x
    W = Weave(mm)
    for t in range(14):
        for i, r in enumerate(w1reads(t + 2, 0)):
            W.at(8 * t + i + 1, r)
    q = hl[P3N:]
    W.every(q, 2, 4)
    niss = (56 - len(W2Q)) // 4
    rds = []
    while nrd < niss:
        rds += w2_rd(nrd, False)
        nrd += 1
    pos = W.fill(rds, 1, cap=2)
    R3 = opt("r3", 8)
    left = W.every(W2Q[:R3], max(pos + 8, 2 + 4 * len(q)), 4)
    W2Q = left + W2Q[R3:]
    W.fill(["\n".join(["s_bitcmp1_b32 s%d, 0" % s_w] + ["s_cselect_b32 s%d, s%d, s%d" % (s_b[c], s_ap[c ^ 1], s_ap[c]) for c in range(4)])], 8 * 15 + 2)
    e(W.out())
    k.stamp("p3a")
    tm = BR

    def mish(u, rt, ob):
        R = STR + 4 * rt + 2
        o = []
        for hp in range(2):
            a = ACC + 8 * u + 4 * rt + 2 * hp
            E = tm + 4 * hp + 2
            o.append("v_pk_mul_f32 %s, %s, %s op_sel_hi:[1,0]" % (vr(a, 2), vr(a, 2), vr(R, 2)))
            o.append("v_exp_f32 %s, %s" % (vr(E), vr(a)))
            o.append("v_exp_f32 %s, %s" % (vr(E + 1), vr(a + 1)))
        for hp in range(2):
            C, E = tm + 4 * hp, tm + 4 * hp + 2
            o.append("v_pk_fma_f32 %s, %s, -0.5, -1.0 op_sel_hi:[1,0,0]" % (vr(C, 2), vr(E, 2)))
            o.append("v_pk_fma_f32 %s, %s, %s, -1.0 op_sel_hi:[1,1,0]" % (vr(C, 2), vr(E, 2), vr(C, 2)))
            o.append("v_rcp_f32 %s, %s" % (vr(C), vr(C)))
            o.append("v_rcp_f32 %s, %s" % (vr(C + 1), vr(C + 1)))
        for hp in range(2):
            a = ACC + 8 * u + 4 * rt + 2 * hp
            C = tm + 4 * hp
            o.append("v_pk_fma_f32 %s, %s, %s, %s" % (vr(a, 2), vr(C, 2), vr(a, 2), vr(a, 2)))
        for hp in range(2):
            a = ACC + 8 * u + 4 * rt + 2 * hp
            o.append("v_cvt_pk_bf16_f32 %s, %s, %s" % (vr(ob + hp), vr(a), vr(a + 1)))
        return o

    def piece(pc):
        if pc is None:
            ob = ACC + 48
            return mish(6, 0, ob) + mish(6, 1, ob + 2) + [
                "buffer_store_dwordx4 %s, %s, %s, s%d offen offset:3072 sc1 ;@ast2" % (vr(ob, 4), vr(l16), sr(SWS, 4), s_ac1)]
        rt, a = pc
        ob = ACC + 16 * a + 4 * rt
        return mish(2 * a, rt, ob) + mish(2 * a + 1, rt, ob + 2) + [
            "buffer_store_dwordx4 %s, %s, %s, s%d offen offset:%d sc1 ;@ast%d" % (vr(ob, 4), vr(l16), sr(SWS, 4), (s_ac0, s_ac1)[rt], a * 1024, a)]

    body = piece((0, 0)) + piece((1, 0)) + piece((0, 1)) + piece((1, 1))
    W = Weave(body)
    W.fill(w1reads(0, 1) + w1reads(1, 1) + w1reads(2, 1), len(body) - 40, cap=1)
    e(W.out())
    k.stamp("epi_a")
    k.flush()
    mm = []
    for t in range(16):
        x = [mfma32(ACC + 8 * u + 4 * rt, w1buf(t, u), HF + 8 * t + 4 * rt) for u in range(4, 7) for rt in range(2)]
        x[0] = "WAITLG a1_%d\n" % t + x[0]
        mm += x
    W = Weave(mm)
    for t in range(13):
        for i, r in enumerate(w1reads(t + 3, 1)):
            W.at(6 * t + i + 1, r)

    def fstore(i, wait):
        return "\n".join(["WAITVM " + wait, "s_mov_b64 exec, 1",
                          "buffer_store_dword %s, off, %s, s%d sc1" % (vr(vone), sr(SWS, 4), s_fd),
                          "s_mov_b64 exec, -1", "s_add_u32 s%d, s%d, 0x%x" % (s_fd, s_fd, FDS), k.stamp_text("flagD%d" % i)])
    if NFD == 3:
        W.at(opt("fd0", 16), fstore(0, "ast0"), cost=4)
    W.at(opt("fd1", 44), fstore(1, "ast1"), cost=4)
    w2s = [W2Q, nrd]

    def place(W, spec, step, cap):
        pos = 1
        for sp in spec.split(","):
            if not sp:
                continue
            if sp[0] == "@":
                pos = max(pos, int(sp[1:]))
            elif sp[0] == "R":
                assert w2s[1] < (56 - len(w2s[0])) // 4
                pos = W.fill(w2_rd(w2s[1]), pos, cap=cap) + 1
                w2s[1] += 1
            else:
                n = int(sp[1:])
                left = W.every(w2s[0][:n], pos + 1, step)
                W.at(len(W.main), flat(left))
                w2s[0] = w2s[0][n:]
                pos += step * n
    place(W, opt_s("p3b", "L4,R,R,L8,@62,R,L4"), 4, 2)
    e(W.out())
    k.stamp("p3b")
    body = piece((0, 2)) + piece((1, 2)) + piece(None)
    W = Weave(body)
    place(W, opt_s("epb", "R,R,L8,@70,R,L4"), opt("eps", 5), 1)
    W.at(len(body) - opt("pds", 40), "\n".join(["s_mov_b64 exec, 0x%x" % (0xff if NFD == 2 else 0xffff), poll_load(vD, SWS, "s%d" % s_fp, vP) + " ;@pd", "s_mov_b64 exec, -1"]))
    e(W.out())
    k.stamp("epi_b")
    k.flush()
    W = Weave([])
    place(W, opt_s("g4a", ""), 0, 99)
    e(W.out())

    def pollD(i, first, e=e):
        n = npoll[0]
        npoll[0] += 1
        e("s_mov_b64 exec, 0x%x" % (0xff << (8 * i)))
        e("s_mov_b32 s%d, %d" % (s_to, 20000 if FINE else TIMEOUT))
        e("v_cmp_eq_u32 vcc, 0, %s" % vr(first))
        e("s_cbranch_vccz L_ok%d" % n)
        e("L_poll%d:" % n)
        e(poll_load(vD, SWS, "s%d" % s_fp, t1) + " ;@cond")
        e("s_waitcnt vmcnt(0)")
        e("v_cmp_eq_u32 vcc, 0, %s" % vr(t1))
        e("s_cbranch_vccz L_ok%d" % n)
        e("s_sub_u32 s%d, s%d, 1" % (s_to, s_to))
        e("s_cbranch_scc0 L_poll%d" % n)
        e("L_ok%d:" % n)
        e("s_mov_b64 exec, -1")
        e(k.stamp_text("pollD%d" % i))

    e("WAITVM pd")
    pollD(0, vP)
    OA = opt("oa", 4)
    if NFD == 3:
        seq = [(v, n) for v in (2, 3, 1, 0) for n in range(4)] + [(v, n) for v in (2, 3, 1, 0) for n in range(4, 8)]
    else:
        seq = [(v, n) for v in (2, 3, 1, 0) for n in range(8)]
    lseq = list(seq)
    seq = [x for x in seq if x[0] or x[1] < OA]
    NSA = len(seq)
    seq += [(v, n) for v in (2, 3, 1) for n in range(8, 14)]
    NSB = len(seq)
    seq += [(0, n) for n in range(OA, 14)]
    AF = {}
    la, lb = [], []
    for i, (v, n) in enumerate(lseq):
        _, c, a = KS4[n]
        AF[(v, n)] = A0 + 4 * i
        la.append(([], "buffer_load_dwordx4 %s, %s, %s, s%d offen offset:%d sc1 ;@x%d_%d" % (vr(AF[(v, n)], 4), vr(VA + v), sr(SWS, 4), s_ap[c], a * 1024, v, n)))
    free = [AF[x] for x in seq[:NSA]]
    minpos = []
    for v in (2, 3, 1, 0):
        for n in range(8, 14):
            kd = KS4[n]
            if kd[0] == "r":
                _, c, a = kd
                minpos.append(4 * (NSA - len(free)) + 4)
                AF[(v, n)] = free.pop(0)
                lb.append(([], "buffer_load_dwordx4 %s, %s, %s, s%d offen offset:%d sc1 ;@x%d_%d" % (vr(AF[(v, n)], 4), vr(VA + v), sr(SWS, 4), s_ap[c], a * 1024, v, n)))
            elif v in (2, 1):
                ee, pp = kd[1], v >> 1
                for ab in range(2):
                    minpos.append(0)
                    AF[(2 * pp + ab, n)] = SG[4 * ee + 2 * pp + ab]
                    lb.append(([], "buffer_load_dwordx4 %s, %s, %s, s%d offen sc1 ;@x%d_%d" % (vr(AF[(2 * pp + ab, n)], 4), vr(VS + pp), sr(SWS, 4), s_b[2 * ee + ab], v, n)))
    if NFD == 3:
        pt = []
        pollD(1, vP, e=pt.append)
        la[16] = (["\n".join(pt)], la[16][1])
    N0 = opt("p4n0", 12)
    W = Weave(flat(la[:N0]))
    e(W.out())
    W = Weave([])
    place(W, opt_s("g4b", ""), 0, 99)
    e(W.out())
    assert w2s[1] >= 8
    FD2 = opt("fd2", 0)
    mm = []
    started = set()
    waited = set()
    for i, (v, n) in enumerate(seq):
        kd = KS4[n]
        x = [mfma32(AC4[4 * v + nt], W2R[n][nt], AF[(v, n)], None if v in started else "0") for nt in range(4)]
        started.add(v)
        pre = []
        if kd[0] == "r" or v in (2, 1):
            pre.append("WAITVM x%d_%d" % (v, n))
        if n not in waited and (n == 0 or n >= 8):
            pre.append("WAITLG r2_%d" % max(n, 7))
        waited.add(n)
        if kd[0] == "s" and v in (2, 1):
            ee, pp = kd[1], v >> 1
            A, B = SG[4 * ee + 2 * pp], SG[4 * ee + 2 * pp + 1]
            lbl = "%d_%d" % (ee, pp)
            pre += ["s_bitcmp1_b32 s%d, 0" % s_w, "s_cbranch_scc1 L_odd" + lbl,
                    "v_swap_b32 %s, %s" % (vr(A + 2), vr(B)), "v_swap_b32 %s, %s" % (vr(A + 3), vr(B + 1)),
                    "s_branch L_sw" + lbl, "L_odd%s:" % lbl,
                    "v_swap_b32 %s, %s" % (vr(A + 0), vr(B + 2)), "v_swap_b32 %s, %s" % (vr(A + 1), vr(B + 3)),
                    "L_sw%s:" % lbl, "s_nop 1"]
        if i in (0, NSA, NSB):
            pre.append("STAMP%d" % i)
        x[0] = "\n".join(pre + [x[0]])
        mm += x
    mm[0] = mm[0].replace("STAMP0", k.stamp_text("y0"))
    W = Weave(mm)
    W.at(FD2, fstore(2, "ast2"), cost=4)
    nown = 32 - NSA
    if NFD == 3:
        assert OA >= 4
    q = la[N0:32 - nown]
    left = W.every(q, 2, 4)
    assert not left
    pos = 2 + 4 * len(q)
    lb = lb[:20] + la[32 - nown:] + lb[20:]
    minpos = minpos[:20] + [0] * nown + minpos[20:]
    PB = opt("pb", 4 * NSA - 44)
    PS = opt("ps", 36)
    W.at(PB - PS, "\n".join(["s_mov_b64 exec, 0x%x" % (0xff << (8 * (NFD - 1))), poll_load(vD, SWS, "s%d" % s_fp, vP) + " ;@pe", "s_mov_b64 exec, -1"]), cost=3)
    pt = ["WAITVM pe"]
    pollD(NFD - 1, vP, e=pt.append)
    W.at(PB, "\n".join(pt), cost=6)
    W.main[4 * NSA] = W.main[4 * NSA].replace("STAMP%d" % NSA, k.stamp_text("yb"))
    W.main[4 * NSB] = W.main[4 * NSB].replace("STAMP%d" % NSB, k.stamp_text("yo"))
    pos = max(pos, PB + 1)
    NB0 = opt("nb0", 6)
    for i, it in enumerate(lb):
        assert pos >= minpos[i], (pos, minpos[i])
        W.every([it], pos, 4)
        pos += 1 if i < NB0 else 4
    place(W, opt_s("p4s", "@60,R,R,R"), 4, 2)
    assert w2s[1] == 14
    ROFF = {1: (0, 0), 2: (0, 4096), 3: (1, 0)}
    for i, v in enumerate((2, 3, 1)):
        for nt in range(4):
            W.at(4 * NSA + 24 * (i + 1) + 3 + 4 * nt, "ds_write_b128 %s, %s offset:%d" % (vr(vrw + ROFF[v][0]), vr(AC4[4 * v + nt], 4), ROFF[v][1] + nt * 1024), cost=2)
    XR_ = [SG[x] + j for x in (2, 3, 6, 7) for j in range(4)]
    cl = t2
    unp = ["v_mov_b32 %s, %s" % (vr(cl), f32(LN2))]
    for j in range(8):
        unp.append("v_lshlrev_b32 %s, 16, %s" % (vr(XR_[2 * j]), vr(HB + j)))
        unp.append("v_and_b32 %s, 0xffff0000, %s" % (vr(XR_[2 * j + 1]), vr(HB + j)))
    W.fill(unp, 4 * NSA + 48 + 2, cap=2)
    YB = 4 * NSB + opt("yb", 18)
    W.at(YB, "s_waitcnt lgkmcnt(0)\ns_barrier\n" + k.stamp_text("red_bar"))
    rl = ["ds_read_b128 %s, %s offset:%d ;@p%d" % (vr(AC4[4 * v + nt], 4), vr(vrr + v - 1), ROFF[v][1] + nt * 1024, v) for v in (1, 2, 3) for nt in range(4)]
    pos = W.fill(rl, YB, cap=3)
    ad = []
    for v in (1, 2, 3):
        for j in range(16):
            x = "v_fmac_f32 %s, %s, %s" % (vr(XR_[j]), vr(AC4[4 * v + (j >> 2)] + (j & 3)), vr(cl))
            if j == 0:
                x = "WAITLG p%d\n" % v + x
            ad.append(x)
    W.fill(ad, pos + 4, cap=2)
    e(W.out())
    k.stamp("y_done")
    for j in range(8):
        for x in (2 * j, 2 * j + 1):
            e("v_fmac_f32 %s, %s, %s" % (vr(XR_[x]), vr(AC4[x >> 2] + (x & 3)), vr(cl)))
        e("v_cvt_pk_bf16_f32 %s, %s, %s" % (vr(HB + j), vr(XR_[2 * j]), vr(XR_[2 * j + 1])))
        if j & 3 == 3:
            P = j >> 2
            e("v_permlane16_swap_b32 %s, %s" % (vr(HB + 4 * P), vr(HB + 4 * P + 2)))
            e("v_permlane16_swap_b32 %s, %s" % (vr(HB + 4 * P + 1), vr(HB + 4 * P + 3)))
            e("buffer_store_dwordx4 %s, %s, %s, s%d offen offset:%d" % (vr(HB + 4 * P, 4), vr(vxo), sr(SOUT, 4), s_xo, P * 64))
    if FINE:
        k.stamp("issued")
        e("s_waitcnt vmcnt(0)")
        k.stamp("drained")
        k.flush()
        e("v_lshlrev_b32 %s, 2, v0" % vr(t0))
        e("s_lshl_b32 s%d, s2, 10" % s_t)
        e("s_add_u32 s%d, s%d, 0x%x" % (s_t, s_t, WS_STAMP))
        e("buffer_store_dword v255, %s, %s, s%d offen" % (vr(t0), sr(SWS, 4), s_t))
        open(OUT + ".txt", "w").write(" ".join(k.stamps))
    e("L_done:\ns_endpgm")
    return k


def main():
    k = build()
    L = []
    L.append("; @launch grid=(256,1,1) block=(256,1,1) lds=163840")
    L.append('.amdgcn_target "amdgcn-amd-amdhsa--gfx950"')
    L.append(".text")
    L += hz.fix(resolve(k.L))
    L.append("L_code_end:")
    L.append('.section .rodata,"a"')
    L.append(".p2align 6\n.amdhsa_kernel %s" % NAME)
    L.append("  .amdhsa_next_free_vgpr 512\n  .amdhsa_next_free_sgpr 102\n  .amdhsa_accum_offset 256")
    L.append("  .amdhsa_group_segment_fixed_size 0\n  .amdhsa_kernarg_size 80\n  .amdhsa_user_sgpr_count 2\n"
             "  .amdhsa_user_sgpr_kernarg_segment_ptr 1\n  .amdhsa_system_sgpr_workgroup_id_x 1\n.end_amdhsa_kernel")
    print("max vgpr", k.maxv, "lines", len(L))
    open(OUT, "w").write("\n".join(L) + "\n")


main()
```

```python
import sys, struct
sys.path.insert(0, "tools")
import hz

OUT = sys.argv[1]
OPTS = set(sys.argv[2:])
FINE = "fine" in OPTS
NAME = "sequential_preLN__linear_attn_block__dense_activation_mish__prompt_kernel"

WS_PART = 0x000000
WS_O = 0x100000
WS_H = 0x400000
WS_ST = 0x600000
WS_FA, WS_FC, WS_FD = 0x700000, 0x740000, 0x760000
FDS = 0x20000
WS_ACT = 0x800000
WS_STAMP = 0x8000000

L_RING = 65536
SLOT = 24576
L_SCR = 159744
L_WO = 65536
L_W1 = [131072, 0, 32768, 65536]
L_CS = 61440
TIMEOUT = 1000000
NSTAMP = 12

LOG2E = 1.4426950408889634
LN2 = 0.6931471805599453


def f32(x):
    return "0x%08x" % struct.unpack("<I", struct.pack("<f", x))[0]


def opt(name, default):
    for o in OPTS:
        if o.startswith(name + "="):
            return int(o.split("=")[1])
    return default


def opt_s(name, default):
    for o in OPTS:
        if o.startswith(name + "="):
            return o.split("=")[1]
    return default


NFD = opt("nfd", 2)


class K:
    def __init__(self):
        self.L = []
        self.nv = 1
        self.maxv = 1
        self.stamps = []
        self.pend = 0

    def e(self, s):
        if isinstance(s, (list, tuple)):
            for x in s:
                self.e(x)
        elif s:
            self.L.append(s)

    def stamp_text(self, name):
        if not FINE:
            return ""
        assert self.pend < NSTAMP, name
        t = "%s s[%d:%d]" % ("s_memtime" if "clk" in OPTS else "s_memrealtime", 72 + 2 * self.pend, 73 + 2 * self.pend)
        self.stamps.append(name)
        self.pend += 1
        return t

    def stamp(self, name=""):
        self.e(self.stamp_text(name))

    def flush(self):
        if not FINE or not self.pend:
            return
        self.e("s_waitcnt lgkmcnt(0)")
        base = len(self.stamps) - self.pend
        for n in range(self.pend):
            self.e("v_writelane_b32 v255, s%d, %d" % (72 + 2 * n, base + n))
        self.e("s_nop 3")
        self.pend = 0

    def alloc(self, n=1, align=1):
        if n >= 2 and align < 2:
            align = 2
        self.nv = (self.nv + align - 1) // align * align
        r = self.nv
        self.nv += n
        self.maxv = max(self.maxv, self.nv)
        assert self.nv <= (255 if FINE else 256), "out of VGPRs"
        return r


def resolve(lines):
    flat = []
    for l in lines:
        flat += l.split("\n")
    out = []
    vm, lg = [], []
    for l in flat:
        t = l.strip()
        if not t:
            continue
        if t.startswith("WAITVM") or t.startswith("WAITLG"):
            isvm = t.startswith("WAITVM")
            lst = vm if isvm else lg
            n = None
            for tag in t.split()[1:]:
                idx = max(i for i, x in enumerate(lst) if x == tag)
                c = len(lst) - 1 - idx
                n = c if n is None else min(n, c)
            n = min(n, 63 if isvm else 15)
            out.append("s_waitcnt %s(%d)" % ("vmcnt" if isvm else "lgkmcnt", n))
            continue
        tag = t.split(";@")[1].strip() if ";@" in t else "_"
        if t.startswith(("buffer_", "global_")):
            if tag != "cond":
                vm.append(tag)
        elif t.startswith("ds_"):
            lg.append(tag)
        out.append(l.split(";@")[0].rstrip())
    return out


class Weave:
    def __init__(self, main):
        self.main = list(main)
        self.s = [[] for _ in range(len(self.main) + 1)]
        self.c = [0] * (len(self.main) + 1)

    def at(self, i, items, cost=1):
        if not isinstance(items, (list, tuple)):
            items = [items]
        i = min(i, len(self.main))
        for x in items:
            if x:
                self.s[i].append(x)
                self.c[i] += cost

    def every(self, items, start, step, stop=None):
        stop = len(self.main) if stop is None else stop
        i = start
        items = list(items)
        while items and i <= stop:
            pre, ins = items.pop(0)
            self.at(max(i - 1, 0), pre)
            self.at(i, ins, cost=2)
            i += step
        return items

    def fill(self, items, start, cap=1, stop=None):
        stop = len(self.main) if stop is None else stop
        i = start
        for x in items:
            while i < stop and self.c[i] >= cap:
                i += 1
            self.at(i, x)
        return i

    def out(self):
        o = []
        for i, m in enumerate(self.main):
            o += self.s[i]
            o.append(m)
        o += self.s[-1]
        return o


def flat(items):
    o = []
    for pre, ins in items:
        o += list(pre)
        o.append(ins)
    return o


def vr(n, c=1):
    p = "v"
    if n >= 256:
        p = "a"
        n -= 256
    if c == 1:
        return "%s%d" % (p, n)
    return "%s[%d:%d]" % (p, n, n + c - 1)


def sr(n, c=1):
    return "s%d" % n if c == 1 else "s[%d:%d]" % (n, n + c - 1)


def mfma32(d, a, b, c=None):
    cs = vr(d, 4) if c is None else (c if isinstance(c, str) else vr(c, 4))
    return "v_mfma_f32_16x16x32_bf16 %s, %s, %s, %s" % (vr(d, 4), vr(a, 4), vr(b, 4), cs)


def mfma16(d, a, b, c):
    cs = c if isinstance(c, str) else vr(c, 4)
    return "v_mfma_f32_16x16x16_bf16 %s, %s, %s, %s" % (vr(d, 4), vr(a, 2), vr(b, 2), cs)


SX, SWQ, SWS, SDB, SWO, SW1, SW2, SB1, SOUT = 8, 12, 16, 20, 24, 28, 32, 36, 40
s_w, s_rb, s_cg, s_r, s_t = 3, 4, 5, 6, 7
s_t2, s_ox, s_w1b, s_m0x, s_m0w, s_xo, s_wob = 44, 45, 46, 47, 48, 49, 50
s_rb2, s_cb, s_g3, s_cb3 = 51, 52, 53, 54
s_a = [55, 56, 57, 58]
s_b = [59, 60, 61, 62]
s_to = 63
s_c = list(range(64, 72))
A0 = 256


def build():
    k = K()
    e = k.e
    e(".globl %s\n.p2align 8\n.type %s,@function\n%s:" % (NAME, NAME, NAME))
    e("s_cmp_ge_u32 s2, 256")
    e("s_cbranch_scc1 L_done")
    k.stamp("start")
    for base, off, size in ((SX, 0, 2048 * 1024), (SWQ, 8, 512 * 3072), (SWS, 72, 0x10000000), (SDB, 64, 256),
                            (SWO, 16, 512 * 1024), (SW1, 32, 512 * 3584), (SW2, 48, 1792 * 1024), (SB1, 40, 3584),
                            (SOUT, 56, 2048 * 1024)):
        e("s_load_dwordx2 %s, s[0:1], %d" % (sr(base, 2), off))
    for base, off, size in ((SX, 0, 2048 * 1024), (SWQ, 8, 512 * 3072), (SWS, 72, 0x10000000), (SDB, 64, 256),
                            (SWO, 16, 512 * 1024), (SW1, 32, 512 * 3584), (SW2, 48, 1792 * 1024), (SB1, 40, 3584),
                            (SOUT, 56, 2048 * 1024)):
        e("s_mov_b32 s%d, 0x%x" % (base + 2, size))
        e("s_mov_b32 s%d, 0x20000" % (base + 3))
    t0, t1, t2, t3 = k.alloc(), k.alloc(), k.alloc(), k.alloc()
    l16, l128, vone, vP = k.alloc(), k.alloc(), k.alloc(), k.alloc()
    vxo = k.alloc()
    VD = k.alloc(4)
    TA = k.alloc(4)
    HB = k.alloc(8, 4)
    ones = k.alloc(4, 4)
    PERS = k.nv
    V1 = k.alloc(7)
    vM14, vMd = k.alloc(), k.alloc()
    PERS2 = k.nv
    if FINE:
        e("v_mov_b32 v255, 0")
    e("v_lshrrev_b32 %s, 6, v0" % vr(t1))
    if opt("pfcode", 1):
        e("s_getpc_b64 s[96:97]")
        e("L_pc:")
        e("v_and_b32 %s, 3, v0" % vr(t0))
        e("v_lshl_add_u32 %s, %s, 2, %s" % (vr(t0), vr(t1), vr(t0)))
        e("s_lshr_b32 s%d, s2, 3" % s_t)
        e("s_lshl_b32 s%d, s%d, 11" % (s_t, s_t))
        e("v_lshl_add_u32 %s, %s, 7, s%d" % (vr(t0), vr(t0), s_t))
        e("v_min_u32 %s, L_code_end-L_pc-4, %s" % (vr(vP), vr(t0)))
        e("global_load_dword %s, %s, s[96:97]" % (vr(vP), vr(vP)))
    s_ph = s_a[3]
    e("s_bfe_u32 s%d, s2, 0x20001" % s_rb)
    e("s_lshl_b32 s%d, s%d, 3" % (s_rb, s_rb))
    e("s_bfe_u32 s%d, s2, 0x30003" % s_ph)
    e("s_add_u32 s%d, s%d, s%d" % (s_rb, s_rb, s_ph))
    e("s_and_b32 s%d, s2, 1" % s_cg)
    e("s_lshl_b32 s%d, s%d, 2" % (s_cg, s_cg))
    e("s_lshr_b32 s%d, s2, 6" % s_t2)
    e("s_add_u32 s%d, s%d, s%d" % (s_cg, s_cg, s_t2))
    e("s_lshl_b32 s%d, s%d, 1" % (s_t2, s_t2))
    e("s_add_u32 s%d, s%d, s%d" % (s_ph, s_ph, s_t2))
    vx0, vx1, vw0, vw1 = k.alloc(), k.alloc(), k.alloc(), k.alloc()
    e("v_lshrrev_b32 %s, 3, v0" % vr(t0))
    e("v_readfirstlane_b32 s%d, %s" % (s_w, vr(t1)))
    e("v_lshl_add_u32 %s, %s, 3, %s" % (vr(t0), vr(t1), vr(t0)))
    e("v_bfe_u32 %s, v0, 4, 2" % vr(t1))
    e("v_and_b32 %s, 7, v0" % vr(t2))
    e("v_xor_b32 %s, %s, %s" % (vr(t1), vr(t1), vr(t2)))
    e("v_lshlrev_b32 %s, 4, %s" % (vr(t1), vr(t1)))
    e("v_lshl_add_u32 %s, %s, 10, %s" % (vr(vx0), vr(t0), vr(t1)))
    e("s_lshl_b32 s%d, s%d, 16" % (s_t, s_rb))
    e("v_add_u32 %s, s%d, %s" % (vr(vx0), s_t, vr(vx0)))
    e("v_xor_b32 %s, 64, %s" % (vr(vx1), vr(vx0)))
    e("v_add_u32 %s, %d, %s" % (vr(vx1), 8192 - 1024, vr(vx1)))
    e("v_bfe_u32 %s, v0, 4, 1" % vr(t1))
    e("v_lshlrev_b32 %s, 1, %s" % (vr(t1), vr(t1)))
    e("v_xor_b32 %s, %s, %s" % (vr(t1), vr(t1), vr(t2)))
    e("v_lshlrev_b32 %s, 4, %s" % (vr(t3), vr(t1)))
    e("v_mul_u32_u24 %s, 3072, %s" % (vr(vw0), vr(t0)))
    e("s_lshl_b32 s%d, s%d, 7" % (s_t, s_cg))
    e("v_add3_u32 %s, %s, %s, s%d" % (vr(vw0), vr(vw0), vr(t3), s_t))
    e("v_xor_b32 %s, 64, %s" % (vr(vw1), vr(vw0)))
    e("v_add_u32 %s, %d, %s" % (vr(vw1), 8 * 3072, vr(vw1)))
    e("v_and_b32 %s, 63, v0" % vr(l128))
    e("v_lshlrev_b32 %s, 4, %s" % (vr(l16), vr(l128)))
    e("s_lshl_b32 s%d, s%d, 11" % (s_m0x, s_w))
    e("s_lshl_b32 s%d, s%d, 12" % (s_m0w, s_w))
    e("s_add_u32 s%d, s%d, %d" % (s_m0w, s_m0w, L_RING + 8192))
    for c in range(8):
        e("s_add_u32 s%d, s%d, %d" % (s_t, s_ph, c))
        e("s_and_b32 s%d, s%d, 7" % (s_t, s_t))
        if c == 0:
            e("s_lshl_b32 s%d, s%d, 7" % (s_ox, s_t))
        e("s_mul_i32 s%d, s%d, %d" % (s_c[c], s_t, 64 * 3072))
    for r in range(4):
        e("v_mov_b32 %s, 0" % vr(ones + r))
    NZ = opt("nz", 32)
    s_zf = s_a[0]
    e("s_cmp_ge_u32 s2, %d" % NZ)
    e("s_cselect_b32 s%d, 1, 0" % s_zf)
    e("s_xor_b32 s%d, s%d, 3" % (s_t, s_w))
    e("s_or_b32 s%d, s%d, s%d" % (s_zf, s_zf, s_t))
    e("s_waitcnt lgkmcnt(0)")
    k.stamp("karg")

    def zero_fa():
        e("s_cmp_lg_u32 s%d, 0" % s_zf)
        e("s_cbranch_scc1 L_nz")
        e("s_mul_i32 s%d, s2, %d" % (s_t, 131072 // NZ))
        e("s_add_u32 s%d, s%d, 0x%x" % (s_t, s_t, WS_FA))
        for q in range(128 // NZ):
            e("buffer_store_dwordx4 %s, %s, %s, s%d offen offset:%d sc1 ;@cond" % (vr(ones, 4), vr(l16), sr(SWS, 4), s_t, (q & 3) * 1024))
            if q & 3 == 3:
                e("s_add_u32 s%d, s%d, 4096" % (s_t, s_t))
        e("L_nz:")

    def dma_x(c, tg):
        base = L_RING - 8192 if c == 0 else L_RING + ((c - 1) % 3) * SLOT
        pre = []
        if c:
            pre += ["s_add_u32 s%d, s%d, 128" % (s_ox, s_ox), "s_and_b32 s%d, s%d, 0x3ff" % (s_ox, s_ox)]
        pre.append("s_add_u32 m0, s%d, %d" % (s_m0x, base))
        return [(pre, "buffer_load_dwordx4 %s, %s, s%d offen lds ;@%s" % (vr(vx0), sr(SX, 4), s_ox, tg)),
                ([], "buffer_load_dwordx4 %s, %s, s%d offen offset:1024 lds ;@%s" % (vr(vx1), sr(SX, 4), s_ox, tg))]

    def dma_w(c, tg):
        o = []
        for uu, vw in enumerate((vw0, vw1)):
            pre = ["s_add_u32 m0, s%d, %d" % (s_m0w, (c % 3) * SLOT + uu * 2048 - 1024)]
            for sg in range(2):
                o.append((pre, "buffer_load_dwordx4 %s, %s, s%d offen offset:%d lds ;@%s" % (vr(vw), sr(SWQ, 4), s_c[c], 1024 + sg * 1024, tg)))
                pre = []
        return o

    def dma(c):
        tg = "c%d" % c
        o = dma_x(0, tg) if c == 0 else []
        o += dma_w(c, tg)
        if c < 7:
            o += dma_x(c + 1, tg)
        return o

    WQ = []
    for c in range(8):
        for uu, vw in enumerate((vw0, vw1)):
            WQ.append((["s_add_u32 m0, s%d, %d" % (s_m0x, c * 8192 + uu * 1024)],
                       "buffer_load_dwordx4 %s, %s, s%d offen lds ;@wq" % (vr(vw), sr(SWQ, 4), s_c[c])))

    if opt("zfirst", 1):
        zero_fa()
    e(flat(dma(0)))
    if opt("f0", 0):
        k.stamp("d0")
    if not opt("zfirst", 1):
        zero_fa()
    e("s_bfe_u32 s%d, s2, 0x20003" % s_r)
    e("s_and_b32 s%d, s2, 7" % s_rb2)
    if opt("rx", 0):
        e("s_xor_b32 s%d, s%d, %d" % (s_rb2, s_rb2, opt("rx", 0)))
    e("s_lshl_b32 s%d, s%d, 2" % (s_rb2, s_rb2))
    e("s_add_u32 s%d, s%d, s%d" % (s_rb2, s_rb2, s_r))
    e("s_lshr_b32 s%d, s2, 5" % s_cb)
    if opt("cx", 0):
        e("s_xor_b32 s%d, s%d, %d" % (s_cb, s_cb, opt("cx", 0)))
    e("s_bfe_u32 s%d, s2, 0x20001" % s_g3)
    e("s_lshl_b32 s%d, s%d, 2" % (s_g3, s_g3))
    e("s_add_u32 s%d, s%d, s%d" % (s_g3, s_g3, s_r))
    e("s_and_b32 s%d, s2, 1" % s_cb3)
    e("s_lshl_b32 s%d, s%d, 3" % (s_cb3, s_cb3))
    e("s_add_u32 s%d, s%d, s%d" % (s_cb3, s_cb3, s_cb))
    s_wt = 1
    if opt("ow", 0):
        e("s_lshr_b32 s%d, s%d, %d" % (s_wt, s_cb, opt("ow", 0) - 1))
        e("s_xor_b32 s%d, s%d, s%d" % (s_wt, s_wt, s_w))
        e("s_and_b32 s%d, s%d, 3" % (s_wt, s_wt))
    else:
        e("s_mov_b32 s%d, s%d" % (s_wt, s_w))
    if not opt("rot", 1):
        e("s_mov_b32 s%d, 0" % s_r)
    if opt("rot", 1) == 2:
        e("s_xor_b32 s%d, s%d, s%d" % (s_r, s_r, s_cb))
        e("s_and_b32 s%d, s%d, 3" % (s_r, s_r))
    e("s_lshl_b32 s%d, s%d, 2" % (s_t, s_rb2))
    e("s_add_u32 s%d, s%d, s%d" % (s_t, s_t, s_w))
    e("s_lshl_b32 s%d, s%d, 3" % (s_t, s_t))
    e("s_add_u32 s%d, s%d, s%d" % (s_t, s_t, s_cb))
    e("s_lshl_b32 s%d, s%d, 7" % (s_t, s_t))
    e("s_add_u32 s%d, s%d, 0x%x" % (s_t, s_t, WS_ST))
    e("s_lshl_b32 s%d, s%d, 2" % (s_t2, s_g3))
    e("s_add_u32 s%d, s%d, s%d" % (s_t2, s_t2, s_w))
    e("s_lshl_b32 s%d, s%d, 4" % (s_t2, s_t2))
    e("s_add_u32 s%d, s%d, s%d" % (s_t2, s_t2, s_cb3))
    e("s_lshl_b32 s%d, s%d, 7" % (s_t2, s_t2))
    e("s_add_u32 s%d, s%d, 0x%x" % (s_t2, s_t2, WS_FD - FDS))
    e("v_add_u32 %s, s%d, %s" % (vr(t0), s_t, vr(l16)))
    e("v_lshrrev_b32 %s, 3, %s" % (vr(t1), vr(l128)))
    e("v_lshl_add_u32 %s, %s, 17, s%d" % (vr(t1), vr(t1), s_t2))
    e("v_lshl_add_u32 %s, %s, 4, %s" % (vr(t1), vr(t2), vr(t1)))
    e("v_cmp_gt_u32 vcc, 8, %s" % vr(l128))
    e("v_cndmask_b32 %s, %s, %s, vcc" % (vr(t0), vr(t1), vr(t0)))
    e("s_mov_b64 exec, 0xffffff" if NFD == 2 else "s_mov_b32 exec_hi, 0")
    e("buffer_store_dwordx4 %s, %s, %s, 0 offen sc1" % (vr(ones, 4), vr(t0), sr(SWS, 4)))
    e("s_mov_b64 exec, -1")
    k.stamp("dma_issued")

    def smpf(mask):
        o = ["s_lshl2_add_u32 s%d, s2, s%d" % (s_t, s_w), "s_mul_i32 s%d, s%d, 1792" % (s_t2, s_t), "s_lshl_b32 s%d, s%d, 9" % (s_t, s_t)]
        for bit, srd, so, n in ((2, SWO, s_t, 2), (4, SW1, s_t2, 7), (8, SW2, s_t2, 7)):
            if mask & bit:
                o += ["s_buffer_load_dwordx2 s[0:1], %s, s%d offset:%d" % (sr(srd, 4), so, 256 * i + 124) for i in range(n)]
        return o if mask else []
    if opt("spp", 0) == 2:
        k.flush()
        e(smpf(opt("sp", 0)))
    vM4 = k.alloc()
    e("v_min_u32 %s, 13, %s" % (vr(vM14), vr(l128)))
    e("v_lshlrev_b32 %s, 7, %s" % (vr(vM14), vr(vM14)))
    e("v_min_u32 %s, 0x180, %s" % (vr(vM4), vr(vM14)))
    e("s_lshl_b32 s%d, s2, 2" % s_t)
    e("s_add_u32 s%d, s%d, s%d" % (s_t, s_t, s_w))
    e("s_mul_i32 s%d, s%d, 1792" % (s_t2, s_t))
    e("v_add_u32 %s, s%d, %s" % (vr(vM14), s_t2, vr(vM14)))
    e("s_lshl_b32 s%d, s%d, 9" % (s_t2, s_t))
    e("v_add_u32 %s, s%d, %s" % (vr(vM4), s_t2, vr(vM4)))
    vMq = k.alloc()
    e("s_lshr_b32 s%d, s%d, 1" % (s_t, s_t))
    e("s_lshl_b32 s%d, s%d, 11" % (s_t, s_t))
    e("v_add_u32 %s, s%d, %s" % (vr(vMq), s_t, vr(vM4)))

    def mall(mask):
        o = []
        for bit, va_, srd in ((1, vMq, SWQ), (2, vM4, SWO), (4, vM14, SW1), (8, vM14, SW2)):
            if mask & bit:
                o.append(([], "buffer_load_dword %s, %s, %s, 0 offen" % (vr(vMd), vr(va_), sr(srd, 4))))
        if mask & 32:
            o.append((["v_lshlrev_b32 %s, 16, %s" % (vr(vMd), vr(l16))], "s_mov_b64 exec, 0xffff\nbuffer_load_dword %s, %s, %s, 0 offen\ns_mov_b64 exec, -1" % (vr(vMd), vr(vMd), sr(SWS, 4))))
        if mask & 64:
            for srd in (SOUT, SW1, SW2):
                o.append((["v_lshlrev_b32 %s, 16, %s" % (vr(vMq), vr(l16))], "s_mov_b64 exec, 3\nbuffer_load_dword %s, %s, %s, 0 offen\ns_mov_b64 exec, -1" % (vr(vMd), vr(vMq), sr(srd, 4))))
        if mask & 16:
            o.append((["s_mul_i32 s%d, s%d, 224" % (s_w1b, s_cb3)], "s_mov_b64 exec, 0x2101\nbuffer_load_dword %s, %s, %s, s%d offen\ns_mov_b64 exec, -1" % (vr(vMd), vr(l16), sr(SB1, 4), s_w1b)))
        return o
    e(flat(mall(opt("m0", 0))))
    e("v_lshlrev_b32 %s, 7, %s" % (vr(l128), vr(l128)))
    e("v_mov_b32 %s, 1" % vr(vone))
    for r in range(4):
        e("v_mov_b32 %s, 0x3f803f80" % vr(ones + r))
    g, i15 = k.alloc(), k.alloc()
    xa = [[k.alloc(), k.alloc()] for _ in range(4)]
    wa = k.alloc()
    qa = k.alloc()
    VO = k.alloc(4)
    TO = k.alloc(4)
    vOS = k.alloc(2)
    e("v_bfe_u32 %s, v0, 4, 2" % vr(g))
    e("v_and_b32 %s, 15, v0" % vr(i15))
    e("v_bfe_u32 %s, v0, 3, 3" % vr(t1))
    e("v_lshl_add_u32 %s, %s, 10, %s" % (vr(VO), vr(t1), vr(t3)))
    e("v_xor_b32 %s, 64, %s" % (vr(t3), vr(VO)))
    e("v_add_u32 %s, %d, %s" % (vr(VO + 1), 7168, vr(t3)))
    e("v_add_u32 %s, %d, %s" % (vr(VO + 2), 2 * 7168, vr(VO)))
    e("v_add_u32 %s, %d, %s" % (vr(VO + 3), 3 * 7168, vr(t3)))
    e("v_lshlrev_b32 %s, 1, %s" % (vr(t0), vr(g)))
    e("v_and_b32 %s, 7, v0" % vr(t2))
    e("v_xor_b32 %s, %s, %s" % (vr(t0), vr(t0), vr(t2)))
    e("v_lshlrev_b32 %s, 4, %s" % (vr(t0), vr(t0)))
    e("v_lshl_add_u32 %s, %s, 10, %s" % (vr(VD), vr(t1), vr(t0)))
    for i in range(1, 4):
        e("v_add_u32 %s, %d, %s" % (vr(VD + i), i * (8192 - 1024), vr(VD)))
    e("v_lshrrev_b32 %s, 1, %s" % (vr(t0), vr(i15)))
    e("v_xor_b32 %s, %s, %s" % (vr(t0), vr(t0), vr(g)))
    e("v_lshlrev_b32 %s, 4, %s" % (vr(t0), vr(t0)))
    e("v_lshl_add_u32 %s, %s, 7, %s" % (vr(t0), vr(i15), vr(t0)))
    for u in range(4):
        e("s_add_u32 s%d, s%d, %d" % (s_t, s_w, u))
        e("s_and_b32 s%d, s%d, 3" % (s_b[u], s_t))
        e("s_lshl_b32 s%d, s%d, 11" % (s_t, s_b[u]))
        e("s_add_u32 s%d, s%d, %d" % (s_t, s_t, L_RING - 8192))
        e("v_add_u32 %s, s%d, %s" % (vr(xa[u][0]), s_t, vr(t0)))
        e("v_xor_b32 %s, 64, %s" % (vr(xa[u][1]), vr(xa[u][0])))
    e("v_lshrrev_b32 %s, 1, %s" % (vr(t0), vr(g)))
    e("v_lshlrev_b32 %s, 8, %s" % (vr(t0), vr(t0)))
    e("v_lshl_add_u32 %s, %s, 4, %s" % (vr(t0), vr(i15), vr(t0)))
    e("v_and_b32 %s, 1, %s" % (vr(t1), vr(g)))
    e("v_cmp_eq_u32 vcc, 1, %s" % vr(t1))
    for P in range(2):
        e("v_mov_b32 %s, s%d" % (vr(t1), s_b[2 * P]))
        e("v_mov_b32 %s, s%d" % (vr(t2), s_b[2 * P + 1]))
        e("v_cndmask_b32 %s, %s, %s, vcc" % (vr(t1), vr(t1), vr(t2)))
        e("v_lshl_add_u32 %s, %s, 14, %s" % (vr(vOS + P), vr(t1), vr(t0)))
    e("v_bfe_u32 %s, v0, 3, 2" % vr(t0))
    e("v_lshlrev_b32 %s, 5, %s" % (vr(t0), vr(t0)))
    e("v_and_b32 %s, 3, v0" % vr(t1))
    e("v_lshl_add_u32 %s, %s, 3, %s" % (vr(t0), vr(t1), vr(t0)))
    e("v_bfe_u32 %s, v0, 2, 2" % vr(t1))
    e("v_lshl_add_u32 %s, %s, 7, %s" % (vr(t0), vr(t1), vr(t0)))
    e("v_lshl_add_u32 %s, %s, 10, %s" % (vr(qa), vr(g), vr(t0)))
    e("v_add_u32 %s, %d, %s" % (vr(TO), L_WO, vr(qa)))
    for nt in range(1, 4):
        e("v_xor_b32 %s, %d, %s" % (vr(TO + nt), nt * 32, vr(TO)))
    e("s_lshl_b32 s%d, s%d, 5" % (s_t, s_w))
    e("v_xor_b32 %s, s%d, %s" % (vr(qa), s_t, vr(qa)))
    e("v_lshl_add_u32 %s, %s, 11, %s" % (vr(wa), vr(g), vr(t0)))
    e("v_xor_b32 %s, s%d, %s" % (vr(wa), s_t, vr(wa)))
    e("v_add_u32 %s, %d, %s" % (vr(wa), L_RING + 8192, vr(wa)))
    e("v_lshl_add_u32 %s, %s, 9, %s" % (vr(TA), vr(g), vr(t0)))
    e("s_lshl_b32 s%d, s%d, 13" % (s_t, s_w))
    e("s_add_u32 s%d, s%d, 65536" % (s_t, s_t))
    e("v_add_u32 %s, s%d, %s" % (vr(TA), s_t, vr(TA)))
    for nt in range(1, 4):
        e("v_xor_b32 %s, %d, %s" % (vr(TA + nt), nt * 32, vr(TA)))
    e("v_bfe_u32 %s, v0, 4, 1" % vr(t0))
    e("v_lshlrev_b32 %s, 5, %s" % (vr(t0), vr(t0)))
    e("v_bfe_u32 %s, v0, 5, 1" % vr(t1))
    e("v_lshl_add_u32 %s, %s, 4, %s" % (vr(t0), vr(t1), vr(t0)))
    e("v_lshl_add_u32 %s, %s, 10, %s" % (vr(vxo), vr(i15), vr(t0)))
    IDM = k.alloc(4, 4)
    e("v_bfe_u32 %s, v0, 4, 1" % vr(t0))
    e("v_lshlrev_b32 %s, 2, %s" % (vr(t0), vr(t0)))
    e("v_sub_u32 %s, %s, %s" % (vr(t0), vr(i15), vr(t0)))
    e("v_mov_b32 %s, 0x3f80" % vr(t1))
    e("v_mov_b32 %s, 0x3f800000" % vr(t2))
    for r, c in enumerate((0, 2, 8, 10)):
        e("v_cmp_eq_u32 vcc, %d, %s" % (c, vr(t0)))
        e("v_cndmask_b32 %s, 0, %s, vcc" % (vr(IDM + r), vr(t1)))
        e("v_cmp_eq_u32 vcc, %d, %s" % (c + 1, vr(t0)))
        e("v_cndmask_b32 %s, %s, %s, vcc" % (vr(IDM + r), vr(IDM + r), vr(t2)))
    vZ, vGZ = k.alloc(), k.alloc()
    e("v_and_b32 %s, 16, v0" % vr(vZ))
    e("v_bfe_u32 %s, v0, 5, 1" % vr(t1))
    e("v_lshl_add_u32 %s, %s, 4, %s" % (vr(t1), vr(t1), vr(i15)))
    e("v_lshl_add_u32 %s, %s, 7, %s" % (vr(vGZ), vr(t1), vr(vZ)))
    e("s_movk_i32 s%d, 3584 - 224" % s_t)
    for m in range(7):
        e("v_add_u32 %s, %d, v0" % (vr(t0), 256 * m))
        e("v_mul_u32_u24 %s, 4682, %s" % (vr(t1), vr(t0)))
        e("v_lshrrev_b32 %s, 16, %s" % (vr(t1), vr(t1)))
        e("v_lshlrev_b32 %s, 4, %s" % (vr(t0), vr(t0)))
        e("v_mad_u32_u24 %s, %s, s%d, %s" % (vr(V1 + m), vr(t1), s_t, vr(t0)))
    e("v_and_b32 %s, 3, v0" % vr(t0))
    e("v_cmp_eq_u32 s[96:97], 1, %s" % vr(t0))
    e("v_cmp_eq_u32 s[98:99], 2, %s" % vr(t0))
    e("v_cmp_eq_u32 s[100:101], 3, %s" % vr(t0))
    cst = k.alloc(2, 2)
    ceps = k.alloc(4, 4)
    e("v_mov_b32 %s, %s" % (vr(cst), f32(LN2)))
    e("v_mov_b32 %s, %s" % (vr(cst + 1), f32(1.000001)))
    for r in range(4):
        e("v_mov_b32 %s, %s" % (vr(ceps + r), f32(1e-6)))
    vS0, vsw, vsr, l4 = k.alloc(), k.alloc(), k.alloc(), k.alloc()
    e("s_lshl_b32 s%d, s%d, 6" % (s_t, s_w))
    e("s_add_u32 s%d, s%d, %d" % (s_t, s_t, L_SCR))
    e("v_lshl_add_u32 %s, %s, 2, s%d" % (vr(vsw), vr(i15), s_t))
    e("v_lshl_add_u32 %s, %s, 4, s%d" % (vr(vsr), vr(g), s_t))
    e("v_lshlrev_b32 %s, %d, %s" % (vr(l4), {64: 2, 32: 3, 16: 4, 8: 5}[NZ], vr(l16)))
    e("v_lshrrev_b32 %s, 4, %s" % (vr(l4), vr(l4)))
    s_hd, s_pa, s_fa = s_a[1], s_a[2], s_a[3]
    e("s_lshl_b32 s%d, s%d, 2" % (s_hd, s_cg))
    e("s_add_u32 s%d, s%d, s%d" % (s_hd, s_hd, s_w))
    e("s_lshl_b32 s%d, s%d, 5" % (s_t, s_hd))
    e("s_add_u32 s%d, s%d, s%d" % (s_t, s_t, s_rb))
    e("s_lshl_b32 s%d, s%d, 9" % (s_pa, s_t))
    e("s_lshl_b32 s%d, s%d, 7" % (s_fa, s_t))
    e("s_add_u32 s%d, s%d, 0x%x" % (s_fa, s_fa, WS_FA))
    e("s_lshl_b32 s%d, s%d, 7" % (s_t, s_cb))
    e("s_lshl_b32 s%d, s%d, 17" % (s_wob, s_r))
    e("s_lshl_b32 s%d, s%d, 15" % (s_t2, s_w))
    e("s_add_u32 s%d, s%d, s%d" % (s_wob, s_wob, s_t2))
    e("s_add_u32 s%d, s%d, s%d" % (s_wob, s_wob, s_t))
    e("s_lshl_b32 s%d, s%d, 16" % (s_xo, s_rb2))
    e("s_lshl_b32 s%d, s%d, 14" % (s_t2, s_wt))
    e("s_add_u32 s%d, s%d, s%d" % (s_xo, s_xo, s_t2))
    e("s_add_u32 s%d, s%d, s%d" % (s_xo, s_xo, s_t))
    e("s_mul_i32 s%d, s%d, 224" % (s_w1b, s_cb3))
    P1BASE = k.nv
    ak = k.alloc(16, 4)
    av = k.alloc(16, 4)
    stq, sts = k.alloc(4, 4), k.alloc(4, 4)
    NM = k.alloc(16, 4)
    RL = k.alloc(16, 4)
    WB3 = [k.alloc(8, 4) for _ in range(3)]
    cs = k.alloc(8, 4)
    QN = k.alloc(8, 2)
    tm = k.alloc(8, 2)

    def XS(u, n):
        return A0 + 64 * u + 4 * n

    def rd_w(n):
        so = ((n >> 1) % 3) * SLOT + (n & 1) * 8192
        return ["ds_read_b64_tr_b16 %s, %s offset:%d ;@w%d" % (vr(WB3[n % 3] + sg * 4 + hf * 2, 2), vr(wa), so + sg * 1024 + hf * 512, n)
                for sg in range(2) for hf in range(2)]

    def rd_x(u, n):
        c = n >> 1
        so = 0 if c == 0 else 8192 + ((c - 1) % 3) * SLOT
        return "ds_read_b128 %s, %s offset:%d ;@x%d_%d" % (vr(XS(u, n), 4), vr(xa[u][n & 1]), so, u, n)

    def mf_cs(n):
        z = "0" if n == 0 else None
        return [mfma32(cs + 0, ones, WB3[n % 3] + 0, z), mfma32(cs + 4, ones, WB3[n % 3] + 4, z)]

    def mf_main(n, u):
        z = "0" if n == 0 else None
        return [mfma32(ak + 4 * u, XS(u, n), WB3[n % 3] + 0, z), mfma32(av + 4 * u, XS(u, n), WB3[n % 3] + 4, z)]

    def mf(n):
        return mf_cs(n) + sum([mf_main(n, u) for u in range(4)], [])

    def mf_st(n):
        z = "0" if n == 0 else None
        return [mfma32(stq, XS(0, n), XS(0, n), z), mfma32(sts, ones, XS(0, n), z)]

    if opt("f0", 0):
        k.stamp("su0")
    if opt("spp", 0) != 2:
        k.flush()
    if opt("spp", 0) == 0:
        e(smpf(opt("sp", 0)))
    e(flat(dma(1)))
    if opt("spp", 0) == 1:
        e(smpf(opt("sp", 0)))
    e(flat(mall(opt("m1", 0))))
    k.stamp("g1_issued")
    wq = list(WQ)
    ZIT = opt("zit", 5)
    arrive = "\n".join(["s_cmp_lg_u32 s%d, 0" % s_zf, "s_cbranch_scc1 L_nz2", "s_mul_i32 s%d, s2, %d" % (s_t, 256 // NZ), "s_mov_b64 exec, 1",
                        "buffer_store_dword %s, off, %s, s%d sc1 ;@cond" % (vr(vone), sr(SDB, 4), s_t), "s_mov_b64 exec, -1", "L_nz2:"])
    for it in range(8):
        e("WAITVM c%d" % it)
        if it == 0 and opt("f0", 0):
            k.stamp("c0w")
        e("s_barrier")
        if it in (0, 1, 4, 7):
            k.stamp("it%d" % it)
        extra = dma(it + 2) if it + 2 < 8 else []
        if it == 5:
            extra = extra + mall(opt("m5", 0))
        if it == 0:
            e(rd_w(0) + [rd_x(u, 0) for u in range(4)] + [rd_x(0, 1), rd_x(0, 2), rd_x(0, 3)])
            e(flat(extra[:1]))
            m = mf(0) + mf_st(0) + mf_st(1) + mf_st(2) + mf_st(3)
            m[0] = "WAITLG w0\n" + m[0]
            m[2] = "WAITLG x1_0\n" + m[2]
            m[6] = "WAITLG x0_3\n" + m[6]
            W = Weave(m)
            W.every(extra[1:], 2, 3)
            W.fill(rd_w(1) + [rd_x(u, 1) for u in range(1, 4)] + [rd_x(u, n) for n in (2, 3) for u in range(1, 4)], 1, cap=2)
            e(W.out())
            e("s_waitcnt lgkmcnt(0)")
        elif it < 7:
            n = 2 * it
            sp = 10 if it < 6 else 5
            m = mf(n - 1)[:sp] + mf_st(n + 2) + mf_st(n + 3) + mf(n - 1)[sp:] + mf(n)
            m[sp] = "WAITLG x0_%d\n" % (n + 3) + m[sp]
            if it == 6:
                m[14] = "WAITLG w%d\n" % n + m[14]
            W = Weave(m)
            if it == ZIT:
                W.at(16 if it == 5 else 24, arrive)
            if it >= 5:
                c = max(0, 6 - len(extra))
                extra = extra + wq[:c]
                wq = wq[c:]
            left = W.every(extra, 2, 4)
            W.at(24, flat(left))
            rs = rd_w(n) + [rd_x(0, n + 2), rd_x(0, n + 3)] + rd_w(n + 1) + [rd_x(u, nn) for nn in (n + 2, n + 3) for u in range(1, 4)]
            if it == 6:
                rs = rs[4:6] + rs[:4] + rs[6:]
            W.at(0, rs[:2])
            if it < 6:
                W.fill(rs[2:], 1, cap=opt("p1cap", 2))
            else:
                W.fill(rs[2:], 1, cap=2)
                sm = ["v_cndmask_b32 %s, %s, %s, s[96:97]" % (vr(t0), vr(stq), vr(stq + 1)),
                      "v_cndmask_b32 %s, %s, %s, s[98:99]" % (vr(t0), vr(t0), vr(stq + 2)),
                      "v_cndmask_b32 %s, %s, %s, s[100:101]" % (vr(t0), vr(t0), vr(stq + 3)),
                      "v_mul_f32 %s, %s, %s" % (vr(t1), f32(-1.0 / 512), vr(sts)),
                      "v_mul_f32 %s, %s, %s" % (vr(t0), f32(1.0 / 512), vr(t0)),
                      "v_fma_f32 %s, -%s, %s, %s" % (vr(t0), vr(t1), vr(t1), vr(t0)),
                      "v_max_f32 %s, 0, %s" % (vr(t0), vr(t0)),
                      "v_add_f32 %s, %s, %s" % (vr(t0), f32(1e-5), vr(t0)),
                      "v_rsq_f32 %s, %s" % (vr(t0), vr(t0)),
                      "s_nop 0",
                      "v_mul_f32 %s, %s, %s" % (vr(t0), f32(LOG2E), vr(t0)),
                      "\n".join(["s_mov_b32 exec_lo, 0x00f0000f", "s_mov_b32 exec_hi, 0xf0000f00",
                                 "ds_write2st64_b32 %s, %s, %s offset0:0 offset1:1" % (vr(vsw), vr(t1), vr(t1)),
                                 "ds_write2st64_b32 %s, %s, %s offset0:2 offset1:3" % (vr(vsw), vr(t0), vr(t0)),
                                 "s_mov_b64 exec, -1"])]
                W.fill(sm, 12, cap=3, stop=19)
            e(W.out())
            e("s_waitcnt lgkmcnt(0)")
        else:
            m = mf(13) + mf_cs(14) + mf_cs(15)
            for u in range(4):
                m += mf_main(14, u) + mf_main(15, u)
            m[10] = "WAITLG w15\n" + m[10]
            W = Weave(m)
            wq = W.every(wq + [([], "buffer_load_dword %s, %s, %s, 0 offen sc1 ;@s0" % (vr(vS0), vr(l4), sr(SDB, 4)))], 1, opt("wq7", 3))
            W.at(30, flat(wq))
            rs = rd_w(14) + rd_w(15)
            for u in range(4):
                rs.append("ds_read_b128 %s, %s offset:%d" % (vr(NM + 4 * u, 4), vr(vsr), u * 64))
                rs.append("ds_read_b128 %s, %s offset:%d" % (vr(RL + 4 * u, 4), vr(vsr), 512 + u * 64))
            for u in range(4):
                rs.append("ds_read2_b32 %s, %s offset0:%d offset1:%d" % (vr(QN + 2 * u, 2), vr(vsw), 16 * u, 128 + 16 * u))
            W.at(0, rs[:2])
            W.fill(rs[2:], 1, cap=2)
            e(W.out())
    e("s_waitcnt lgkmcnt(0)")
    k.stamp("loop_end")

    def phi(a, dst, alt=0, keep=None):
        E = tm + 4 * alt
        U = tm + 4 * alt + 2 if keep is None else keep
        e("v_exp_f32_e64 %s, %s clamp" % (vr(E), vr(a)))
        e("v_exp_f32_e64 %s, %s clamp" % (vr(E + 1), vr(a + 1)))
        e("v_pk_fma_f32 %s, %s, %s, %s op_sel:[0,0,1] op_sel_hi:[1,0,1]" % (vr(U, 2), vr(a, 2), vr(cst, 2), vr(cst, 2)))
        e("v_pk_add_f32 %s, %s, %s" % (vr(E, 2), vr(E, 2), vr(ceps, 2)))
        e("v_max_f32 %s, %s, %s" % (vr(U), vr(U), vr(E)))
        e("v_max_f32 %s, %s, %s" % (vr(U + 1), vr(U + 1), vr(E + 1)))
        e("v_cvt_pk_bf16_f32 %s, %s, %s" % (vr(dst), vr(U), vr(U + 1)))

    kv, zz = stq, sts
    PK = k.alloc(8, 4)
    PV = WB3[1]
    for u in range(4):
        for hp in range(2):
            o = 4 * u + 2 * hp
            e("v_pk_fma_f32 %s, %s, %s, %s" % (vr(ak + o, 2), vr(NM + o, 2), vr(cs + 0, 2), vr(ak + o, 2)))
            e("v_pk_fma_f32 %s, %s, %s, %s" % (vr(av + o, 2), vr(NM + o, 2), vr(cs + 4, 2), vr(av + o, 2)))
            e("v_pk_mul_f32 %s, %s, %s" % (vr(ak + o, 2), vr(ak + o, 2), vr(RL + o, 2)))
            e("v_pk_mul_f32 %s, %s, %s" % (vr(av + o, 2), vr(av + o, 2), vr(RL + o, 2)))
            e("v_cvt_pk_bf16_f32 %s, %s, %s" % (vr(PV + 2 * u + hp), vr(av + o), vr(av + o + 1)))
            if u == 3 and hp == 1:
                E, U, a = tm + 4, tm + 6, ak + o
                e("v_exp_f32_e64 %s, %s clamp" % (vr(E), vr(a)))
                e("v_exp_f32_e64 %s, %s clamp" % (vr(E + 1), vr(a + 1)))
                e("v_pk_fma_f32 %s, %s, %s, %s op_sel:[0,0,1] op_sel_hi:[1,0,1]" % (vr(U, 2), vr(a, 2), vr(cst, 2), vr(cst, 2)))
                e("v_pk_add_f32 %s, %s, %s" % (vr(E, 2), vr(E, 2), vr(ceps, 2)))
                e(mfma32(kv, PK, PV, "0"))
                e("v_max_f32 %s, %s, %s" % (vr(U), vr(U), vr(E)))
                e("v_max_f32 %s, %s, %s" % (vr(U + 1), vr(U + 1), vr(E + 1)))
                e("v_cvt_pk_bf16_f32 %s, %s, %s" % (vr(PK + 7), vr(U), vr(U + 1)))
            else:
                phi(ak + o, PK + 2 * u + hp, hp)
    e(mfma32(kv, PK + 4, PV + 4))
    e(mfma32(zz, PK, ones, "0"))
    e(mfma32(zz, PK + 4, ones))
    PR = NM
    PZ = NM + 4
    e("v_cvt_pk_bf16_f32 %s, %s, %s" % (vr(PR), vr(kv), vr(kv + 1)))
    e("v_cvt_pk_bf16_f32 %s, %s, %s" % (vr(PR + 1), vr(kv + 2), vr(kv + 3)))
    e("v_permlane32_swap_b32 %s, %s" % (vr(PR), vr(PR + 2)))
    e("v_permlane32_swap_b32 %s, %s" % (vr(PR + 1), vr(PR + 3)))
    e("s_mov_b32 exec_hi, 0")
    e("buffer_store_dwordx4 %s, %s, %s, s%d offen sc1 ;@part" % (vr(PR, 4), vr(l16), sr(SWS, 4), s_pa))
    e("s_mov_b64 exec, -1")
    k.stamp("part_st")
    e("v_cvt_pk_bf16_f32 %s, %s, %s" % (vr(PZ), vr(zz), vr(zz + 1)))
    e("v_cvt_pk_bf16_f32 %s, %s, %s" % (vr(PZ + 1), vr(zz + 2), vr(zz + 3)))
    e("v_permlane32_swap_b32 %s, %s" % (vr(PZ), vr(PZ + 2)))
    e("v_permlane32_swap_b32 %s, %s" % (vr(PZ + 1), vr(PZ + 3)))

    npoll = [0]

    def setexec(lanes, e=e):
        if lanes < 64:
            e("s_mov_b64 exec, 0x%x" % ((1 << lanes) - 1) if lanes < 32 else "s_mov_b32 exec_hi, 0")

    def poll(voff, lanes, srd, soff, first=None, dst=vP, wide=False, imm=0, e=e):
        n = npoll[0]
        npoll[0] += 1
        setexec(lanes, e)
        e("s_mov_b32 s%d, %d" % (s_to, 20000 if FINE else TIMEOUT))
        if first is not None:
            e("v_cmp_eq_u32 vcc, 0, %s" % vr(first))
            e("s_cbranch_vccz L_ok%d" % n)
        e("L_poll%d:" % n)
        e(poll_load(voff, srd, soff, dst, wide, imm) + " ;@cond")
        e("s_waitcnt vmcnt(0)")
        e("v_cmp_eq_u32 vcc, 0, %s" % vr(dst))
        e("s_cbranch_vccz L_ok%d" % n)
        e("s_sub_u32 s%d, s%d, 1" % (s_to, s_to))
        e("s_cbranch_scc0 L_poll%d" % n)
        e("L_ok%d:" % n)
        if lanes < 64:
            e("s_mov_b64 exec, -1")

    def poll_load(voff, srd, soff, dst, wide=False, imm=0):
        return "buffer_load_dword%s %s, %s, %s, %s offen offset:%d sc1" % ("x4" if wide else "", vr(dst, 4 if wide else 1), vr(voff), sr(srd, 4), soff, imm)

    def flag(soff, wait, imm=0):
        return "\n".join(["WAITVM " + wait, "s_mov_b64 exec, 1",
                          "buffer_store_dword %s, off, %s, s%d offset:%d sc1" % (vr(vone), sr(SWS, 4), soff, imm),
                          "s_mov_b64 exec, -1"])

    e("WAITVM wq")
    s0t = []
    poll(l4, NZ, SDB, "0", first=vS0, e=s0t.append)
    e("s_barrier")
    k.stamp("wq_bar")
    aq = ak
    csq = cs
    QF = RL

    def qreads(n):
        return ["ds_read_b64_tr_b16 %s, %s offset:%d ;@q%d" % (vr(QF + 4 * (n & 3) + 2 * hf, 2), vr(qa), n * 4096 + hf * 512, n)
                for hf in range(2)]

    def wo_dma(p):
        pre = ["s_xor_b32 s%d, s%d, 0x%x" % (s_t2, s_wob, p << 17), "s_add_u32 m0, s%d, %d" % (s_m0w, L_WO + p * 16384 - (L_RING + 8192))]
        o = []
        for i in range(4):
            o.append((pre, "buffer_load_dwordx4 %s, %s, s%d offen offset:%d lds ;@wo" % (vr(VO + i), sr(SWO, 4), s_t2, i * 1024)))
            pre = []
        return o

    s_w1m = s_m0x
    s_w1g = s_c[0:4]

    def w1_dma(p):
        return [(["s_add_u32 m0, s%d, %d" % (s_w1m, L_W1[p] + m * 4096)],
                 "buffer_load_dwordx4 %s, %s, s%d offen lds ;@w1g%d" % (vr(V1 + m), sr(SW1, 4), s_w1g[p], p)) for m in range(7)]

    e(qreads(0) + qreads(1) + qreads(2))
    e("s_lshl_b32 s%d, s%d, 10" % (s_w1m, s_w))
    for p in range(4):
        e("s_xor_b32 s%d, s%d, %d" % (s_t, s_r, p))
        e("s_mul_i32 s%d, s%d, %d" % (s_t, s_t, 128 * 3584))
        e("s_add_u32 s%d, s%d, s%d" % (s_w1g[p], s_t, s_w1b))
    XR = [([], "buffer_load_dwordx4 %s, %s, %s, s%d offen offset:%d ;@x" % (vr(HB + 4 * P, 4), vr(vxo), sr(SX, 4), s_xo, P * 64)) for P in range(2)]
    W1Q = w1_dma(0) + w1_dma(1) + w1_dma(2) + w1_dma(3)
    m = []
    for n in range(16):
        z = "0" if n == 0 else None
        mm = [mfma32(aq + 4 * u, QF + 4 * (n & 3), XS(u, n), z) for u in range(4)] + [mfma32(csq, QF + 4 * (n & 3), ones, z)]
        mm[0] = "WAITLG q%d\n" % n + mm[0]
        m += mm
    W = Weave(m)
    FLA = opt("fla", 36)
    G1A = opt("g1a", 3)
    G1B = opt("g1b", 0)
    WOQ = wo_dma(0) + wo_dma(1) + wo_dma(2) + wo_dma(3)
    WOA = opt("woa", 4)
    pre_items = mall(opt("ma", 0)) + WOQ[:WOA] + W1Q[:G1A]
    W1Q = W1Q[G1A:]
    left = W.every(pre_items, 1, opt("g1s", 4), stop=FLA - 2)
    assert not left
    W.at(FLA, "\n".join(["WAITVM part"] + s0t + ["s_mov_b32 exec_lo, 0x00010001", "s_mov_b32 exec_hi, 0",
                         "buffer_store_dwordx4 %s, %s, %s, s%d offen sc1" % (vr(PZ, 4), vr(vZ), sr(SWS, 4), s_fa),
                         "s_mov_b64 exec, -1", k.stamp_text("flagA")]), cost=4)
    assert WOA % 4 == 0 or (G1A == 0 and G1B == 0)
    post = mall(opt("mb", 0)) + W1Q[:G1B] + XR + WOQ[WOA:]
    W1Q = W1Q[G1B:]
    QN_ = opt("qn", 99)
    post = W.every(post[:QN_], FLA + 3, opt("g1t", 4)) + post[QN_:]
    PSA = opt("psa", 99)
    GZ = WB3[1] + 64
    s_pz = 98
    samp = poll_load(vGZ, SWS, "s%d" % s_pz, GZ, True) + " ;@pa"
    W.at(3, ["s_lshl_b32 s%d, s%d, 12" % (s_pz, s_hd), "s_add_u32 s%d, s%d, 0x%x" % (s_pz, s_pz, WS_FA)])
    if PSA < 80:
        assert PSA > FLA
        W.at(PSA, samp)
    for n in range(13):
        W.at(5 * n + 2, qreads(n + 3)[0])
        W.at(5 * n + 4, qreads(n + 3)[1])
    e(W.out())
    k.stamp("q_mm")
    PQ = WB3[0]
    PQF = av
    for u in range(4):
        for hp in range(2):
            o = 4 * u + 2 * hp
            if PSA == 80 + 2 * u + hp:
                e(samp)
            e("v_pk_fma_f32 %s, %s, %s, %s op_sel_hi:[1,0,1]" % (vr(aq + o, 2), vr(csq + 2 * hp, 2), vr(QN + 2 * u, 2), vr(aq + o, 2)))
            e("v_pk_mul_f32 %s, %s, %s op_sel:[0,1] op_sel_hi:[1,1]" % (vr(aq + o, 2), vr(aq + o, 2), vr(QN + 2 * u, 2)))
            phi(aq + o, PQ + 2 * u + hp, hp, keep=PQF + o)
            if post and 2 * u + hp < opt("qe", 8):
                e(flat(post[:1]))
                post = post[1:]
    QL = opt("ql", 99)
    if PSA == 88:
        e(samp)
    e(flat(post[:QL]))
    late = post[QL:]
    k.stamp("q_epi")
    k.flush()

    def smq(pos):
        if opt("spq", -1) != pos:
            return
        e(["s_lshl2_add_u32 s99, s2, s%d" % s_w, "s_mul_i32 s99, s99, 1792"])
        e(["s_buffer_load_dwordx2 s[100:101], %s, s99 offset:%d" % (sr(SW2, 4), 256 * i + 124) for i in range(7)])
        if opt("spb", 0):
            e(["s_buffer_load_dword s100, %s, s%d offset:%d" % (sr(SB1, 4), s_w1b, o) for o in (0, 128, 220)])
    smq(0)
    k.nv = WB3[1]
    GR = k.alloc(64, 4)
    assert GZ == k.alloc(4, 4) and GZ >= PK + 8
    if PSA > 88:
        e(samp)
    XG = opt("xg", -1)
    if XG < 0:
        e("WAITVM wo")
        e("s_barrier")
    WF = A0
    wr = ["ds_read_b64_tr_b16 %s, %s offset:%d" % (vr(WF + 16 * ks + 4 * nt + 2 * hf, 2), vr(TO + nt), ks * 4096 + hf * 512)
          for ks in range(16) for nt in range(4) for hf in range(2)]
    NW0 = opt("nw0", 32) if XG < 0 else 0
    e(wr[:NW0])
    wr = wr[NW0:]
    e("s_lshl_b32 s%d, s%d, 14" % (s_pa, s_hd))
    e("s_lshl_b32 s%d, s%d, 16" % (s_b[0], s_rb))
    e("s_lshl_b32 s%d, s%d, 9" % (s_t, s_hd))
    e("s_add_u32 s%d, s%d, s%d" % (s_b[0], s_b[0], s_t))
    e("s_add_u32 s%d, s%d, 0x%x" % (s_b[0], s_b[0], WS_O))
    e("WAITVM pa")
    poll(vGZ, 64, SWS, "s%d" % s_pz, first=GZ, dst=GZ, wide=True)
    k.stamp("pollA")
    smq(2)
    gl = []
    for i in range(16):
        x = "buffer_load_dwordx4 %s, %s, %s, s%d offen offset:%d sc1 ;@g%d" % (vr(GR + 4 * i, 4), vr(l16), sr(SWS, 4), s_pa, (i & 3) * 1024, i)
        if i & 3 == 3 and i < 15:
            x += "\ns_add_u32 s%d, s%d, 4096" % (s_pa, s_pa)
        gl.append(x)
    G2Z = opt("g2z", 0)
    LW = opt("lw", 0)
    assert LW or not late
    QG = opt("qg", 99)
    for pre, ins in late[:QG] + W1Q[:G2Z]:
        gl.append("\n".join(pre + [ins]))
    late = late[QG:]
    assert not (late and G2Z)
    W1Q = W1Q[G2Z:]
    if LW:
        assert XG >= 0
        wr_late = wr
        wr = []
    EX = NM
    NUM, DEN = ak, RL
    side = [mfma32(zz, IDM, GZ, "0")] + wr[:10]
    wr = wr[10:]
    for sh in (8, 4, 2, 1):
        for r in range(4):
            side.append("v_add_f32_dpp %s, %s, %s row_ror:%d row_mask:0xf bank_mask:0xf" % (vr(zz + r), vr(zz + r), vr(zz + r), sh))
    side.append("v_cvt_pk_bf16_f32 %s, %s, %s" % (vr(EX + 2), vr(zz), vr(zz + 1)))
    side.append("v_cvt_pk_bf16_f32 %s, %s, %s" % (vr(EX + 3), vr(zz + 2), vr(zz + 3)))
    side += wr[:2]
    side += [mfma16(DEN + 4 * u, EX + 2, PQ + 2 * u, ceps) for u in range(4)]
    side += wr[2:10]
    wr = wr[10:]
    side += ["v_rcp_f32 %s, %s" % (vr(DEN + 4 * u), vr(DEN + 4 * u)) for u in range(4)]
    side += ["v_mul_f32 %s, %s, %s" % (vr(DEN + 4 * u), vr(cst), vr(DEN + 4 * u)) for u in range(4)]
    for u in range(4):
        for hp in range(2):
            side.append("v_pk_mul_f32 %s, %s, %s op_sel_hi:[1,0]" % (vr(PQF + 4 * u + 2 * hp, 2), vr(PQF + 4 * u + 2 * hp, 2), vr(DEN + 4 * u, 2)))
    for j in range(8):
        side.append("v_cvt_pk_bf16_f32 %s, %s, %s" % (vr(PQ + j), vr(PQF + 2 * j), vr(PQF + 2 * j + 1)))
    NW1 = opt("nw1", 40)
    side += wr[:NW1]
    wr = wr[NW1:]
    W = Weave(gl)
    if XG >= 0:
        sw_ = [x for x in side if x.startswith("ds_")]
        side = [x for x in side if not x.startswith("ds_")]
        W.at(XG, "s_barrier" if LW else "WAITVM wo\ns_barrier")
        W.fill(sw_, XG, cap=opt("xcap", 6))
    W.fill(side, 2, cap=opt("gcap", 8))
    e(W.out())
    gm = ["WAITVM g%d\n" % i + mfma32(kv, IDM, GR + 4 * i, "0" if i == 0 else None) for i in range(16)]
    W = Weave(gm)
    NW2 = opt("nw2", 12)
    W.fill(wr[:NW2], 1, cap=1)
    wr = wr[NW2:]
    e(W.out())
    k.stamp("gathA")
    e("v_cvt_pk_bf16_f32 %s, %s, %s" % (vr(EX), vr(kv), vr(kv + 1)))
    e("v_cvt_pk_bf16_f32 %s, %s, %s" % (vr(EX + 1), vr(kv + 2), vr(kv + 3)))
    for u in range(4):
        e(mfma16(NUM + 4 * u, EX, PQ + 2 * u, "0"))
    OB = NM + 8
    for P in range(2):
        for j in range(4):
            e("v_cvt_pk_bf16_f32 %s, %s, %s" % (vr(OB + 4 * P + j), vr(NUM + 8 * P + 2 * j), vr(NUM + 8 * P + 2 * j + 1)))
        e("v_permlane16_swap_b32 %s, %s" % (vr(OB + 4 * P), vr(OB + 4 * P + 2)))
        e("v_permlane16_swap_b32 %s, %s" % (vr(OB + 4 * P + 1), vr(OB + 4 * P + 3)))
        e("buffer_store_dwordx4 %s, %s, %s, s%d offen sc1 ;@ost" % (vr(OB + 4 * P, 4), vr(vOS + P), sr(SWS, 4), s_b[0]))
    k.stamp("o_st")
    smq(1)
    k.nv = PERS2
    va = k.alloc(3)
    vc = k.alloc(6)
    vst, l16b, vcw, vcr = k.alloc(), k.alloc(), k.alloc(), k.alloc()
    TA2 = k.alloc(4)
    assert k.nv <= 60
    Q = [60 + 4 * i for i in range(48)]
    k.maxv = max(k.maxv, 252)
    STR = Q[0]
    BR = Q[2]
    tmp4 = BR + 8
    BF = Q[6]
    CF = Q[13]
    ACC = Q[20]
    WB = Q[34]
    XF = CF
    SS = CF + 16
    OF = ACC
    assert XF + 16 <= NM and XF > TO + 4 and XF >= av
    st = list(wr)
    st.append("WAITVM x")
    for P in range(2):
        st.append("v_permlane16_swap_b32 %s, %s" % (vr(HB + 4 * P), vr(HB + 4 * P + 2)))
        st.append("v_permlane16_swap_b32 %s, %s" % (vr(HB + 4 * P + 1), vr(HB + 4 * P + 3)))
    for j in range(8):
        st.append("v_lshlrev_b32 %s, 16, %s" % (vr(XF + 2 * j), vr(HB + j)))
        st.append("v_and_b32 %s, 0xffff0000, %s" % (vr(XF + 2 * j + 1), vr(HB + j)))
    s_rt2 = s_a[0]
    st.append("s_lshl_b32 s%d, s%d, 2" % (s_rt2, s_rb2))
    st.append("s_add_u32 s%d, s%d, s%d" % (s_rt2, s_rt2, s_wt))
    st.append("s_lshl_b32 s%d, s%d, 2" % (s_b[0], s_rt2))
    st.append("s_add_u32 s%d, s%d, s%d" % (s_b[0], s_b[0], s_r))
    st.append("s_lshl_b32 s%d, s%d, 12" % (s_b[0], s_b[0]))
    st.append("s_add_u32 s%d, s%d, 0x%x" % (s_b[0], s_b[0], WS_O))
    for p in range(1, 4):
        st.append("s_xor_b32 s%d, s%d, 0x%x" % (s_b[p], s_b[0], p << 12))
    st.append("v_bfe_u32 %s, v0, 4, 2" % vr(t3))
    st.append("v_lshlrev_b32 %s, 3, %s" % (vr(t3), vr(t3)))
    G2A = opt("g2a", 4)
    done = 28 - len(W1Q)
    assert done + G2A <= 21
    W = Weave(st)
    q = late + mall(opt("mc", 0)) + W1Q[:G2A]
    left = W.every(q, 1, max(2, len(st) // max(len(q), 1)))
    W1Q = W1Q[G2A:]
    e(W.out())
    e(flat(left))
    e(flag(s_fa, "ost", 64))
    k.stamp("flagB")
    if not LW:
        e("s_waitcnt lgkmcnt(0)")
        e("s_barrier")
    KS4 = [("r", c, a) for a in range(3) for c in range(4)] + [("s", 0), ("s", 1)]
    s_w2c = s_c[4:8]
    s_w8 = s_m0w
    s_s2, s_fp = 96, 97
    s_h, s_st = s_a[1], s_a[2]
    st = []
    st.append("s_lshl_b32 s%d, s%d, 13" % (s_w8, s_w))
    st.append("s_lshl_b32 s%d, s%d, 15" % (s_s2, s_w))
    st.append("s_cmp_eq_u32 s%d, 3\ns_cselect_b32 s%d, 0x20000, s%d" % (s_w, s_s2, s_s2))
    st.append("s_add_u32 s%d, s%d, 28672" % (s_s2, s_s2))
    st.append("s_sub_u32 s%d, s%d, s%d" % (s_t, s_s2, s_w8))
    st.append("s_add_u32 s%d, s%d, -65536" % (s_t, s_t))
    for nt in range(4):
        st.append("v_add_u32 %s, s%d, %s" % (vr(TA2 + nt), s_t, vr(TA + nt)))
    st.append("s_add_u32 s%d, s%d, 98304" % (s_w8, s_w8))
    st.append("s_mul_i32 s%d, s%d, %d" % (s_to, s_w, 448 * 1024))
    st.append("s_lshl_b32 s%d, s%d, 7" % (s_t, s_cb))
    st.append("s_add_u32 s%d, s%d, s%d" % (s_to, s_to, s_t))
    for p in range(4):
        st.append("s_xor_b32 s%d, s%d, %d" % (s_t, s_r, p))
        st.append("s_mul_i32 s%d, s%d, %d" % (s_t, s_t, 112 * 1024))
        st.append("s_add_u32 s%d, s%d, s%d" % (s_w2c[p], s_t, s_to))
    st.append("v_bfe_u32 %s, v0, 2, 4" % vr(t0))
    st.append("v_mul_u32_u24 %s, 224, %s" % (vr(t0), vr(t0)))
    st.append("v_and_b32 %s, 3, v0" % vr(t1))
    st.append("v_lshl_add_u32 %s, %s, 3, %s" % (vr(va), vr(t1), vr(t0)))
    for b in (1, 2):
        st.append("v_add_u32 %s, 0x%x, %s" % (vr(va + b), 65536 * b, vr(va)))
    st.append("s_lshl_b32 s%d, s%d, 5" % (s_t, s_w))
    st.append("s_add_u32 s%d, s%d, 128" % (s_to, s_t))
    st.append("s_cmp_eq_u32 s%d, 3\ns_cselect_b32 s%d, s%d, s%d" % (s_w, s_to, s_t, s_to))
    for b in range(3):
        st.append("v_add_u32 %s, s%d, %s" % (vr(vc + 2 * b), s_t, vr(va + b)))
        st.append("v_add_u32 %s, s%d, %s" % (vr(vc + 2 * b + 1), s_to, vr(va + b)))
    st.append("v_lshl_add_u32 %s, %s, 1, s%d" % (vr(vcr), vr(t3), s_s2))
    st.append("v_add_u32 %s, s%d, %s" % (vr(vcr), s_t, vr(vcr)))
    st.append("v_add_u32 %s, 1, %s" % (vr(t0), vr(t1)))
    st.append("v_lshrrev_b32 %s, 2, %s" % (vr(t0), vr(t0)))
    st.append("v_add_u32 %s, %s, %s" % (vr(t0), vr(t0), vr(t1)))
    st.append("s_lshl_b32 s%d, s%d, 6" % (s_t, s_w))
    st.append("s_add_u32 s%d, s%d, 28672" % (s_t, s_t))
    st.append("v_lshl_add_u32 %s, %s, 15, s%d" % (vr(t0), vr(t0), s_t))
    st.append("v_lshl_add_u32 %s, %s, 1, %s" % (vr(vcw), vr(t3), vr(t0)))
    st.append("v_lshl_add_u32 %s, %s, 5, %s" % (vr(vcw), vr(t1), vr(vcw)))
    st.append("v_and_b32 %s, 15, v0" % vr(t0))
    st.append("v_lshlrev_b32 %s, 5, %s" % (vr(t1), vr(t3)))
    st.append("v_lshl_add_u32 %s, %s, 3, %s" % (vr(vst), vr(t0), vr(t1)))
    st.append("v_add_u32 %s, 16384, %s" % (vr(l16b), vr(l16)))
    st += ["s_lshl_b32 s%d, s%d, 3" % (s_t, s_rt2),
           "s_add_u32 s%d, s%d, s%d" % (s_t, s_t, s_cb),
           "s_lshl_b32 s%d, s%d, 11" % (s_h, s_t),
           "s_add_u32 s%d, s%d, 0x%x" % (s_h, s_h, WS_H),
           "s_lshl_b32 s%d, s%d, 7" % (s_t, s_t),
           "s_add_u32 s%d, s%d, 0x%x" % (s_st, s_t, WS_ST),
           "s_lshl_b32 s%d, s%d, 7" % (s_t, s_rb2),
           "s_add_u32 s%d, s%d, 0x%x" % (s_t, s_t, WS_FA),
           "v_lshlrev_b32 %s, 5, %s" % (vr(t2), vr(l128))]
    G2B = opt("g2b", 7)
    bl = [([], "buffer_load_dwordx2 %s, %s, %s, s%d offen offset:%d ;@bias" % (vr(BR + 2 * u, 2), vr(t3), sr(SB1, 4), s_w1b, 32 * u)) for u in range(7)]
    BL = opt("bl", 0)
    if BL:
        st.append("v_mov_b32 %s, %s" % (vr(l128), vr(t3)))
        bl = [(a, b.replace(", %s, " % vr(t3), ", %s, " % vr(l128))) for a, b in bl]
    q = mall(opt("md", 0)) + W1Q[:G2B] + ([] if BL else bl)
    W1Q = W1Q[G2B:]
    if LW:
        SBW = opt("sbw", 0)
        st = st + ["WAITVM wo\ns_barrier"] + wr_late[:128 - SBW]
        wr_late = wr_late[128 - SBW:]
    SB = opt("sb", 0)
    if opt("bf", 0):
        q = bl + q[:len(q) - 7]
    qb = q[len(q) - SB:]
    q = q[:len(q) - SB]
    W = Weave(st)
    left = W.every(q, 1, max(2, len(st) // max(1, len(q))))
    e(W.out())
    e(flat(left))
    NA = (28 - len(W1Q)) // 7
    k.stamp("g2_iss")
    if SB:
        e("s_mov_b32 exec_hi, 0")
        e(poll_load(t2, SWS, "s%d" % s_t, vP, imm=64) + " ;@pb")
        e("s_mov_b64 exec, -1")
        W = Weave(wr_late if LW else [])
        left = W.every(qb, 1, max(2, len(W.main) // len(qb)))
        e(W.out())
        e(flat(left))
        e("WAITVM pb")
    poll(t2, 32, SWS, "s%d" % s_t, imm=64, first=vP if SB else None)
    k.stamp("pollB")
    ol = [([], "buffer_load_dwordx4 %s, %s, %s, s%d offen offset:%d sc1 ;@o%d" % (vr(OF + 4 * ks, 4), vr(l16), sr(SWS, 4), s_b[ks >> 2], (ks & 3) * 1024, ks))
          for ks in range(16)]
    P2N = opt("p2n", 10)
    W = Weave(flat(ol[:P2N]))
    bc = []
    for j in range(14):
        bc.append("v_lshlrev_b32 %s, 16, %s" % (vr(BF + 2 * j), vr(BR + j)))
        bc.append("v_and_b32 %s, 0xffff0000, %s" % (vr(BF + 2 * j + 1), vr(BR + j)))
    bc.append("v_lshrrev_b32 %s, 1, %s" % (vr(t3), vr(l16)))
    bc[0] = "WAITVM bias\n" + bc[0]
    W.fill(bc[-1:] if BL else bc, opt("bcp", 3), cap=6)
    e(W.out())
    if SB and NA:
        e("WAITVM w1g%d" % (NA - 1))
    if LW:
        assert len(W1Q) >= 7
        e("s_waitcnt lgkmcnt(0)")
    e("s_barrier")
    mm = []
    for ks in range(16):
        for nt in range(4):
            x = mfma32(XF + 4 * nt, WF + 16 * ks + 4 * nt, OF + 4 * ks)
            if nt == 0:
                x = "WAITVM o%d\n" % ks + x
            mm.append(x)
    W = Weave(mm)
    G3Z = opt("g3z", 7)
    left = W.every(ol[P2N:] + W1Q[:G3Z] + (bl if BL == 1 else []), 2, opt("g3s", 4))
    assert not left
    W1Q = W1Q[G3Z:]
    e(W.out())
    k.stamp("p2_mm")
    for j in range(8):
        e("v_cvt_pk_bf16_f32 %s, %s, %s" % (vr(HB + j), vr(XF + 2 * j), vr(XF + 2 * j + 1)))
        if j & 3 == 3:
            e("buffer_store_dwordx4 %s, %s, %s, s%d offen offset:%d sc1 ;@hst" % (vr(HB + j - 3, 4), vr(l16), sr(SWS, 4), s_h, (j >> 2) * 1024))
    k.stamp("h_st")
    st = []
    for q in range(2):
        st.append("v_dot2_f32_bf16 %s, %s, %s, 0" % (vr(SS + 2 * q), vr(HB + q), vr(ones)))
        st.append("v_dot2_f32_bf16 %s, %s, %s, 0" % (vr(SS + 2 * q + 1), vr(HB + q), vr(HB + q)))
    for j in range(2, 8):
        q = j & 1
        st.append("v_dot2_f32_bf16 %s, %s, %s, %s" % (vr(SS + 2 * q), vr(HB + j), vr(ones), vr(SS + 2 * q)))
        st.append("v_dot2_f32_bf16 %s, %s, %s, %s" % (vr(SS + 2 * q + 1), vr(HB + j), vr(HB + j), vr(SS + 2 * q + 1)))
    st.append("v_pk_add_f32 %s, %s, %s" % (vr(SS, 2), vr(SS, 2), vr(SS + 2, 2)))

    def xg_reduce(regs, tmp):
        o = []
        for sw in ("v_permlane16_swap_b32", "v_permlane32_swap_b32"):
            for j, r in enumerate(regs):
                o.append("v_mov_b32 %s, %s" % (vr(tmp + j), vr(r)))
            for j, r in enumerate(regs):
                o.append("%s %s, %s" % (sw, vr(r), vr(tmp + j)))
            for j, r in enumerate(regs):
                o.append("v_add_f32 %s, %s, %s" % (vr(r), vr(r), vr(tmp + j)))
        return o
    st += xg_reduce([SS, SS + 1], t0)
    st.append("v_or_b32 %s, 0x80000000, %s" % (vr(SS + 1), vr(SS + 1)))

    def w2_dma(n):
        kd = KS4[n]
        o = []
        for i in range(4):
            pre = []
            if i == 0:
                if kd[0] == "r":
                    pre.append("s_add_u32 s%d, s%d, %d" % (s_t2, s_w2c[kd[1]], kd[2] * 32768))
                else:
                    pre.append("s_add_u32 s%d, s%d, %d" % (s_t2, s_w2c[2 * kd[1]], 6 * 16384))
                pre.append("s_mov_b32 m0, s%d" % s_s2 if n % 3 == 2 else "s_add_u32 m0, s%d, %d" % (s_w8, (n % 3) * 4096))
                if n >= 2:
                    pre.append("WAITLG r2_%d" % (n - 3) if n > 2 else "WAITLG cf")
            if i == 2 and kd[0] == "s":
                pre.append("s_add_u32 s%d, s%d, %d" % (s_t2, s_w2c[2 * kd[1] + 1], 5 * 16384))
            o.append((pre, "buffer_load_dwordx4 %s, %s, s%d offen offset:%d lds ;@w2_%d_%d" % (vr(VD + i), sr(SW2, 4), s_t2, i * 1024, n, i)))
        return o

    W2R = {}
    for n in range(8):
        W2R[n] = [A0 + 128 + 16 * n + 4 * nt for nt in range(4)]
    W2R[8], W2R[9], W2R[10] = Q[6:10], Q[10:14], Q[14:18]
    W2R[11], W2R[12] = Q[20:24], Q[24:28]
    W2R[13] = Q[18:20] + Q[46:48]
    AC4 = Q[0:4] + Q[34:46]
    SG = Q[28:34] + Q[4:6]

    def w2_rd(n, wait=True):
        addr = TA2 if n % 3 == 2 else TA
        off = 0 if n % 3 == 2 else 32768 + (n % 3) * 4096
        o = ["ds_read_b64_tr_b16 %s, %s offset:%d" % (vr(W2R[n][nt] + 2 * hf, 2), vr(addr + nt), off + hf * 2048)
             for nt in range(4) for hf in range(2)]
        o[-1] += " ;@r2_%d" % n
        if wait:
            o[0] = "WAITVM w2_%d_3\n" % n + o[0]
        return o

    CS = ACC

    def w1pos(t):
        p = L_W1[t >> 2] + (t & 3) * 7168
        return p >> 16, p & 0xffff

    CB = WB

    def colsum(ta, tb):
        cr = {}
        for t in range(ta, tb):
            b, off = w1pos(t)
            cr[t] = [("ds_read_b64_tr_b16 %s, %s offset:%d ;@cs%d" % (vr(CB + 8 * (t % 6) + 4 * c + 2 * hf, 2), vr(vc + 2 * b + c), off + hf * 3584, t))
                     for c in range(2) for hf in range(2)]
        o = []
        for t in range(ta, min(tb, ta + 3)):
            o += cr[t]
        for t in range(ta, tb):
            z = "0" if t == 0 else None
            o.append("WAITLG cs%d\n" % t + mfma32(CS, CB + 8 * (t % 6), ones, z))
            if t + 3 < tb:
                o += cr[t + 3][:2]
            o.append(mfma32(CS + 4, CB + 8 * (t % 6) + 4, ones, z))
            if t + 3 < tb:
                o += cr[t + 3][2:]
        return o

    s_rt3 = s_a[0]
    CS1 = min(4 * NA, opt("cs1", 16))
    st += colsum(0, CS1)
    st += ["s_lshl_b32 s%d, s%d, 2" % (s_rt3, s_g3),
           "s_add_u32 s%d, s%d, s%d" % (s_rt3, s_rt3, s_w),
           "s_lshl_b32 s%d, s%d, 11" % (s_t, s_rt3),
           "s_add_u32 s%d, s%d, 0x%x" % (s_t, s_t, WS_ST),
           "s_lshl_b32 s%d, s%d, 3" % (s_b[0], s_rt3),
           "s_add_u32 s%d, s%d, s%d" % (s_b[0], s_b[0], s_r),
           "s_lshl_b32 s%d, s%d, 12" % (s_b[0], s_b[0]),
           "s_add_u32 s%d, s%d, 0x%x" % (s_b[0], s_b[0], WS_H)]
    for p in range(1, 4):
        st.append("s_xor_b32 s%d, s%d, 0x%x" % (s_b[p], s_b[0], p << 12))
    W2Q = sum([w2_dma(n) for n in range(14)], [])
    G3A = opt("g3a", 7)
    q = W1Q[:G3A] + mall(opt("me", 0))
    W1Q = W1Q[G3A:]
    W = Weave(st)
    left = W.every(q, 1, max(2, min(10, len(st) // max(len(q), 1))))
    e(W.out())
    e(flat(left))
    e("WAITVM hst")
    e("s_mov_b64 exec, 0xffff")
    e("buffer_store_dwordx2 %s, %s, %s, s%d offen sc1" % (vr(SS, 2), vr(t3), sr(SWS, 4), s_st))
    e("s_mov_b64 exec, -1")
    k.stamp("flagC")
    k.flush()
    e(flat((bl if BL == 2 else []) + W1Q + mall(opt("mf", 0))))
    R1 = opt("r1", 8)
    e(flat(W2Q[:R1]))
    W2Q = W2Q[R1:]
    if CS1 < 4 * NA:
        e(colsum(CS1, 4 * NA))
    fs = (lambda n: k.stamp(n)) if opt("fs", 0) else (lambda n: None)
    fs("r1")
    if NA < 4:
        e("WAITVM w1g3")
        fs("g3")
        e("s_barrier")
        fs("g3b")
        e(colsum(4 * NA, 16))
    fs("cs")
    e("s_mov_b32 exec_lo, 0x000f000f")
    e("s_mov_b32 exec_hi, 0x000f000f")
    e("ds_write_b128 %s, %s" % (vr(vcw), vr(CS, 4)))
    e("ds_write_b128 %s, %s offset:256" % (vr(vcw), vr(CS + 4, 4)))
    e("s_mov_b64 exec, -1")
    s_ac0, s_ac1, s_fd = s_a[1], s_a[2], s_a[3]
    e(["s_lshl_b32 s%d, s%d, 4" % (s_to, s_rt3),
       "s_add_u32 s%d, s%d, s%d" % (s_to, s_to, s_cb3),
       "s_mul_i32 s%d, s%d, 7168" % (s_ac0, s_to),
       "s_add_u32 s%d, s%d, 0x%x" % (s_ac0, s_ac0, WS_ACT),
       "s_add_u32 s%d, s%d, 3072" % (s_ac1, s_ac0),
       "s_lshl_b32 s%d, s%d, 7" % (s_fd, s_to),
       "s_add_u32 s%d, s%d, 0x%x" % (s_fd, s_fd, WS_FD)])
    e("s_waitcnt lgkmcnt(0)")
    e("s_barrier")
    fs("cfb")
    e(["ds_read_b128 %s, %s offset:%d ;@cf" % (vr(CF + 4 * u, 4), vr(vcr), u * 64) for u in range(7)])

    def w1reads(t, sg):
        b, off = w1pos(t)
        us = (0, 1, 2, 3) if sg == 0 else (4, 5, 6)
        return ["ds_read_b64_tr_b16 %s, %s offset:%d ;@a%d_%d" % (vr(w1buf(t, u) + 2 * hf, 2), vr(va + b), off + 32 * u + hf * 3584, sg, t)
                for u in us for hf in range(2)]

    def w1buf(t, u):
        return WB + 16 * (t % 3) + 4 * u if u < 4 else WB + 12 * (t % 4) + 4 * (u - 4)
    e(w1reads(0, 0) + w1reads(1, 0))
    VA, VS, vrw, vrr = V1, V1 + 4, vc, vc + 2
    vD = vc + 5
    s_ap = s_c[0:4]
    st = []
    st.append("v_add_u32 %s, s%d, %s" % (vr(vrw), s_w8, vr(l16)))
    st.append("v_add_u32 %s, s%d, %s" % (vr(vrw + 1), s_s2, vr(l16)))
    st.append("v_xor_b32 %s, 0x%x, %s" % (vr(vrr), 1 << 13, vr(vrw)))
    st.append("v_xor_b32 %s, 0x%x, %s" % (vr(vrr + 1), 2 << 13, vr(vrw)))
    st.append("s_xor_b32 s%d, s%d, 3" % (s_to, s_w))
    st.append("s_lshl_b32 s%d, s%d, 15" % (s_to, s_to))
    st.append("s_cmp_eq_u32 s%d, 0\ns_cselect_b32 s%d, 0x20000, s%d" % (s_w, s_to, s_to))
    st.append("s_add_u32 s%d, s%d, 28672" % (s_to, s_to))
    st.append("v_add_u32 %s, s%d, %s" % (vr(vrr + 2), s_to, vr(l16)))
    for v in range(4):
        st.append("s_xor_b32 s%d, s%d, %d" % (s_to, s_wt, v))
        st.append("s_lshr_b32 s%d, s%d, 1" % (s_fp, s_to))
        st.append("s_mul_i32 s%d, s%d, %d" % (s_fp, s_fp, 16 * 7168))
        if v & 1 == 0:
            st.append("v_add_u32 %s, s%d, %s" % (vr(VS + (v >> 1)), s_fp, vr(l16)))
            st.append("v_add_u32 %s, 6144, %s" % (vr(VS + (v >> 1)), vr(VS + (v >> 1))))
        st.append("s_and_b32 s%d, s%d, 1" % (s_to, s_to))
        st.append("s_mul_i32 s%d, s%d, 3072" % (s_to, s_to))
        st.append("s_add_u32 s%d, s%d, s%d" % (s_fp, s_fp, s_to))
        st.append("v_add_u32 %s, s%d, %s" % (vr(VA + v), s_fp, vr(l16)))
    st.append("s_lshl_b32 s%d, s%d, 3" % (s_fp, s_rb2))
    st.append("s_add_u32 s%d, s%d, s%d" % (s_fp, s_fp, s_w))
    st.append("s_lshl_b32 s%d, s%d, 2" % (s_fp, s_fp))
    for p in range(4):
        st.append("s_xor_b32 s%d, s%d, %d" % (s_to, s_r, p))
        st.append("s_add_u32 s%d, s%d, s%d" % (s_to, s_to, s_fp))
        st.append("s_mul_i32 s%d, s%d, 7168" % (s_to, s_to))
        st.append("s_add_u32 s%d, s%d, 0x%x" % (s_ap[p], s_to, WS_ACT))
    st.append("s_lshl_b32 s%d, s%d, 7" % (s_fp, s_fp))
    st.append("s_add_u32 s%d, s%d, 0x%x" % (s_fp, s_fp, WS_FD))
    st.append("v_bfe_u32 %s, v0, 2, 1" % vr(t0))
    st.append("v_lshlrev_b32 %s, 11, %s" % (vr(t0), vr(t0)))
    st.append("v_and_b32 %s, 3, v0" % vr(t1))
    st.append("v_lshl_add_u32 %s, %s, 7, %s" % (vr(t0), vr(t1), vr(t0)))
    st.append("v_bfe_u32 %s, v0, 3, 2" % vr(t1))
    st.append("v_lshl_add_u32 %s, %s, 17, %s" % (vr(vD), vr(t1), vr(t0)))
    SU = opt("su", 0)
    st4 = st
    if not SU:
        e(st)
    fs("su")
    nrd = 0
    R2 = opt("r2", 12)
    stl = ["buffer_load_dwordx2 %s, %s, %s, s%d offen offset:%d sc1" % (vr(STR + 4 * rt + 2 * i, 2), vr(vst), sr(SWS, 4), s_t, rt * 1024 + i * 128)
           for rt in range(2) for i in range(2)]
    if R2:
        assert R1 == 8
        e(flat(W2Q[:4]))
        e(w2_rd(0) + w2_rd(1))
        nrd = 2
        SE = opt("se", 0)
        e(flat(W2Q[4:R2 - SE]))
        if SE:
            e([x + " ;@sc" for x in stl])
            e(flat(W2Q[R2 - SE:R2]))
        W2Q = W2Q[R2:]
    if BL:
        e(bc[:-1])
    k.stamp("cs_done")
    e("s_mov_b32 s%d, %d" % (s_to, 20000 if FINE else TIMEOUT))
    if opt("se", 0):
        e("WAITVM sc")
        e("s_branch L_chkC")
    e("L_pollC:")
    e([x + " ;@cond" for x in stl])
    e("s_waitcnt vmcnt(0)")
    e("L_chkC:")
    e("v_min3_u32 %s, %s, %s, %s" % (vr(t0), vr(STR + 1), vr(STR + 3), vr(STR + 5)))
    e("v_min_u32 %s, %s, %s" % (vr(t0), vr(t0), vr(STR + 7)))
    e("v_cmp_eq_u32 vcc, 0, %s" % vr(t0))
    e("s_cbranch_vccz L_okC")
    e("s_sub_u32 s%d, s%d, 1" % (s_to, s_to))
    e("s_cbranch_scc0 L_pollC")
    e("L_okC:")
    k.stamp("pollC")
    HF = A0
    hl = []
    for t in range(16):
        for rt in range(2):
            hl.append(([], "buffer_load_dwordx4 %s, %s, %s, s%d offen offset:%d sc1 ;@h%d" % (vr(HF + 8 * t + 4 * rt, 4), vr(l16b if rt else l16), sr(SWS, 4), s_b[t >> 2], (t & 3) * 1024, t)))
    sv = []
    for rt in range(2):
        sv.append("v_pk_add_f32 %s, %s, %s" % (vr(STR + 4 * rt, 2), vr(STR + 4 * rt, 2), vr(STR + 4 * rt + 2, 2)))
    sv += xg_reduce([STR, STR + 1, STR + 4, STR + 5], tmp4)
    for op in range(8):
        for rt in range(2):
            a, b, c = STR + 4 * rt, STR + 4 * rt + 1, STR + 4 * rt + 2
            sv.append(["v_mul_f32 %s, %s, %s" % (vr(a), f32(-1.0 / 512), vr(a)),
                       "v_mul_f32 %s, %s, %s" % (vr(b), f32(-1.0 / 512), vr(b)),
                       "v_fma_f32 %s, -%s, %s, %s" % (vr(b), vr(a), vr(a), vr(b)),
                       "v_max_f32 %s, 0, %s" % (vr(b), vr(b)),
                       "v_add_f32 %s, %s, %s" % (vr(b), f32(1e-5), vr(b)),
                       "v_rsq_f32 %s, %s" % (vr(c), vr(b)),
                       "v_mul_f32 %s, %s, %s" % (vr(b), vr(b), vr(c)),
                       "v_mul_f32 %s, %s, %s" % (vr(c), f32(LOG2E), vr(c))][op])
    first = True
    for u in range(7):
        for op in range(2):
            for rt in range(2):
                for hp in range(2):
                    a = ACC + 8 * u + 4 * rt + 2 * hp
                    if op == 0:
                        x = "v_pk_mul_f32 %s, %s, %s op_sel:[0,1] op_sel_hi:[1,1]" % (vr(a, 2), vr(BF + 4 * u + 2 * hp, 2), vr(STR + 4 * rt, 2))
                    else:
                        x = "v_pk_fma_f32 %s, %s, %s, %s op_sel_hi:[1,0,1]" % (vr(a, 2), vr(CF + 4 * u + 2 * hp, 2), vr(STR + 4 * rt, 2), vr(a, 2))
                        if first:
                            x = "WAITLG cf\n" + x
                            first = False
                    sv.append(x)
    P3N = opt("p3n", 10)
    W = Weave(flat(hl[:P3N]))
    W.fill(sv, opt("sv0", 3), cap=opt("svc", 12))
    e(W.out())
    mm = []
    for t in range(16):
        x = [mfma32(ACC + 8 * u + 4 * rt, w1buf(t, u), HF + 8 * t + 4 * rt) for u in range(4) for rt in range(2)]
        pre = "WAITVM h%d\nWAITLG a0_%d\n" % (t, t)
        if t in (0, 8):
            pre += k.stamp_text("t%d" % t) + "\n"
        x[0] = pre + x[0]
        mm += x
    W = Weave(mm)
    for t in range(14):
        for i, r in enumerate(w1reads(t + 2, 0)):
            W.at(8 * t + i + 1, r)
    q = hl[P3N:]
    W.every(q, 2, 4)
    niss = (56 - len(W2Q)) // 4
    rds = []
    while nrd < niss:
        rds += w2_rd(nrd, False)
        nrd += 1
    pos = W.fill(rds, 1, cap=2)
    R3 = opt("r3", 8)
    left = W.every(W2Q[:R3], max(pos + 8, 2 + 4 * len(q)), 4)
    W2Q = left + W2Q[R3:]
    if SU:
        assert W.fill(st4, SU, cap=opt("suc", 2)) < 8 * 15
    W.fill(["\n".join(["s_bitcmp1_b32 s%d, 0" % s_wt] + ["s_cselect_b32 s%d, s%d, s%d" % (s_b[c], s_ap[c ^ 1], s_ap[c]) for c in range(4)])], 8 * 15 + 2)
    e(W.out())
    k.stamp("p3a")
    tm = BR

    def mish(u, rt, ob):
        R = STR + 4 * rt + 2
        o = []
        for hp in range(2):
            a = ACC + 8 * u + 4 * rt + 2 * hp
            E = tm + 4 * hp + 2
            o.append("v_pk_mul_f32 %s, %s, %s op_sel_hi:[1,0]" % (vr(a, 2), vr(a, 2), vr(R, 2)))
            o.append("v_exp_f32 %s, %s" % (vr(E), vr(a)))
            o.append("v_exp_f32 %s, %s" % (vr(E + 1), vr(a + 1)))
        for hp in range(2):
            C, E = tm + 4 * hp, tm + 4 * hp + 2
            o.append("v_pk_fma_f32 %s, %s, -0.5, -1.0 op_sel_hi:[1,0,0]" % (vr(C, 2), vr(E, 2)))
            o.append("v_pk_fma_f32 %s, %s, %s, -1.0 op_sel_hi:[1,1,0]" % (vr(C, 2), vr(E, 2), vr(C, 2)))
            o.append("v_rcp_f32 %s, %s" % (vr(C), vr(C)))
            o.append("v_rcp_f32 %s, %s" % (vr(C + 1), vr(C + 1)))
        for hp in range(2):
            a = ACC + 8 * u + 4 * rt + 2 * hp
            C = tm + 4 * hp
            o.append("v_pk_fma_f32 %s, %s, %s, %s" % (vr(a, 2), vr(C, 2), vr(a, 2), vr(a, 2)))
        for hp in range(2):
            a = ACC + 8 * u + 4 * rt + 2 * hp
            o.append("v_cvt_pk_bf16_f32 %s, %s, %s" % (vr(ob + hp), vr(a), vr(a + 1)))
        return o

    def piece(pc):
        if pc is None:
            ob = ACC + 48
            return mish(6, 0, ob) + mish(6, 1, ob + 2) + [
                "buffer_store_dwordx4 %s, %s, %s, s%d offen offset:3072 sc1 ;@ast2" % (vr(ob, 4), vr(l16), sr(SWS, 4), s_ac1)]
        rt, a = pc
        ob = ACC + 16 * a + 4 * rt
        return mish(2 * a, rt, ob) + mish(2 * a + 1, rt, ob + 2) + [
            "buffer_store_dwordx4 %s, %s, %s, s%d offen offset:%d sc1 ;@ast%d" % (vr(ob, 4), vr(l16), sr(SWS, 4), (s_ac0, s_ac1)[rt], a * 1024, a)]

    body = piece((0, 0)) + piece((1, 0)) + piece((0, 1)) + piece((1, 1))
    W = Weave(body)
    W.fill(w1reads(0, 1) + w1reads(1, 1) + w1reads(2, 1), len(body) - 40, cap=1)
    e(W.out())
    k.stamp("epi_a")
    k.flush()
    mm = []
    for t in range(16):
        x = [mfma32(ACC + 8 * u + 4 * rt, w1buf(t, u), HF + 8 * t + 4 * rt) for u in range(4, 7) for rt in range(2)]
        x[0] = "WAITLG a1_%d\n" % t + x[0]
        mm += x
    W = Weave(mm)
    for t in range(13):
        for i, r in enumerate(w1reads(t + 3, 1)):
            W.at(6 * t + i + 1, r)

    def fstore(i, wait):
        return "\n".join(["WAITVM " + wait, "s_mov_b64 exec, 1",
                          "buffer_store_dword %s, off, %s, s%d sc1" % (vr(vone), sr(SWS, 4), s_fd),
                          "s_mov_b64 exec, -1", "s_add_u32 s%d, s%d, 0x%x" % (s_fd, s_fd, FDS), k.stamp_text("flagD%d" % i)])
    if NFD == 3:
        W.at(opt("fd0", 16), fstore(0, "ast0"), cost=4)
    W.at(opt("fd1", 44), fstore(1, "ast1"), cost=4)
    w2s = [W2Q, nrd]

    def place(W, spec, step, cap):
        pos = 1
        for sp in spec.split(","):
            if not sp:
                continue
            if sp[0] == "@":
                pos = max(pos, int(sp[1:]))
            elif sp[0] == "R":
                assert w2s[1] < (56 - len(w2s[0])) // 4
                pos = W.fill(w2_rd(w2s[1]), pos, cap=cap) + 1
                w2s[1] += 1
            else:
                n = int(sp[1:])
                left = W.every(w2s[0][:n], pos + 1, step)
                W.at(len(W.main), flat(left))
                w2s[0] = w2s[0][n:]
                pos += step * n
    place(W, opt_s("p3b", "L4,R,R,L8,@62,R,L4"), 4, 2)
    e(W.out())
    k.stamp("p3b")
    body = piece((0, 2)) + piece((1, 2)) + piece(None)
    W = Weave(body)
    place(W, opt_s("epb", "R,R,L8,@70,R,L4"), opt("eps", 5), 1)
    W.at(len(body) - opt("pds", 40), "\n".join(["s_mov_b64 exec, 0x%x" % (0xff if NFD == 2 else 0xffff), poll_load(vD, SWS, "s%d" % s_fp, vP) + " ;@pd", "s_mov_b64 exec, -1"]))
    e(W.out())
    k.stamp("epi_b")
    k.flush()
    W = Weave([])
    place(W, opt_s("g4a", ""), 0, 99)
    e(W.out())

    def pollD(i, first, e=e):
        n = npoll[0]
        npoll[0] += 1
        e("s_mov_b64 exec, 0x%x" % (0xff << (8 * i)))
        e("s_mov_b32 s%d, %d" % (s_to, 20000 if FINE else TIMEOUT))
        e("v_cmp_eq_u32 vcc, 0, %s" % vr(first))
        e("s_cbranch_vccz L_ok%d" % n)
        e("L_poll%d:" % n)
        e(poll_load(vD, SWS, "s%d" % s_fp, t1) + " ;@cond")
        e("s_waitcnt vmcnt(0)")
        e("v_cmp_eq_u32 vcc, 0, %s" % vr(t1))
        e("s_cbranch_vccz L_ok%d" % n)
        e("s_sub_u32 s%d, s%d, 1" % (s_to, s_to))
        e("s_cbranch_scc0 L_poll%d" % n)
        e("L_ok%d:" % n)
        e("s_mov_b64 exec, -1")
        e(k.stamp_text("pollD%d" % i))

    e("WAITVM pd")
    pollD(0, vP)
    OA = opt("oa", 4)
    if NFD == 3:
        seq = [(v, n) for v in (2, 3, 1, 0) for n in range(4)] + [(v, n) for v in (2, 3, 1, 0) for n in range(4, 8)]
    else:
        seq = [(v, n) for v in (2, 3, 1, 0) for n in range(8)]
    lseq = list(seq)
    seq = [x for x in seq if x[0] or x[1] < OA]
    NSA = len(seq)
    seq += [(v, n) for v in (2, 3, 1) for n in range(8, 14)]
    NSB = len(seq)
    seq += [(0, n) for n in range(OA, 14)]
    AF = {}
    la, lb = [], []
    for i, (v, n) in enumerate(lseq):
        _, c, a = KS4[n]
        AF[(v, n)] = A0 + 4 * i
        la.append(([], "buffer_load_dwordx4 %s, %s, %s, s%d offen offset:%d sc1 ;@x%d_%d" % (vr(AF[(v, n)], 4), vr(VA + v), sr(SWS, 4), s_ap[c], a * 1024, v, n)))
    free = [AF[x] for x in seq[:NSA]]
    minpos = []
    for v in (2, 3, 1, 0):
        for n in range(8, 14):
            kd = KS4[n]
            if kd[0] == "r":
                _, c, a = kd
                minpos.append(4 * (NSA - len(free)) + 4)
                AF[(v, n)] = free.pop(0)
                lb.append(([], "buffer_load_dwordx4 %s, %s, %s, s%d offen offset:%d sc1 ;@x%d_%d" % (vr(AF[(v, n)], 4), vr(VA + v), sr(SWS, 4), s_ap[c], a * 1024, v, n)))
            elif v in (2, 1):
                ee, pp = kd[1], v >> 1
                for ab in range(2):
                    minpos.append(0)
                    AF[(2 * pp + ab, n)] = SG[4 * ee + 2 * pp + ab]
                    lb.append(([], "buffer_load_dwordx4 %s, %s, %s, s%d offen sc1 ;@x%d_%d" % (vr(AF[(2 * pp + ab, n)], 4), vr(VS + pp), sr(SWS, 4), s_b[2 * ee + ab], v, n)))
    if NFD == 3:
        pt = []
        pollD(1, vP, e=pt.append)
        la[16] = (["\n".join(pt)], la[16][1])
    N0 = opt("p4n0", 12)
    W = Weave(flat(la[:N0]))
    e(W.out())
    W = Weave([])
    place(W, opt_s("g4b", ""), 0, 99)
    e(W.out())
    assert w2s[1] >= 8
    FD2 = opt("fd2", 0)
    mm = []
    started = set()
    waited = set()
    for i, (v, n) in enumerate(seq):
        kd = KS4[n]
        x = [mfma32(AC4[4 * v + nt], W2R[n][nt], AF[(v, n)], None if v in started else "0") for nt in range(4)]
        started.add(v)
        pre = []
        if kd[0] == "r" or v in (2, 1):
            pre.append("WAITVM x%d_%d" % (v, n))
        if n not in waited and (n == 0 or n >= 8):
            pre.append("WAITLG r2_%d" % max(n, 7))
        waited.add(n)
        if kd[0] == "s" and v in (2, 1):
            ee, pp = kd[1], v >> 1
            A, B = SG[4 * ee + 2 * pp], SG[4 * ee + 2 * pp + 1]
            lbl = "%d_%d" % (ee, pp)
            pre += ["s_bitcmp1_b32 s%d, 0" % s_wt, "s_cbranch_scc1 L_odd" + lbl,
                    "v_swap_b32 %s, %s" % (vr(A + 2), vr(B)), "v_swap_b32 %s, %s" % (vr(A + 3), vr(B + 1)),
                    "s_branch L_sw" + lbl, "L_odd%s:" % lbl,
                    "v_swap_b32 %s, %s" % (vr(A + 0), vr(B + 2)), "v_swap_b32 %s, %s" % (vr(A + 1), vr(B + 3)),
                    "L_sw%s:" % lbl, "s_nop 1"]
        if i in (0, NSA, NSB):
            pre.append("STAMP%d" % i)
        x[0] = "\n".join(pre + [x[0]])
        mm += x
    mm[0] = mm[0].replace("STAMP0", k.stamp_text("y0"))
    W = Weave(mm)
    W.at(FD2, fstore(2, "ast2"), cost=4)
    nown = 32 - NSA
    if NFD == 3:
        assert OA >= 4
    q = la[N0:32 - nown]
    left = W.every(q, 2, 4)
    assert not left
    pos = 2 + 4 * len(q)
    lb = lb[:20] + la[32 - nown:] + lb[20:]
    minpos = minpos[:20] + [0] * nown + minpos[20:]
    PB = opt("pb", 4 * NSA - 44)
    PS = opt("ps", 36)
    W.at(PB - PS, "\n".join(["s_mov_b64 exec, 0x%x" % (0xff << (8 * (NFD - 1))), poll_load(vD, SWS, "s%d" % s_fp, vP) + " ;@pe", "s_mov_b64 exec, -1"]), cost=3)
    pt = ["WAITVM pe"]
    pollD(NFD - 1, vP, e=pt.append)
    W.at(PB, "\n".join(pt), cost=6)
    W.main[4 * NSA] = W.main[4 * NSA].replace("STAMP%d" % NSA, k.stamp_text("yb"))
    W.main[4 * NSB] = W.main[4 * NSB].replace("STAMP%d" % NSB, k.stamp_text("yo"))
    pos = max(pos, PB + 1)
    NB0 = opt("nb0", 6)
    for i, it in enumerate(lb):
        assert pos >= minpos[i], (pos, minpos[i])
        W.every([it], pos, 4)
        pos += 1 if i < NB0 else 4
    place(W, opt_s("p4s", "@60,R,R,R"), 4, 2)
    assert w2s[1] == 14
    ROFF = {1: (0, 0), 2: (0, 4096), 3: (1, 0)}
    for i, v in enumerate((2, 3, 1)):
        for nt in range(4):
            W.at(4 * NSA + 24 * (i + 1) + 3 + 4 * nt, "ds_write_b128 %s, %s offset:%d" % (vr(vrw + ROFF[v][0]), vr(AC4[4 * v + nt], 4), ROFF[v][1] + nt * 1024), cost=2)
    XR_ = [SG[x] + j for x in (2, 3, 6, 7) for j in range(4)]
    cl = t2
    unp = ["v_mov_b32 %s, %s" % (vr(cl), f32(LN2))]
    for j in range(8):
        unp.append("v_lshlrev_b32 %s, 16, %s" % (vr(XR_[2 * j]), vr(HB + j)))
        unp.append("v_and_b32 %s, 0xffff0000, %s" % (vr(XR_[2 * j + 1]), vr(HB + j)))
    W.fill(unp, 4 * NSA + 48 + 2, cap=2)
    YB = 4 * NSB + opt("yb", 18)
    W.at(YB, "s_waitcnt lgkmcnt(0)\ns_barrier\n" + k.stamp_text("red_bar"))
    rl = ["ds_read_b128 %s, %s offset:%d ;@p%d" % (vr(AC4[4 * v + nt], 4), vr(vrr + v - 1), ROFF[v][1] + nt * 1024, v) for v in (1, 2, 3) for nt in range(4)]
    pos = W.fill(rl, YB, cap=3)
    ad = []
    for v in (1, 2, 3):
        for j in range(16):
            x = "v_fmac_f32 %s, %s, %s" % (vr(XR_[j]), vr(AC4[4 * v + (j >> 2)] + (j & 3)), vr(cl))
            if j == 0:
                x = "WAITLG p%d\n" % v + x
            ad.append(x)
    W.fill(ad, pos + 4, cap=2)
    e(W.out())
    k.stamp("y_done")
    for j in range(8):
        for x in (2 * j, 2 * j + 1):
            e("v_fmac_f32 %s, %s, %s" % (vr(XR_[x]), vr(AC4[x >> 2] + (x & 3)), vr(cl)))
        e("v_cvt_pk_bf16_f32 %s, %s, %s" % (vr(HB + j), vr(XR_[2 * j]), vr(XR_[2 * j + 1])))
        if j & 3 == 3:
            P = j >> 2
            e("v_permlane16_swap_b32 %s, %s" % (vr(HB + 4 * P), vr(HB + 4 * P + 2)))
            e("v_permlane16_swap_b32 %s, %s" % (vr(HB + 4 * P + 1), vr(HB + 4 * P + 3)))
            e("buffer_store_dwordx4 %s, %s, %s, s%d offen offset:%d" % (vr(HB + 4 * P, 4), vr(vxo), sr(SOUT, 4), s_xo, P * 64))
    if FINE:
        k.stamp("issued")
        e("s_waitcnt vmcnt(0)")
        k.stamp("drained")
        k.flush()
        e("v_lshlrev_b32 %s, 2, v0" % vr(t0))
        e("s_lshl_b32 s%d, s2, 10" % s_t)
        e("s_add_u32 s%d, s%d, 0x%x" % (s_t, s_t, WS_STAMP))
        e("buffer_store_dword v255, %s, %s, s%d offen" % (vr(t0), sr(SWS, 4), s_t))
        open(OUT + ".txt", "w").write(" ".join(k.stamps))
    e("L_done:\ns_endpgm")
    return k


def main():
    k = build()
    L = []
    L.append("; @launch grid=(256,1,1) block=(256,1,1) lds=163840")
    L.append('.amdgcn_target "amdgcn-amd-amdhsa--gfx950"')
    L.append(".text")
    L += hz.fix(resolve(k.L))
    L.append("L_code_end:")
    L.append('.section .rodata,"a"')
    L.append(".p2align 6\n.amdhsa_kernel %s" % NAME)
    L.append("  .amdhsa_next_free_vgpr 512\n  .amdhsa_next_free_sgpr 102\n  .amdhsa_accum_offset 256")
    L.append("  .amdhsa_group_segment_fixed_size 0\n  .amdhsa_kernarg_size 80\n  .amdhsa_user_sgpr_count 2\n"
             "  .amdhsa_user_sgpr_kernarg_segment_ptr 1\n  .amdhsa_system_sgpr_workgroup_id_x 1\n.end_amdhsa_kernel")
    print("max vgpr", k.maxv, "lines", len(L))
    open(OUT, "w").write("\n".join(L) + "\n")


main()
```

```python
import sys, struct
sys.path.insert(0, "tools")
import hz

OUT = sys.argv[1]
OPTS = set(sys.argv[2:])
FINE = "fine" in OPTS
NAME = "sequential_preLN__linear_attn_block__dense_activation_mish__prompt_kernel"

WS_PART = 0x000000
WS_O = 0x100000
WS_H = 0x400000
WS_ST = 0x600000
WS_FA, WS_FC, WS_FD = 0x700000, 0x740000, 0x760000
FDS = 0x20000
WS_ACT = 0x800000
WS_STAMP = 0x8000000

L_RING = 65536
SLOT = 24576
L_SCR = 159744
L_WO = 65536
L_W1 = [131072, 0, 32768, 65536]
L_CS = 61440
TIMEOUT = 1000000
NSTAMP = 12

LOG2E = 1.4426950408889634
LN2 = 0.6931471805599453


def f32(x):
    return "0x%08x" % struct.unpack("<I", struct.pack("<f", x))[0]


def opt(name, default):
    for o in OPTS:
        if o.startswith(name + "="):
            return int(o.split("=")[1])
    return default


def opt_s(name, default):
    for o in OPTS:
        if o.startswith(name + "="):
            return o.split("=")[1]
    return default


NFD = opt("nfd", 2)


class K:
    def __init__(self):
        self.L = []
        self.nv = 1
        self.maxv = 1
        self.stamps = []
        self.pend = 0

    def e(self, s):
        if isinstance(s, (list, tuple)):
            for x in s:
                self.e(x)
        elif s:
            self.L.append(s)

    def stamp_text(self, name):
        if not FINE:
            return ""
        assert self.pend < NSTAMP, name
        t = "%s s[%d:%d]" % ("s_memtime" if "clk" in OPTS else "s_memrealtime", 72 + 2 * self.pend, 73 + 2 * self.pend)
        self.stamps.append(name)
        self.pend += 1
        return t

    def stamp(self, name=""):
        self.e(self.stamp_text(name))

    def flush(self):
        if not FINE or not self.pend:
            return
        self.e("s_waitcnt lgkmcnt(0)")
        base = len(self.stamps) - self.pend
        for n in range(self.pend):
            self.e("v_writelane_b32 v255, s%d, %d" % (72 + 2 * n, base + n))
        self.e("s_nop 3")
        self.pend = 0

    def alloc(self, n=1, align=1):
        if n >= 2 and align < 2:
            align = 2
        self.nv = (self.nv + align - 1) // align * align
        r = self.nv
        self.nv += n
        self.maxv = max(self.maxv, self.nv)
        assert self.nv <= (255 if FINE else 256), "out of VGPRs"
        return r


def resolve(lines):
    flat = []
    for l in lines:
        flat += l.split("\n")
    out = []
    vm, lg = [], []
    for l in flat:
        t = l.strip()
        if not t:
            continue
        if t.startswith("WAITVM") or t.startswith("WAITLG"):
            isvm = t.startswith("WAITVM")
            lst = vm if isvm else lg
            n = None
            for tag in t.split()[1:]:
                idx = max(i for i, x in enumerate(lst) if x == tag)
                c = len(lst) - 1 - idx
                n = c if n is None else min(n, c)
            n = min(n, 63 if isvm else 15)
            out.append("s_waitcnt %s(%d)" % ("vmcnt" if isvm else "lgkmcnt", n))
            continue
        tag = t.split(";@")[1].strip() if ";@" in t else "_"
        if t.startswith(("buffer_", "global_")):
            if tag != "cond":
                vm.append(tag)
        elif t.startswith("ds_"):
            lg.append(tag)
        out.append(l.split(";@")[0].rstrip())
    return out


class Weave:
    def __init__(self, main):
        self.main = list(main)
        self.s = [[] for _ in range(len(self.main) + 1)]
        self.c = [0] * (len(self.main) + 1)

    def at(self, i, items, cost=1):
        if not isinstance(items, (list, tuple)):
            items = [items]
        i = min(i, len(self.main))
        for x in items:
            if x:
                self.s[i].append(x)
                self.c[i] += cost

    def every(self, items, start, step, stop=None):
        stop = len(self.main) if stop is None else stop
        i = start
        items = list(items)
        while items and i <= stop:
            pre, ins = items.pop(0)
            self.at(max(i - 1, 0), pre)
            self.at(i, ins, cost=2)
            i += step
        return items

    def fill(self, items, start, cap=1, stop=None):
        stop = len(self.main) if stop is None else stop
        i = start
        for x in items:
            while i < stop and self.c[i] >= cap:
                i += 1
            self.at(i, x)
        return i

    def out(self):
        o = []
        for i, m in enumerate(self.main):
            o += self.s[i]
            o.append(m)
        o += self.s[-1]
        return o


def flat(items):
    o = []
    for pre, ins in items:
        o += list(pre)
        o.append(ins)
    return o


def vr(n, c=1):
    p = "v"
    if n >= 256:
        p = "a"
        n -= 256
    if c == 1:
        return "%s%d" % (p, n)
    return "%s[%d:%d]" % (p, n, n + c - 1)


def sr(n, c=1):
    return "s%d" % n if c == 1 else "s[%d:%d]" % (n, n + c - 1)


def mfma32(d, a, b, c=None):
    cs = vr(d, 4) if c is None else (c if isinstance(c, str) else vr(c, 4))
    return "v_mfma_f32_16x16x32_bf16 %s, %s, %s, %s" % (vr(d, 4), vr(a, 4), vr(b, 4), cs)


def mfma16(d, a, b, c):
    cs = c if isinstance(c, str) else vr(c, 4)
    return "v_mfma_f32_16x16x16_bf16 %s, %s, %s, %s" % (vr(d, 4), vr(a, 2), vr(b, 2), cs)


SX, SWQ, SWS, SDB, SWO, SW1, SW2, SB1, SOUT = 8, 12, 16, 20, 24, 28, 32, 36, 40
s_w, s_rb, s_cg, s_r, s_t = 3, 4, 5, 6, 7
s_t2, s_ox, s_w1b, s_m0x, s_m0w, s_xo, s_wob = 44, 45, 46, 47, 48, 49, 50
s_rb2, s_cb, s_g3, s_cb3 = 51, 52, 53, 54
s_a = [55, 56, 57, 58]
s_b = [59, 60, 61, 62]
s_to = 63
s_c = list(range(64, 72))
A0 = 256


def build():
    k = K()
    e = k.e
    e(".globl %s\n.p2align 8\n.type %s,@function\n%s:" % (NAME, NAME, NAME))
    e("s_cmp_ge_u32 s2, 256")
    e("s_cbranch_scc1 L_done")
    k.stamp("start")
    for base, off, size in ((SX, 0, 2048 * 1024), (SWQ, 8, 512 * 3072), (SWS, 72, 0x10000000), (SDB, 64, 256),
                            (SWO, 16, 512 * 1024), (SW1, 32, 512 * 3584), (SW2, 48, 1792 * 1024), (SB1, 40, 3584),
                            (SOUT, 56, 2048 * 1024)):
        e("s_load_dwordx2 %s, s[0:1], %d" % (sr(base, 2), off))
    for base, off, size in ((SX, 0, 2048 * 1024), (SWQ, 8, 512 * 3072), (SWS, 72, 0x10000000), (SDB, 64, 256),
                            (SWO, 16, 512 * 1024), (SW1, 32, 512 * 3584), (SW2, 48, 1792 * 1024), (SB1, 40, 3584),
                            (SOUT, 56, 2048 * 1024)):
        e("s_mov_b32 s%d, 0x%x" % (base + 2, size))
        e("s_mov_b32 s%d, 0x20000" % (base + 3))
    t0, t1, t2, t3 = k.alloc(), k.alloc(), k.alloc(), k.alloc()
    l16, l128, vone, vP = k.alloc(), k.alloc(), k.alloc(), k.alloc()
    vxo = k.alloc()
    VD = k.alloc(4)
    TA = k.alloc(4)
    HB = k.alloc(8, 4)
    ones = k.alloc(4, 4)
    PERS = k.nv
    V1 = k.alloc(7)
    vM14, vMd, vMe = k.alloc(), k.alloc(), k.alloc()
    PERS2 = k.nv
    if FINE:
        e("v_mov_b32 v255, 0")
    e("v_lshrrev_b32 %s, 6, v0" % vr(t1))
    if opt("pfcode", 1):
        e("s_getpc_b64 s[96:97]")
        e("L_pc:")
        e("v_and_b32 %s, 3, v0" % vr(t0))
        e("v_lshl_add_u32 %s, %s, 2, %s" % (vr(t0), vr(t1), vr(t0)))
        e("s_lshr_b32 s%d, s2, 3" % s_t)
        e("s_lshl_b32 s%d, s%d, 11" % (s_t, s_t))
        e("v_lshl_add_u32 %s, %s, 7, s%d" % (vr(t0), vr(t0), s_t))
        e("v_min_u32 %s, L_code_end-L_pc-4, %s" % (vr(vP), vr(t0)))
        e("global_load_dword %s, %s, s[96:97]" % (vr(vP), vr(vP)))
    s_ph = s_a[3]
    e("s_bfe_u32 s%d, s2, 0x20001" % s_rb)
    e("s_lshl_b32 s%d, s%d, 3" % (s_rb, s_rb))
    e("s_bfe_u32 s%d, s2, 0x30003" % s_ph)
    e("s_add_u32 s%d, s%d, s%d" % (s_rb, s_rb, s_ph))
    e("s_and_b32 s%d, s2, 1" % s_cg)
    e("s_lshl_b32 s%d, s%d, 2" % (s_cg, s_cg))
    e("s_lshr_b32 s%d, s2, 6" % s_t2)
    e("s_add_u32 s%d, s%d, s%d" % (s_cg, s_cg, s_t2))
    e("s_lshl_b32 s%d, s%d, 1" % (s_t2, s_t2))
    e("s_add_u32 s%d, s%d, s%d" % (s_ph, s_ph, s_t2))
    vx0, vx1, vw0, vw1 = k.alloc(), k.alloc(), k.alloc(), k.alloc()
    e("v_lshrrev_b32 %s, 3, v0" % vr(t0))
    e("v_readfirstlane_b32 s%d, %s" % (s_w, vr(t1)))
    e("v_lshl_add_u32 %s, %s, 3, %s" % (vr(t0), vr(t1), vr(t0)))
    e("v_bfe_u32 %s, v0, 4, 2" % vr(t1))
    e("v_and_b32 %s, 7, v0" % vr(t2))
    e("v_xor_b32 %s, %s, %s" % (vr(t1), vr(t1), vr(t2)))
    e("v_lshlrev_b32 %s, 4, %s" % (vr(t1), vr(t1)))
    e("v_lshl_add_u32 %s, %s, 10, %s" % (vr(vx0), vr(t0), vr(t1)))
    e("s_lshl_b32 s%d, s%d, 16" % (s_t, s_rb))
    e("v_add_u32 %s, s%d, %s" % (vr(vx0), s_t, vr(vx0)))
    e("v_xor_b32 %s, 64, %s" % (vr(vx1), vr(vx0)))
    e("v_add_u32 %s, %d, %s" % (vr(vx1), 8192 - 1024, vr(vx1)))
    e("v_bfe_u32 %s, v0, 4, 1" % vr(t1))
    e("v_lshlrev_b32 %s, 1, %s" % (vr(t1), vr(t1)))
    e("v_xor_b32 %s, %s, %s" % (vr(t1), vr(t1), vr(t2)))
    e("v_lshlrev_b32 %s, 4, %s" % (vr(t3), vr(t1)))
    e("v_mul_u32_u24 %s, 3072, %s" % (vr(vw0), vr(t0)))
    e("s_lshl_b32 s%d, s%d, 7" % (s_t, s_cg))
    e("v_add3_u32 %s, %s, %s, s%d" % (vr(vw0), vr(vw0), vr(t3), s_t))
    e("v_xor_b32 %s, 64, %s" % (vr(vw1), vr(vw0)))
    e("v_add_u32 %s, %d, %s" % (vr(vw1), 8 * 3072, vr(vw1)))
    e("v_and_b32 %s, 63, v0" % vr(l128))
    e("v_lshlrev_b32 %s, 4, %s" % (vr(l16), vr(l128)))
    e("s_lshl_b32 s%d, s%d, 11" % (s_m0x, s_w))
    e("s_lshl_b32 s%d, s%d, 12" % (s_m0w, s_w))
    e("s_add_u32 s%d, s%d, %d" % (s_m0w, s_m0w, L_RING + 8192))
    for c in range(8):
        e("s_add_u32 s%d, s%d, %d" % (s_t, s_ph, c))
        e("s_and_b32 s%d, s%d, 7" % (s_t, s_t))
        if c == 0:
            e("s_lshl_b32 s%d, s%d, 7" % (s_ox, s_t))
        e("s_mul_i32 s%d, s%d, %d" % (s_c[c], s_t, 64 * 3072))
    for r in range(4):
        e("v_mov_b32 %s, 0" % vr(ones + r))
    NZ = opt("nz", 32)
    s_zf = s_a[0]
    e("s_cmp_ge_u32 s2, %d" % NZ)
    e("s_cselect_b32 s%d, 1, 0" % s_zf)
    e("s_xor_b32 s%d, s%d, 3" % (s_t, s_w))
    e("s_or_b32 s%d, s%d, s%d" % (s_zf, s_zf, s_t))
    e("s_waitcnt lgkmcnt(0)")
    k.stamp("karg")

    def zero_fa():
        e("s_cmp_lg_u32 s%d, 0" % s_zf)
        e("s_cbranch_scc1 L_nz")
        e("s_mul_i32 s%d, s2, %d" % (s_t, 131072 // NZ))
        e("s_add_u32 s%d, s%d, 0x%x" % (s_t, s_t, WS_FA))
        for q in range(128 // NZ):
            e("buffer_store_dwordx4 %s, %s, %s, s%d offen offset:%d sc1 ;@cond" % (vr(ones, 4), vr(l16), sr(SWS, 4), s_t, (q & 3) * 1024))
            if q & 3 == 3:
                e("s_add_u32 s%d, s%d, 4096" % (s_t, s_t))
        e("L_nz:")

    def dma_x(c, tg):
        base = L_RING - 8192 if c == 0 else L_RING + ((c - 1) % 3) * SLOT
        pre = []
        if c:
            pre += ["s_add_u32 s%d, s%d, 128" % (s_ox, s_ox), "s_and_b32 s%d, s%d, 0x3ff" % (s_ox, s_ox)]
        pre.append("s_add_u32 m0, s%d, %d" % (s_m0x, base))
        return [(pre, "buffer_load_dwordx4 %s, %s, s%d offen lds ;@%s" % (vr(vx0), sr(SX, 4), s_ox, tg)),
                ([], "buffer_load_dwordx4 %s, %s, s%d offen offset:1024 lds ;@%s" % (vr(vx1), sr(SX, 4), s_ox, tg))]

    def dma_w(c, tg):
        o = []
        for uu, vw in enumerate((vw0, vw1)):
            pre = ["s_add_u32 m0, s%d, %d" % (s_m0w, (c % 3) * SLOT + uu * 2048 - 1024)]
            for sg in range(2):
                o.append((pre, "buffer_load_dwordx4 %s, %s, s%d offen offset:%d lds ;@%s" % (vr(vw), sr(SWQ, 4), s_c[c], 1024 + sg * 1024, tg)))
                pre = []
        return o

    def dma(c):
        tg = "c%d" % c
        o = dma_x(0, tg) if c == 0 else []
        o += dma_w(c, tg)
        if c < 7:
            o += dma_x(c + 1, tg)
        return o

    WQ = []
    for c in range(8):
        for uu, vw in enumerate((vw0, vw1)):
            WQ.append((["s_add_u32 m0, s%d, %d" % (s_m0x, c * 8192 + uu * 1024)],
                       "buffer_load_dwordx4 %s, %s, s%d offen lds ;@wq" % (vr(vw), sr(SWQ, 4), s_c[c])))

    if opt("zfirst", 1):
        zero_fa()
    e(flat(dma(0)))
    if opt("f0", 0):
        k.stamp("d0")
    if not opt("zfirst", 1):
        zero_fa()
    e("s_bfe_u32 s%d, s2, 0x20003" % s_r)
    e("s_and_b32 s%d, s2, 7" % s_rb2)
    if opt("rx", 0):
        e("s_xor_b32 s%d, s%d, %d" % (s_rb2, s_rb2, opt("rx", 0)))
    e("s_lshl_b32 s%d, s%d, 2" % (s_rb2, s_rb2))
    e("s_add_u32 s%d, s%d, s%d" % (s_rb2, s_rb2, s_r))
    e("s_lshr_b32 s%d, s2, 5" % s_cb)
    if opt("cx", 0):
        e("s_xor_b32 s%d, s%d, %d" % (s_cb, s_cb, opt("cx", 0)))
    e("s_bfe_u32 s%d, s2, 0x20001" % s_g3)
    e("s_lshl_b32 s%d, s%d, 2" % (s_g3, s_g3))
    e("s_add_u32 s%d, s%d, s%d" % (s_g3, s_g3, s_r))
    e("s_and_b32 s%d, s2, 1" % s_cb3)
    e("s_lshl_b32 s%d, s%d, 3" % (s_cb3, s_cb3))
    e("s_add_u32 s%d, s%d, s%d" % (s_cb3, s_cb3, s_cb))
    s_wt = 1
    if opt("ow", 0):
        e("s_lshr_b32 s%d, s%d, %d" % (s_wt, s_cb, opt("ow", 0) - 1))
        e("s_xor_b32 s%d, s%d, s%d" % (s_wt, s_wt, s_w))
        e("s_and_b32 s%d, s%d, 3" % (s_wt, s_wt))
    else:
        e("s_mov_b32 s%d, s%d" % (s_wt, s_w))
    if not opt("rot", 1):
        e("s_mov_b32 s%d, 0" % s_r)
    if opt("rot", 1) == 2:
        e("s_xor_b32 s%d, s%d, s%d" % (s_r, s_r, s_cb))
        e("s_and_b32 s%d, s%d, 3" % (s_r, s_r))
    e("s_lshl_b32 s%d, s%d, 2" % (s_t, s_rb2))
    e("s_add_u32 s%d, s%d, s%d" % (s_t, s_t, s_w))
    e("s_lshl_b32 s%d, s%d, 3" % (s_t, s_t))
    e("s_add_u32 s%d, s%d, s%d" % (s_t, s_t, s_cb))
    e("s_lshl_b32 s%d, s%d, 7" % (s_t, s_t))
    e("s_add_u32 s%d, s%d, 0x%x" % (s_t, s_t, WS_ST))
    e("s_lshl_b32 s%d, s%d, 2" % (s_t2, s_g3))
    e("s_add_u32 s%d, s%d, s%d" % (s_t2, s_t2, s_w))
    e("s_lshl_b32 s%d, s%d, 4" % (s_t2, s_t2))
    e("s_add_u32 s%d, s%d, s%d" % (s_t2, s_t2, s_cb3))
    e("s_lshl_b32 s%d, s%d, 7" % (s_t2, s_t2))
    e("s_add_u32 s%d, s%d, 0x%x" % (s_t2, s_t2, WS_FD - FDS))
    e("v_add_u32 %s, s%d, %s" % (vr(t0), s_t, vr(l16)))
    e("v_lshrrev_b32 %s, 3, %s" % (vr(t1), vr(l128)))
    e("v_lshl_add_u32 %s, %s, 17, s%d" % (vr(t1), vr(t1), s_t2))
    e("v_lshl_add_u32 %s, %s, 4, %s" % (vr(t1), vr(t2), vr(t1)))
    e("v_cmp_gt_u32 vcc, 8, %s" % vr(l128))
    e("v_cndmask_b32 %s, %s, %s, vcc" % (vr(t0), vr(t1), vr(t0)))
    e("s_mov_b64 exec, 0xffffff" if NFD == 2 else "s_mov_b32 exec_hi, 0")
    e("buffer_store_dwordx4 %s, %s, %s, 0 offen sc1" % (vr(ones, 4), vr(t0), sr(SWS, 4)))
    e("s_mov_b64 exec, -1")
    k.stamp("dma_issued")

    def smpf(mask):
        o = ["s_lshl2_add_u32 s%d, s2, s%d" % (s_t, s_w), "s_mul_i32 s%d, s%d, 1792" % (s_t2, s_t), "s_lshl_b32 s%d, s%d, 9" % (s_t, s_t)]
        for bit, srd, so, n in ((2, SWO, s_t, 2), (4, SW1, s_t2, 7), (8, SW2, s_t2, 7)):
            if mask & bit:
                o += ["s_buffer_load_dwordx2 s[0:1], %s, s%d offset:%d" % (sr(srd, 4), so, 256 * i + 124) for i in range(n)]
        return o if mask else []
    if opt("spp", 0) == 2:
        k.flush()
        e(smpf(opt("sp", 0)))
    vM4 = k.alloc()
    e("v_min_u32 %s, 13, %s" % (vr(vM14), vr(l128)))
    e("v_lshlrev_b32 %s, 7, %s" % (vr(vM14), vr(vM14)))
    e("v_min_u32 %s, 0x180, %s" % (vr(vM4), vr(vM14)))
    e("s_lshl_b32 s%d, s2, 2" % s_t)
    e("s_add_u32 s%d, s%d, s%d" % (s_t, s_t, s_w))
    e("s_mul_i32 s%d, s%d, 1792" % (s_t2, s_t))
    e("v_add_u32 %s, s%d, %s" % (vr(vM14), s_t2, vr(vM14)))
    e("s_lshl_b32 s%d, s%d, 9" % (s_t2, s_t))
    e("v_add_u32 %s, s%d, %s" % (vr(vM4), s_t2, vr(vM4)))
    vMq = k.alloc()
    e("s_lshr_b32 s%d, s%d, 1" % (s_t, s_t))
    e("s_lshl_b32 s%d, s%d, 11" % (s_t, s_t))
    e("v_add_u32 %s, s%d, %s" % (vr(vMq), s_t, vr(vM4)))

    def mall(mask):
        o = []
        for bit, va_, srd in ((1, vMq, SWQ), (2, vM4, SWO), (4, vM14, SW1), (8, vM14, SW2)):
            if mask & bit:
                o.append(([], "buffer_load_dword %s, %s, %s, 0 offen" % (vr(vMd), vr(va_), sr(srd, 4))))
        if mask & 128:
            o.append((["v_min_u32 %s, 880, %s" % (vr(vMe), vr(l16)), "v_mul_u32_u24 %s, 37, %s" % (vr(vMd), vr(vMe)),
                       "v_lshrrev_b32 %s, 13, %s" % (vr(vMd), vr(vMd)), "v_mul_u32_u24 %s, 1792, %s" % (vr(vMd), vr(vMd)),
                       "v_lshl_add_u32 %s, %s, 3, %s" % (vr(vMe), vr(vMe), vr(vMd))],
                      "\n".join(["s_lshr_b32 s99, s2, 3", "s_lshl2_add_u32 s99, s99, s%d" % s_w, "s_lshl_b32 s99, s99, 3", "s_and_b32 s100, s2, 1",
                                 "s_add_u32 s99, s99, s100", "s_mul_i32 s99, s99, 1792",
                                 "buffer_load_dword %s, %s, %s, s99 offen" % (vr(vMd), vr(vMe), sr(SW1, 4))])))
        if mask & 256:
            o.append((["v_min_u32 %s, 496, %s" % (vr(vMe), vr(l16)), "v_lshlrev_b32 %s, 3, %s" % (vr(vMe), vr(vMe))],
                      "\n".join(["s_lshr_b32 s99, s2, 3", "s_lshl2_add_u32 s99, s99, s%d" % s_w, "s_lshl_b32 s99, s99, 12",
                                 "buffer_load_dword %s, %s, %s, s99 offen" % (vr(vMd), vr(vMe), sr(SWO, 4))])))
        for hb in range(2):
            if mask & (512 << hb):
                o.append((["v_min_u32 %s, 880, %s" % (vr(vMe), vr(l16)), "v_lshlrev_b32 %s, 3, %s" % (vr(vMe), vr(vMe))],
                          "\n".join(["s_lshr_b32 s99, s2, 3", "s_lshl2_add_u32 s99, s99, s%d" % s_w, "s_mul_i32 s99, s99, 14336", "s_add_u32 s99, s99, %d" % (7168 * hb),
                                     "buffer_load_dword %s, %s, %s, s99 offen" % (vr(vMd), vr(vMe), sr(SW2, 4))])))
        if mask & 32:
            o.append((["v_lshlrev_b32 %s, 16, %s" % (vr(vMd), vr(l16))], "s_mov_b64 exec, 0xffff\nbuffer_load_dword %s, %s, %s, 0 offen\ns_mov_b64 exec, -1" % (vr(vMd), vr(vMd), sr(SWS, 4))))
        if mask & 64:
            for srd in (SOUT, SW1, SW2):
                o.append((["v_lshlrev_b32 %s, 16, %s" % (vr(vMq), vr(l16))], "s_mov_b64 exec, 3\nbuffer_load_dword %s, %s, %s, 0 offen\ns_mov_b64 exec, -1" % (vr(vMd), vr(vMq), sr(srd, 4))))
        if mask & 16:
            o.append((["s_mul_i32 s%d, s%d, 224" % (s_w1b, s_cb3)], "s_mov_b64 exec, 0x2101\nbuffer_load_dword %s, %s, %s, s%d offen\ns_mov_b64 exec, -1" % (vr(vMd), vr(l16), sr(SB1, 4), s_w1b)))
        return o
    e(flat(mall(opt("m0", 0))))
    e("v_lshlrev_b32 %s, 7, %s" % (vr(l128), vr(l128)))
    e("v_mov_b32 %s, 1" % vr(vone))
    for r in range(4):
        e("v_mov_b32 %s, 0x3f803f80" % vr(ones + r))
    g, i15 = k.alloc(), k.alloc()
    xa = [[k.alloc(), k.alloc()] for _ in range(4)]
    wa = k.alloc()
    qa = k.alloc()
    VO = k.alloc(4)
    TO = k.alloc(4)
    vOS = k.alloc(2)
    e("v_bfe_u32 %s, v0, 4, 2" % vr(g))
    e("v_and_b32 %s, 15, v0" % vr(i15))
    e("v_bfe_u32 %s, v0, 3, 3" % vr(t1))
    e("v_lshl_add_u32 %s, %s, 10, %s" % (vr(VO), vr(t1), vr(t3)))
    e("v_xor_b32 %s, 64, %s" % (vr(t3), vr(VO)))
    e("v_add_u32 %s, %d, %s" % (vr(VO + 1), 7168, vr(t3)))
    e("v_add_u32 %s, %d, %s" % (vr(VO + 2), 2 * 7168, vr(VO)))
    e("v_add_u32 %s, %d, %s" % (vr(VO + 3), 3 * 7168, vr(t3)))
    e("v_lshlrev_b32 %s, 1, %s" % (vr(t0), vr(g)))
    e("v_and_b32 %s, 7, v0" % vr(t2))
    e("v_xor_b32 %s, %s, %s" % (vr(t0), vr(t0), vr(t2)))
    e("v_lshlrev_b32 %s, 4, %s" % (vr(t0), vr(t0)))
    e("v_lshl_add_u32 %s, %s, 10, %s" % (vr(VD), vr(t1), vr(t0)))
    for i in range(1, 4):
        e("v_add_u32 %s, %d, %s" % (vr(VD + i), i * (8192 - 1024), vr(VD)))
    e("v_lshrrev_b32 %s, 1, %s" % (vr(t0), vr(i15)))
    e("v_xor_b32 %s, %s, %s" % (vr(t0), vr(t0), vr(g)))
    e("v_lshlrev_b32 %s, 4, %s" % (vr(t0), vr(t0)))
    e("v_lshl_add_u32 %s, %s, 7, %s" % (vr(t0), vr(i15), vr(t0)))
    for u in range(4):
        e("s_add_u32 s%d, s%d, %d" % (s_t, s_w, u))
        e("s_and_b32 s%d, s%d, 3" % (s_b[u], s_t))
        e("s_lshl_b32 s%d, s%d, 11" % (s_t, s_b[u]))
        e("s_add_u32 s%d, s%d, %d" % (s_t, s_t, L_RING - 8192))
        e("v_add_u32 %s, s%d, %s" % (vr(xa[u][0]), s_t, vr(t0)))
        e("v_xor_b32 %s, 64, %s" % (vr(xa[u][1]), vr(xa[u][0])))
    e("v_lshrrev_b32 %s, 1, %s" % (vr(t0), vr(g)))
    e("v_lshlrev_b32 %s, 8, %s" % (vr(t0), vr(t0)))
    e("v_lshl_add_u32 %s, %s, 4, %s" % (vr(t0), vr(i15), vr(t0)))
    e("v_and_b32 %s, 1, %s" % (vr(t1), vr(g)))
    e("v_cmp_eq_u32 vcc, 1, %s" % vr(t1))
    for P in range(2):
        e("v_mov_b32 %s, s%d" % (vr(t1), s_b[2 * P]))
        e("v_mov_b32 %s, s%d" % (vr(t2), s_b[2 * P + 1]))
        e("v_cndmask_b32 %s, %s, %s, vcc" % (vr(t1), vr(t1), vr(t2)))
        e("v_lshl_add_u32 %s, %s, 14, %s" % (vr(vOS + P), vr(t1), vr(t0)))
    e("v_bfe_u32 %s, v0, 3, 2" % vr(t0))
    e("v_lshlrev_b32 %s, 5, %s" % (vr(t0), vr(t0)))
    e("v_and_b32 %s, 3, v0" % vr(t1))
    e("v_lshl_add_u32 %s, %s, 3, %s" % (vr(t0), vr(t1), vr(t0)))
    e("v_bfe_u32 %s, v0, 2, 2" % vr(t1))
    e("v_lshl_add_u32 %s, %s, 7, %s" % (vr(t0), vr(t1), vr(t0)))
    e("v_lshl_add_u32 %s, %s, 10, %s" % (vr(qa), vr(g), vr(t0)))
    e("v_add_u32 %s, %d, %s" % (vr(TO), L_WO, vr(qa)))
    for nt in range(1, 4):
        e("v_xor_b32 %s, %d, %s" % (vr(TO + nt), nt * 32, vr(TO)))
    e("s_lshl_b32 s%d, s%d, 5" % (s_t, s_w))
    e("v_xor_b32 %s, s%d, %s" % (vr(qa), s_t, vr(qa)))
    e("v_lshl_add_u32 %s, %s, 11, %s" % (vr(wa), vr(g), vr(t0)))
    e("v_xor_b32 %s, s%d, %s" % (vr(wa), s_t, vr(wa)))
    e("v_add_u32 %s, %d, %s" % (vr(wa), L_RING + 8192, vr(wa)))
    e("v_lshl_add_u32 %s, %s, 9, %s" % (vr(TA), vr(g), vr(t0)))
    e("s_lshl_b32 s%d, s%d, 13" % (s_t, s_w))
    e("s_add_u32 s%d, s%d, 65536" % (s_t, s_t))
    e("v_add_u32 %s, s%d, %s" % (vr(TA), s_t, vr(TA)))
    for nt in range(1, 4):
        e("v_xor_b32 %s, %d, %s" % (vr(TA + nt), nt * 32, vr(TA)))
    e("v_bfe_u32 %s, v0, 4, 1" % vr(t0))
    e("v_lshlrev_b32 %s, 5, %s" % (vr(t0), vr(t0)))
    e("v_bfe_u32 %s, v0, 5, 1" % vr(t1))
    e("v_lshl_add_u32 %s, %s, 4, %s" % (vr(t0), vr(t1), vr(t0)))
    e("v_lshl_add_u32 %s, %s, 10, %s" % (vr(vxo), vr(i15), vr(t0)))
    IDM = k.alloc(4, 4)
    e("v_bfe_u32 %s, v0, 4, 1" % vr(t0))
    e("v_lshlrev_b32 %s, 2, %s" % (vr(t0), vr(t0)))
    e("v_sub_u32 %s, %s, %s" % (vr(t0), vr(i15), vr(t0)))
    e("v_mov_b32 %s, 0x3f80" % vr(t1))
    e("v_mov_b32 %s, 0x3f800000" % vr(t2))
    for r, c in enumerate((0, 2, 8, 10)):
        e("v_cmp_eq_u32 vcc, %d, %s" % (c, vr(t0)))
        e("v_cndmask_b32 %s, 0, %s, vcc" % (vr(IDM + r), vr(t1)))
        e("v_cmp_eq_u32 vcc, %d, %s" % (c + 1, vr(t0)))
        e("v_cndmask_b32 %s, %s, %s, vcc" % (vr(IDM + r), vr(IDM + r), vr(t2)))
    vZ, vGZ = k.alloc(), k.alloc()
    e("v_and_b32 %s, 16, v0" % vr(vZ))
    e("v_bfe_u32 %s, v0, 5, 1" % vr(t1))
    e("v_lshl_add_u32 %s, %s, 4, %s" % (vr(t1), vr(t1), vr(i15)))
    e("v_lshl_add_u32 %s, %s, 7, %s" % (vr(vGZ), vr(t1), vr(vZ)))
    e("s_movk_i32 s%d, 3584 - 224" % s_t)
    for m in range(7):
        e("v_add_u32 %s, %d, v0" % (vr(t0), 256 * m))
        e("v_mul_u32_u24 %s, 4682, %s" % (vr(t1), vr(t0)))
        e("v_lshrrev_b32 %s, 16, %s" % (vr(t1), vr(t1)))
        e("v_lshlrev_b32 %s, 4, %s" % (vr(t0), vr(t0)))
        e("v_mad_u32_u24 %s, %s, s%d, %s" % (vr(V1 + m), vr(t1), s_t, vr(t0)))
    e("v_and_b32 %s, 3, v0" % vr(t0))
    e("v_cmp_eq_u32 s[96:97], 1, %s" % vr(t0))
    e("v_cmp_eq_u32 s[98:99], 2, %s" % vr(t0))
    e("v_cmp_eq_u32 s[100:101], 3, %s" % vr(t0))
    cst = k.alloc(2, 2)
    ceps = k.alloc(4, 4)
    e("v_mov_b32 %s, %s" % (vr(cst), f32(LN2)))
    e("v_mov_b32 %s, %s" % (vr(cst + 1), f32(1.000001)))
    for r in range(4):
        e("v_mov_b32 %s, %s" % (vr(ceps + r), f32(1e-6)))
    vS0, vsw, vsr, l4 = k.alloc(), k.alloc(), k.alloc(), k.alloc()
    e("s_lshl_b32 s%d, s%d, 6" % (s_t, s_w))
    e("s_add_u32 s%d, s%d, %d" % (s_t, s_t, L_SCR))
    e("v_lshl_add_u32 %s, %s, 2, s%d" % (vr(vsw), vr(i15), s_t))
    e("v_lshl_add_u32 %s, %s, 4, s%d" % (vr(vsr), vr(g), s_t))
    e("v_lshlrev_b32 %s, %d, %s" % (vr(l4), {64: 2, 32: 3, 16: 4, 8: 5}[NZ], vr(l16)))
    e("v_lshrrev_b32 %s, 4, %s" % (vr(l4), vr(l4)))
    s_hd, s_pa, s_fa = s_a[1], s_a[2], s_a[3]
    e("s_lshl_b32 s%d, s%d, 2" % (s_hd, s_cg))
    e("s_add_u32 s%d, s%d, s%d" % (s_hd, s_hd, s_w))
    e("s_lshl_b32 s%d, s%d, 5" % (s_t, s_hd))
    e("s_add_u32 s%d, s%d, s%d" % (s_t, s_t, s_rb))
    e("s_lshl_b32 s%d, s%d, 9" % (s_pa, s_t))
    e("s_lshl_b32 s%d, s%d, 7" % (s_fa, s_t))
    e("s_add_u32 s%d, s%d, 0x%x" % (s_fa, s_fa, WS_FA))
    PZ_ = opt("pz", 0)
    if PZ_:
        e("s_lshl_b32 s%d, s%d, 16" % (s_b[0], s_rb))
        e("s_lshl_b32 s%d, s%d, 9" % (s_t, s_hd))
        e("s_add_u32 s%d, s%d, s%d" % (s_b[0], s_b[0], s_t))
        e("s_add_u32 s%d, s%d, 0x%x" % (s_b[0], s_b[0], WS_O))
        for r in range(4):
            e("v_mov_b32 %s, -1" % vr(HB + r))
    pzs = ["buffer_store_dwordx4 %s, %s, %s, s%d offen sc1" % (vr(HB, 4), vr(vOS + P), sr(SWS, 4), s_b[0]) for P in range(2)] if PZ_ else []
    PZI = opt("pzi", 8)
    e("s_lshl_b32 s%d, s%d, 7" % (s_t, s_cb))
    e("s_lshl_b32 s%d, s%d, 17" % (s_wob, s_r))
    e("s_lshl_b32 s%d, s%d, 15" % (s_t2, s_w))
    e("s_add_u32 s%d, s%d, s%d" % (s_wob, s_wob, s_t2))
    e("s_add_u32 s%d, s%d, s%d" % (s_wob, s_wob, s_t))
    e("s_lshl_b32 s%d, s%d, 16" % (s_xo, s_rb2))
    e("s_lshl_b32 s%d, s%d, 14" % (s_t2, s_wt))
    e("s_add_u32 s%d, s%d, s%d" % (s_xo, s_xo, s_t2))
    e("s_add_u32 s%d, s%d, s%d" % (s_xo, s_xo, s_t))
    e("s_mul_i32 s%d, s%d, 224" % (s_w1b, s_cb3))
    P1BASE = k.nv
    ak = k.alloc(16, 4)
    av = k.alloc(16, 4)
    stq, sts = k.alloc(4, 4), k.alloc(4, 4)
    NM = k.alloc(16, 4)
    RL = k.alloc(16, 4)
    WB3 = [k.alloc(8, 4) for _ in range(3)]
    cs = k.alloc(8, 4)
    QN = k.alloc(8, 2)
    tm = k.alloc(8, 2)

    def XS(u, n):
        return A0 + 64 * u + 4 * n

    def rd_w(n):
        so = ((n >> 1) % 3) * SLOT + (n & 1) * 8192
        return ["ds_read_b64_tr_b16 %s, %s offset:%d ;@w%d" % (vr(WB3[n % 3] + sg * 4 + hf * 2, 2), vr(wa), so + sg * 1024 + hf * 512, n)
                for sg in range(2) for hf in range(2)]

    def rd_x(u, n):
        c = n >> 1
        so = 0 if c == 0 else 8192 + ((c - 1) % 3) * SLOT
        return "ds_read_b128 %s, %s offset:%d ;@x%d_%d" % (vr(XS(u, n), 4), vr(xa[u][n & 1]), so, u, n)

    def mf_cs(n):
        z = "0" if n == 0 else None
        return [mfma32(cs + 0, ones, WB3[n % 3] + 0, z), mfma32(cs + 4, ones, WB3[n % 3] + 4, z)]

    def mf_main(n, u):
        z = "0" if n == 0 else None
        return [mfma32(ak + 4 * u, XS(u, n), WB3[n % 3] + 0, z), mfma32(av + 4 * u, XS(u, n), WB3[n % 3] + 4, z)]

    def mf(n):
        return mf_cs(n) + sum([mf_main(n, u) for u in range(4)], [])

    def mf_st(n):
        z = "0" if n == 0 else None
        return [mfma32(stq, XS(0, n), XS(0, n), z), mfma32(sts, ones, XS(0, n), z)]

    if opt("f0", 0):
        k.stamp("su0")
    if opt("spp", 0) != 2:
        k.flush()
    if opt("spp", 0) == 0:
        e(smpf(opt("sp", 0)))
    if PZI == 11:
        e(pzs)
    e(flat(dma(1)))
    if PZI == 10:
        e(pzs)
    if opt("spp", 0) == 1:
        e(smpf(opt("sp", 0)))
    e(flat(mall(opt("m1", 0))))
    k.stamp("g1_issued")
    wq = list(WQ)
    ZIT = opt("zit", 5)
    arrive = "\n".join(["s_cmp_lg_u32 s%d, 0" % s_zf, "s_cbranch_scc1 L_nz2", "s_mul_i32 s%d, s2, %d" % (s_t, 256 // NZ), "s_mov_b64 exec, 1",
                        "buffer_store_dword %s, off, %s, s%d sc1 ;@cond" % (vr(vone), sr(SDB, 4), s_t), "s_mov_b64 exec, -1", "L_nz2:"])
    for it in range(8):
        e("WAITVM c%d" % it)
        if it == 0 and opt("f0", 0):
            k.stamp("c0w")
        e("s_barrier")
        if it in (0, 1, 4, 7):
            k.stamp("it%d" % it)
        extra = dma(it + 2) if it + 2 < 8 else []
        if it == 5:
            extra = extra + mall(opt("m5", 0))
        if it == 0:
            e(rd_w(0) + [rd_x(u, 0) for u in range(4)] + [rd_x(0, 1), rd_x(0, 2), rd_x(0, 3)])
            e(flat(extra[:1]))
            m = mf(0) + mf_st(0) + mf_st(1) + mf_st(2) + mf_st(3)
            m[0] = "WAITLG w0\n" + m[0]
            m[2] = "WAITLG x1_0\n" + m[2]
            m[6] = "WAITLG x0_3\n" + m[6]
            W = Weave(m)
            W.every(extra[1:], 2, 3)
            if PZI == 0:
                W.at(18, pzs)
            W.fill(rd_w(1) + [rd_x(u, 1) for u in range(1, 4)] + [rd_x(u, n) for n in (2, 3) for u in range(1, 4)], 1, cap=2)
            e(W.out())
            e("s_waitcnt lgkmcnt(0)")
        elif it < 7:
            n = 2 * it
            sp = 10 if it < 6 else 5
            m = mf(n - 1)[:sp] + mf_st(n + 2) + mf_st(n + 3) + mf(n - 1)[sp:] + mf(n)
            m[sp] = "WAITLG x0_%d\n" % (n + 3) + m[sp]
            if it == 6:
                m[14] = "WAITLG w%d\n" % n + m[14]
            W = Weave(m)
            if it == ZIT:
                W.at(16 if it == 5 else 24, arrive)
            if it >= 5:
                c = max(0, 6 - len(extra))
                extra = extra + wq[:c]
                wq = wq[c:]
            left = W.every(extra, 2, 4)
            W.at(24, flat(left))
            if it == PZI:
                W.at(24, pzs)
            rs = rd_w(n) + [rd_x(0, n + 2), rd_x(0, n + 3)] + rd_w(n + 1) + [rd_x(u, nn) for nn in (n + 2, n + 3) for u in range(1, 4)]
            if it == 6:
                rs = rs[4:6] + rs[:4] + rs[6:]
            W.at(0, rs[:2])
            if it < 6:
                W.fill(rs[2:], 1, cap=opt("p1cap", 2))
            else:
                W.fill(rs[2:], 1, cap=2)
                sm = ["v_cndmask_b32 %s, %s, %s, s[96:97]" % (vr(t0), vr(stq), vr(stq + 1)),
                      "v_cndmask_b32 %s, %s, %s, s[98:99]" % (vr(t0), vr(t0), vr(stq + 2)),
                      "v_cndmask_b32 %s, %s, %s, s[100:101]" % (vr(t0), vr(t0), vr(stq + 3)),
                      "v_mul_f32 %s, %s, %s" % (vr(t1), f32(-1.0 / 512), vr(sts)),
                      "v_mul_f32 %s, %s, %s" % (vr(t0), f32(1.0 / 512), vr(t0)),
                      "v_fma_f32 %s, -%s, %s, %s" % (vr(t0), vr(t1), vr(t1), vr(t0)),
                      "v_max_f32 %s, 0, %s" % (vr(t0), vr(t0)),
                      "v_add_f32 %s, %s, %s" % (vr(t0), f32(1e-5), vr(t0)),
                      "v_rsq_f32 %s, %s" % (vr(t0), vr(t0)),
                      "s_nop 0",
                      "v_mul_f32 %s, %s, %s" % (vr(t0), f32(LOG2E), vr(t0)),
                      "\n".join(["s_mov_b32 exec_lo, 0x00f0000f", "s_mov_b32 exec_hi, 0xf0000f00",
                                 "ds_write2st64_b32 %s, %s, %s offset0:0 offset1:1" % (vr(vsw), vr(t1), vr(t1)),
                                 "ds_write2st64_b32 %s, %s, %s offset0:2 offset1:3" % (vr(vsw), vr(t0), vr(t0)),
                                 "s_mov_b64 exec, -1"])]
                W.fill(sm, 12, cap=3, stop=19)
            e(W.out())
            e("s_waitcnt lgkmcnt(0)")
        else:
            m = mf(13) + mf_cs(14) + mf_cs(15)
            for u in range(4):
                m += mf_main(14, u) + mf_main(15, u)
            m[10] = "WAITLG w15\n" + m[10]
            W = Weave(m)
            wq = W.every(wq + [([], "buffer_load_dword %s, %s, %s, 0 offen sc1 ;@s0" % (vr(vS0), vr(l4), sr(SDB, 4)))], 1, opt("wq7", 3))
            W.at(30, flat(wq))
            if PZI == 7:
                W.at(30, pzs)
            rs = rd_w(14) + rd_w(15)
            for u in range(4):
                rs.append("ds_read_b128 %s, %s offset:%d" % (vr(NM + 4 * u, 4), vr(vsr), u * 64))
                rs.append("ds_read_b128 %s, %s offset:%d" % (vr(RL + 4 * u, 4), vr(vsr), 512 + u * 64))
            for u in range(4):
                rs.append("ds_read2_b32 %s, %s offset0:%d offset1:%d" % (vr(QN + 2 * u, 2), vr(vsw), 16 * u, 128 + 16 * u))
            W.at(0, rs[:2])
            W.fill(rs[2:], 1, cap=2)
            e(W.out())
    e("s_waitcnt lgkmcnt(0)")
    k.stamp("loop_end")
    if PZI == 8:
        e(pzs)

    def phi(a, dst, alt=0, keep=None):
        E = tm + 4 * alt
        U = tm + 4 * alt + 2 if keep is None else keep
        e("v_exp_f32_e64 %s, %s clamp" % (vr(E), vr(a)))
        e("v_exp_f32_e64 %s, %s clamp" % (vr(E + 1), vr(a + 1)))
        e("v_pk_fma_f32 %s, %s, %s, %s op_sel:[0,0,1] op_sel_hi:[1,0,1]" % (vr(U, 2), vr(a, 2), vr(cst, 2), vr(cst, 2)))
        e("v_pk_add_f32 %s, %s, %s" % (vr(E, 2), vr(E, 2), vr(ceps, 2)))
        e("v_max_f32 %s, %s, %s" % (vr(U), vr(U), vr(E)))
        e("v_max_f32 %s, %s, %s" % (vr(U + 1), vr(U + 1), vr(E + 1)))
        e("v_cvt_pk_bf16_f32 %s, %s, %s" % (vr(dst), vr(U), vr(U + 1)))

    kv, zz = stq, sts
    PK = k.alloc(8, 4)
    PV = WB3[1]
    for u in range(4):
        for hp in range(2):
            o = 4 * u + 2 * hp
            e("v_pk_fma_f32 %s, %s, %s, %s" % (vr(ak + o, 2), vr(NM + o, 2), vr(cs + 0, 2), vr(ak + o, 2)))
            e("v_pk_fma_f32 %s, %s, %s, %s" % (vr(av + o, 2), vr(NM + o, 2), vr(cs + 4, 2), vr(av + o, 2)))
            e("v_pk_mul_f32 %s, %s, %s" % (vr(ak + o, 2), vr(ak + o, 2), vr(RL + o, 2)))
            e("v_pk_mul_f32 %s, %s, %s" % (vr(av + o, 2), vr(av + o, 2), vr(RL + o, 2)))
            e("v_cvt_pk_bf16_f32 %s, %s, %s" % (vr(PV + 2 * u + hp), vr(av + o), vr(av + o + 1)))
            if u == 3 and hp == 1:
                E, U, a = tm + 4, tm + 6, ak + o
                e("v_exp_f32_e64 %s, %s clamp" % (vr(E), vr(a)))
                e("v_exp_f32_e64 %s, %s clamp" % (vr(E + 1), vr(a + 1)))
                e("v_pk_fma_f32 %s, %s, %s, %s op_sel:[0,0,1] op_sel_hi:[1,0,1]" % (vr(U, 2), vr(a, 2), vr(cst, 2), vr(cst, 2)))
                e("v_pk_add_f32 %s, %s, %s" % (vr(E, 2), vr(E, 2), vr(ceps, 2)))
                e(mfma32(kv, PK, PV, "0"))
                e("v_max_f32 %s, %s, %s" % (vr(U), vr(U), vr(E)))
                e("v_max_f32 %s, %s, %s" % (vr(U + 1), vr(U + 1), vr(E + 1)))
                e("v_cvt_pk_bf16_f32 %s, %s, %s" % (vr(PK + 7), vr(U), vr(U + 1)))
            else:
                phi(ak + o, PK + 2 * u + hp, hp)
    e(mfma32(kv, PK + 4, PV + 4))
    e(mfma32(zz, PK, ones, "0"))
    e(mfma32(zz, PK + 4, ones))
    PR = NM
    PZ = NM + 4
    e("v_cvt_pk_bf16_f32 %s, %s, %s" % (vr(PR), vr(kv), vr(kv + 1)))
    e("v_cvt_pk_bf16_f32 %s, %s, %s" % (vr(PR + 1), vr(kv + 2), vr(kv + 3)))
    e("v_permlane32_swap_b32 %s, %s" % (vr(PR), vr(PR + 2)))
    e("v_permlane32_swap_b32 %s, %s" % (vr(PR + 1), vr(PR + 3)))
    e("s_mov_b32 exec_hi, 0")
    e("buffer_store_dwordx4 %s, %s, %s, s%d offen sc1 ;@part" % (vr(PR, 4), vr(l16), sr(SWS, 4), s_pa))
    e("s_mov_b64 exec, -1")
    k.stamp("part_st")
    e("v_cvt_pk_bf16_f32 %s, %s, %s" % (vr(PZ), vr(zz), vr(zz + 1)))
    e("v_cvt_pk_bf16_f32 %s, %s, %s" % (vr(PZ + 1), vr(zz + 2), vr(zz + 3)))
    e("v_permlane32_swap_b32 %s, %s" % (vr(PZ), vr(PZ + 2)))
    e("v_permlane32_swap_b32 %s, %s" % (vr(PZ + 1), vr(PZ + 3)))

    npoll = [0]

    def setexec(lanes, e=e):
        if lanes < 64:
            e("s_mov_b64 exec, 0x%x" % ((1 << lanes) - 1) if lanes < 32 else "s_mov_b32 exec_hi, 0")

    def poll(voff, lanes, srd, soff, first=None, dst=vP, wide=False, imm=0, e=e):
        n = npoll[0]
        npoll[0] += 1
        setexec(lanes, e)
        e("s_mov_b32 s%d, %d" % (s_to, 20000 if FINE else TIMEOUT))
        if first is not None:
            e("v_cmp_eq_u32 vcc, 0, %s" % vr(first))
            e("s_cbranch_vccz L_ok%d" % n)
        e("L_poll%d:" % n)
        e(poll_load(voff, srd, soff, dst, wide, imm) + " ;@cond")
        e("s_waitcnt vmcnt(0)")
        e("v_cmp_eq_u32 vcc, 0, %s" % vr(dst))
        e("s_cbranch_vccz L_ok%d" % n)
        e("s_sub_u32 s%d, s%d, 1" % (s_to, s_to))
        e("s_cbranch_scc0 L_poll%d" % n)
        e("L_ok%d:" % n)
        if lanes < 64:
            e("s_mov_b64 exec, -1")

    def poll_load(voff, srd, soff, dst, wide=False, imm=0):
        return "buffer_load_dword%s %s, %s, %s, %s offen offset:%d sc1" % ("x4" if wide else "", vr(dst, 4 if wide else 1), vr(voff), sr(srd, 4), soff, imm)

    def flag(soff, wait, imm=0):
        return "\n".join(["WAITVM " + wait, "s_mov_b64 exec, 1",
                          "buffer_store_dword %s, off, %s, s%d offset:%d sc1" % (vr(vone), sr(SWS, 4), soff, imm),
                          "s_mov_b64 exec, -1"])

    e("WAITVM wq")
    s0t = []
    poll(l4, NZ, SDB, "0", first=vS0, e=s0t.append)
    e("s_barrier")
    k.stamp("wq_bar")
    aq = ak
    csq = cs
    QF = RL

    def qreads(n):
        return ["ds_read_b64_tr_b16 %s, %s offset:%d ;@q%d" % (vr(QF + 4 * (n & 3) + 2 * hf, 2), vr(qa), n * 4096 + hf * 512, n)
                for hf in range(2)]

    def wo_dma(p):
        pre = ["s_xor_b32 s%d, s%d, 0x%x" % (s_t2, s_wob, p << 17), "s_add_u32 m0, s%d, %d" % (s_m0w, L_WO + p * 16384 - (L_RING + 8192))]
        o = []
        for i in range(4):
            o.append((pre, "buffer_load_dwordx4 %s, %s, s%d offen offset:%d lds ;@wo" % (vr(VO + i), sr(SWO, 4), s_t2, i * 1024)))
            pre = []
        return o

    s_w1m = s_m0x
    s_w1g = s_c[0:4]

    def w1_dma(p):
        return [(["s_add_u32 m0, s%d, %d" % (s_w1m, L_W1[p] + m * 4096)],
                 "buffer_load_dwordx4 %s, %s, s%d offen lds ;@w1g%d" % (vr(V1 + m), sr(SW1, 4), s_w1g[p], p)) for m in range(7)]

    e(qreads(0) + qreads(1) + qreads(2))
    e("s_lshl_b32 s%d, s%d, 10" % (s_w1m, s_w))
    for p in range(4):
        e("s_xor_b32 s%d, s%d, %d" % (s_t, s_r, p))
        e("s_mul_i32 s%d, s%d, %d" % (s_t, s_t, 128 * 3584))
        e("s_add_u32 s%d, s%d, s%d" % (s_w1g[p], s_t, s_w1b))
    XR = [([], "buffer_load_dwordx4 %s, %s, %s, s%d offen offset:%d ;@x" % (vr(HB + 4 * P, 4), vr(vxo), sr(SX, 4), s_xo, P * 64)) for P in range(2)]
    W1Q = w1_dma(0) + w1_dma(1) + w1_dma(2) + w1_dma(3)
    m = []
    for n in range(16):
        z = "0" if n == 0 else None
        mm = [mfma32(aq + 4 * u, QF + 4 * (n & 3), XS(u, n), z) for u in range(4)] + [mfma32(csq, QF + 4 * (n & 3), ones, z)]
        mm[0] = "WAITLG q%d\n" % n + mm[0]
        m += mm
    W = Weave(m)
    FLA = opt("fla", 36)
    G1A = opt("g1a", 3)
    G1B = opt("g1b", 0)
    WOQ = wo_dma(0) + wo_dma(1) + wo_dma(2) + wo_dma(3)
    WOA = opt("woa", 4)
    L_BS = L_SCR + 2048
    bsl = [(["v_lshrrev_b32 %s, 2, %s" % (vr(t0), vr(l16)), "v_min_u32 %s, 220, %s" % (vr(t0), vr(t0)),
             "s_lshr_b32 s%d, s%d, 2\ns_add_u32 m0, s%d, %d" % (s_t, s_w1m, s_t, L_BS)],
            "buffer_load_dword %s, %s, s%d offen lds ;@bias" % (vr(t0), sr(SB1, 4), s_w1b))] if opt("bl", 0) == 3 else []
    pre_items = mall(opt("ma", 0)) + bsl + WOQ[:WOA] + W1Q[:G1A]
    W1Q = W1Q[G1A:]
    left = W.every(pre_items, 1, opt("g1s", 4), stop=FLA - 2)
    assert not left
    W.at(FLA, "\n".join(["WAITVM part"] + s0t + ["s_mov_b32 exec_lo, 0x00010001", "s_mov_b32 exec_hi, 0",
                         "buffer_store_dwordx4 %s, %s, %s, s%d offen sc1" % (vr(PZ, 4), vr(vZ), sr(SWS, 4), s_fa),
                         "s_mov_b64 exec, -1", k.stamp_text("flagA")]), cost=4)
    if PZI == 9:
        W.at(FLA + 1, pzs[0])
        W.at(FLA + 2, pzs[1] + " ;@pz")
    assert WOA % 4 == 0 or (G1A == 0 and G1B == 0)
    post = mall(opt("mb", 0)) + W1Q[:G1B] + XR + WOQ[WOA:]
    W1Q = W1Q[G1B:]
    QN_ = opt("qn", 99)
    post = W.every(post[:QN_], FLA + 3, opt("g1t", 4)) + post[QN_:]
    PSA = opt("psa", 99)
    GZ = WB3[1] + 64
    s_pz = 98
    samp = poll_load(vGZ, SWS, "s%d" % s_pz, GZ, True) + " ;@pa"
    W.at(3, ["s_lshl_b32 s%d, s%d, 12" % (s_pz, s_hd), "s_add_u32 s%d, s%d, 0x%x" % (s_pz, s_pz, WS_FA)])
    if PSA < 80:
        assert PSA > FLA
        W.at(PSA, samp)
    for n in range(13):
        W.at(5 * n + 2, qreads(n + 3)[0])
        W.at(5 * n + 4, qreads(n + 3)[1])
    e(W.out())
    k.stamp("q_mm")
    PQ = WB3[0]
    PQF = av
    for u in range(4):
        for hp in range(2):
            o = 4 * u + 2 * hp
            if PSA == 80 + 2 * u + hp:
                e(samp)
            e("v_pk_fma_f32 %s, %s, %s, %s op_sel_hi:[1,0,1]" % (vr(aq + o, 2), vr(csq + 2 * hp, 2), vr(QN + 2 * u, 2), vr(aq + o, 2)))
            e("v_pk_mul_f32 %s, %s, %s op_sel:[0,1] op_sel_hi:[1,1]" % (vr(aq + o, 2), vr(aq + o, 2), vr(QN + 2 * u, 2)))
            phi(aq + o, PQ + 2 * u + hp, hp, keep=PQF + o)
            if post and 2 * u + hp < opt("qe", 8):
                e(flat(post[:1]))
                post = post[1:]
    QL = opt("ql", 99)
    if PSA == 88:
        e(samp)
    e(flat(post[:QL]))
    late = post[QL:]
    k.stamp("q_epi")
    k.flush()

    def smq(pos):
        if opt("spq", -1) != pos:
            return
        e(["s_lshl2_add_u32 s99, s2, s%d" % s_w, "s_mul_i32 s99, s99, 1792"])
        e(["s_buffer_load_dwordx2 s[100:101], %s, s99 offset:%d" % (sr(SW2, 4), 256 * i + 124) for i in range(7)])
        if opt("spb", 0):
            e(["s_buffer_load_dword s100, %s, s%d offset:%d" % (sr(SB1, 4), s_w1b, o) for o in (0, 128, 220)])
    smq(0)
    k.nv = WB3[1]
    GR = k.alloc(64, 4)
    assert GZ == k.alloc(4, 4) and GZ >= PK + 8
    if PSA > 88:
        e(samp)
    XG = opt("xg", -1)
    if XG < 0:
        e("WAITVM wo")
        e("s_barrier")
    WF = A0
    wr = ["ds_read_b64_tr_b16 %s, %s offset:%d" % (vr(WF + 16 * ks + 4 * nt + 2 * hf, 2), vr(TO + nt), ks * 4096 + hf * 512)
          for ks in range(16) for nt in range(4) for hf in range(2)]
    NW0 = opt("nw0", 32) if XG < 0 else 0
    e(wr[:NW0])
    wr = wr[NW0:]
    e("s_lshl_b32 s%d, s%d, 14" % (s_pa, s_hd))
    if not PZ_:
        e("s_lshl_b32 s%d, s%d, 16" % (s_b[0], s_rb))
        e("s_lshl_b32 s%d, s%d, 9" % (s_t, s_hd))
        e("s_add_u32 s%d, s%d, s%d" % (s_b[0], s_b[0], s_t))
        e("s_add_u32 s%d, s%d, 0x%x" % (s_b[0], s_b[0], WS_O))
    e("WAITVM pa")
    PZF = opt("pzf", -1)
    if PZI == 9 and PZF < 0:
        e(flag(s_fa, "pz", 64))
    poll(vGZ, 64, SWS, "s%d" % s_pz, first=GZ, dst=GZ, wide=True)
    k.stamp("pollA")
    smq(2)
    gl = []
    for i in range(16):
        x = "buffer_load_dwordx4 %s, %s, %s, s%d offen offset:%d sc1 ;@g%d" % (vr(GR + 4 * i, 4), vr(l16), sr(SWS, 4), s_pa, (i & 3) * 1024, i)
        if i & 3 == 3 and i < 15:
            x += "\ns_add_u32 s%d, s%d, 4096" % (s_pa, s_pa)
        gl.append(x)
    G2Z = opt("g2z", 0)
    LW = opt("lw", 0)
    assert LW or not late
    QG = opt("qg", 99)
    for pre, ins in late[:QG] + mall(opt("mg", 0)) + W1Q[:G2Z]:
        gl.append("\n".join(pre + [ins]))
    late = late[QG:]
    assert not (late and G2Z)
    W1Q = W1Q[G2Z:]
    if LW:
        assert XG >= 0
        wr_late = wr
        wr = []
    EX = NM
    NUM, DEN = ak, RL
    side = [mfma32(zz, IDM, GZ, "0")] + wr[:10]
    wr = wr[10:]
    for sh in (8, 4, 2, 1):
        for r in range(4):
            side.append("v_add_f32_dpp %s, %s, %s row_ror:%d row_mask:0xf bank_mask:0xf" % (vr(zz + r), vr(zz + r), vr(zz + r), sh))
    side.append("v_cvt_pk_bf16_f32 %s, %s, %s" % (vr(EX + 2), vr(zz), vr(zz + 1)))
    side.append("v_cvt_pk_bf16_f32 %s, %s, %s" % (vr(EX + 3), vr(zz + 2), vr(zz + 3)))
    side += wr[:2]
    side += [mfma16(DEN + 4 * u, EX + 2, PQ + 2 * u, ceps) for u in range(4)]
    side += wr[2:10]
    wr = wr[10:]
    side += ["v_rcp_f32 %s, %s" % (vr(DEN + 4 * u), vr(DEN + 4 * u)) for u in range(4)]
    side += ["v_mul_f32 %s, %s, %s" % (vr(DEN + 4 * u), vr(cst), vr(DEN + 4 * u)) for u in range(4)]
    for u in range(4):
        for hp in range(2):
            side.append("v_pk_mul_f32 %s, %s, %s op_sel_hi:[1,0]" % (vr(PQF + 4 * u + 2 * hp, 2), vr(PQF + 4 * u + 2 * hp, 2), vr(DEN + 4 * u, 2)))
    for j in range(8):
        side.append("v_cvt_pk_bf16_f32 %s, %s, %s" % (vr(PQ + j), vr(PQF + 2 * j), vr(PQF + 2 * j + 1)))
    NW1 = opt("nw1", 40)
    side += wr[:NW1]
    wr = wr[NW1:]
    W = Weave(gl)
    if PZI == 9 and PZF >= 0:
        W.at(PZF, flag(s_fa, "pz", 64))
    if XG >= 0:
        sw_ = [x for x in side if x.startswith("ds_")]
        side = [x for x in side if not x.startswith("ds_")]
        W.at(XG, "s_barrier" if LW else "WAITVM wo\ns_barrier")
        W.fill(sw_, XG, cap=opt("xcap", 6))
    W.fill(side, 2, cap=opt("gcap", 8))
    e(W.out())
    gm = ["WAITVM g%d\n" % i + mfma32(kv, IDM, GR + 4 * i, "0" if i == 0 else None) for i in range(16)]
    W = Weave(gm)
    NW2 = opt("nw2", 12)
    W.fill(wr[:NW2], 1, cap=1)
    wr = wr[NW2:]
    e(W.out())
    k.stamp("gathA")
    e("v_cvt_pk_bf16_f32 %s, %s, %s" % (vr(EX), vr(kv), vr(kv + 1)))
    e("v_cvt_pk_bf16_f32 %s, %s, %s" % (vr(EX + 1), vr(kv + 2), vr(kv + 3)))
    for u in range(4):
        e(mfma16(NUM + 4 * u, EX, PQ + 2 * u, "0"))
    OB = NM + 8
    for P in range(2):
        for j in range(4):
            e("v_cvt_pk_bf16_f32 %s, %s, %s" % (vr(OB + 4 * P + j), vr(NUM + 8 * P + 2 * j), vr(NUM + 8 * P + 2 * j + 1)))
        if PZ_:
            for j in range(4):
                e("v_min_u32 %s, -2, %s" % (vr(OB + 4 * P + j), vr(OB + 4 * P + j)))
        e("v_permlane16_swap_b32 %s, %s" % (vr(OB + 4 * P), vr(OB + 4 * P + 2)))
        e("v_permlane16_swap_b32 %s, %s" % (vr(OB + 4 * P + 1), vr(OB + 4 * P + 3)))
        e("buffer_store_dwordx4 %s, %s, %s, s%d offen sc1 ;@ost" % (vr(OB + 4 * P, 4), vr(vOS + P), sr(SWS, 4), s_b[0]))
    k.stamp("o_st")
    smq(1)
    k.nv = PERS2
    va = k.alloc(3)
    vc = k.alloc(6)
    vst, l16b, vcw, vcr = k.alloc(), k.alloc(), k.alloc(), k.alloc()
    TA2 = k.alloc(4)
    assert k.nv <= 60
    Q = [60 + 4 * i for i in range(48)]
    k.maxv = max(k.maxv, 252)
    STR = Q[0]
    BR = Q[2]
    tmp4 = BR + 8
    BF = Q[6]
    CF = Q[13]
    ACC = Q[20]
    WB = Q[34]
    XF = CF
    SS = CF + 16
    OF = ACC
    assert XF + 16 <= NM and XF > TO + 4 and XF >= av
    st = list(wr)
    if PZ_:
        e(["s_lshl_b32 s%d, s%d, 7" % (s_pz, s_rb2), "s_add_u32 s%d, s%d, 0x%x" % (s_pz, s_pz, WS_FA),
           "v_lshlrev_b32 %s, 5, %s" % (vr(t2), vr(l128))])
        PZO = 64 if PZI == 9 else 0
        pzl = "\n".join(["s_mov_b32 exec_hi, 0", poll_load(t2, SWS, "s%d" % s_pz, vP, imm=PZO) + " ;@pb", "s_mov_b64 exec, -1"])
        if opt("pzp", 0) == 0:
            e(pzl)
    st.append("WAITVM x")
    for P in range(2):
        st.append("v_permlane16_swap_b32 %s, %s" % (vr(HB + 4 * P), vr(HB + 4 * P + 2)))
        st.append("v_permlane16_swap_b32 %s, %s" % (vr(HB + 4 * P + 1), vr(HB + 4 * P + 3)))
    for j in range(8):
        st.append("v_lshlrev_b32 %s, 16, %s" % (vr(XF + 2 * j), vr(HB + j)))
        st.append("v_and_b32 %s, 0xffff0000, %s" % (vr(XF + 2 * j + 1), vr(HB + j)))
    s_rt2 = s_a[0]
    st.append("s_lshl_b32 s%d, s%d, 2" % (s_rt2, s_rb2))
    st.append("s_add_u32 s%d, s%d, s%d" % (s_rt2, s_rt2, s_wt))
    st.append("s_lshl_b32 s%d, s%d, 2" % (s_b[0], s_rt2))
    st.append("s_add_u32 s%d, s%d, s%d" % (s_b[0], s_b[0], s_r))
    st.append("s_lshl_b32 s%d, s%d, 12" % (s_b[0], s_b[0]))
    st.append("s_add_u32 s%d, s%d, 0x%x" % (s_b[0], s_b[0], WS_O))
    for p in range(1, 4):
        st.append("s_xor_b32 s%d, s%d, 0x%x" % (s_b[p], s_b[0], p << 12))
    st.append("v_bfe_u32 %s, v0, 4, 2" % vr(t3))
    st.append("v_lshlrev_b32 %s, 3, %s" % (vr(t3), vr(t3)))
    G2A = opt("g2a", 4)
    done = 28 - len(W1Q)
    assert done + G2A <= 21
    W = Weave(st)
    q = late + mall(opt("mc", 0)) + W1Q[:G2A]
    left = W.every(q, 1, max(2, len(st) // max(len(q), 1)))
    W1Q = W1Q[G2A:]
    e(W.out())
    e(flat(left))
    if PZ_ and opt("pzp", 0) == 1:
        e(pzl)
    if not PZ_:
        e(flag(s_fa, "ost", 64))
    k.stamp("flagB")
    if not LW:
        e("s_waitcnt lgkmcnt(0)")
        e("s_barrier")
    KS4 = [("r", c, a) for a in range(3) for c in range(4)] + [("s", 0), ("s", 1)]
    s_w2c = s_c[4:8]
    s_w8 = s_m0w
    s_s2, s_fp = 96, 97
    s_h, s_st = s_a[1], s_a[2]
    st = []
    if bsl:
        st.append("s_lshr_b32 s%d, s%d, 2" % (s_t, s_w1m))
        st.append("s_add_u32 s%d, s%d, %d" % (s_t, s_t, L_BS))
        st.append("v_add_u32 %s, s%d, %s" % (vr(t0), s_t, vr(t3)))
        st += [("WAITVM bias\n" if u == 0 else "") + "ds_read_b64 %s, %s offset:%d ;@bs" % (vr(BR + 2 * u, 2), vr(t0), 32 * u) for u in range(7)]
    st.append("s_lshl_b32 s%d, s%d, 13" % (s_w8, s_w))
    st.append("s_lshl_b32 s%d, s%d, 15" % (s_s2, s_w))
    st.append("s_cmp_eq_u32 s%d, 3\ns_cselect_b32 s%d, 0x20000, s%d" % (s_w, s_s2, s_s2))
    st.append("s_add_u32 s%d, s%d, 28672" % (s_s2, s_s2))
    st.append("s_sub_u32 s%d, s%d, s%d" % (s_t, s_s2, s_w8))
    st.append("s_add_u32 s%d, s%d, -65536" % (s_t, s_t))
    for nt in range(4):
        st.append("v_add_u32 %s, s%d, %s" % (vr(TA2 + nt), s_t, vr(TA + nt)))
    st.append("s_add_u32 s%d, s%d, 98304" % (s_w8, s_w8))
    st.append("s_mul_i32 s%d, s%d, %d" % (s_to, s_w, 448 * 1024))
    st.append("s_lshl_b32 s%d, s%d, 7" % (s_t, s_cb))
    st.append("s_add_u32 s%d, s%d, s%d" % (s_to, s_to, s_t))
    for p in range(4):
        st.append("s_xor_b32 s%d, s%d, %d" % (s_t, s_r, p))
        st.append("s_mul_i32 s%d, s%d, %d" % (s_t, s_t, 112 * 1024))
        st.append("s_add_u32 s%d, s%d, s%d" % (s_w2c[p], s_t, s_to))
    st.append("v_bfe_u32 %s, v0, 2, 4" % vr(t0))
    st.append("v_mul_u32_u24 %s, 224, %s" % (vr(t0), vr(t0)))
    st.append("v_and_b32 %s, 3, v0" % vr(t1))
    st.append("v_lshl_add_u32 %s, %s, 3, %s" % (vr(va), vr(t1), vr(t0)))
    for b in (1, 2):
        st.append("v_add_u32 %s, 0x%x, %s" % (vr(va + b), 65536 * b, vr(va)))
    st.append("s_lshl_b32 s%d, s%d, 5" % (s_t, s_w))
    st.append("s_add_u32 s%d, s%d, 128" % (s_to, s_t))
    st.append("s_cmp_eq_u32 s%d, 3\ns_cselect_b32 s%d, s%d, s%d" % (s_w, s_to, s_t, s_to))
    for b in range(3):
        st.append("v_add_u32 %s, s%d, %s" % (vr(vc + 2 * b), s_t, vr(va + b)))
        st.append("v_add_u32 %s, s%d, %s" % (vr(vc + 2 * b + 1), s_to, vr(va + b)))
    st.append("v_lshl_add_u32 %s, %s, 1, s%d" % (vr(vcr), vr(t3), s_s2))
    st.append("v_add_u32 %s, s%d, %s" % (vr(vcr), s_t, vr(vcr)))
    st.append("v_add_u32 %s, 1, %s" % (vr(t0), vr(t1)))
    st.append("v_lshrrev_b32 %s, 2, %s" % (vr(t0), vr(t0)))
    st.append("v_add_u32 %s, %s, %s" % (vr(t0), vr(t0), vr(t1)))
    st.append("s_lshl_b32 s%d, s%d, 6" % (s_t, s_w))
    st.append("s_add_u32 s%d, s%d, 28672" % (s_t, s_t))
    st.append("v_lshl_add_u32 %s, %s, 15, s%d" % (vr(t0), vr(t0), s_t))
    st.append("v_lshl_add_u32 %s, %s, 1, %s" % (vr(vcw), vr(t3), vr(t0)))
    st.append("v_lshl_add_u32 %s, %s, 5, %s" % (vr(vcw), vr(t1), vr(vcw)))
    st.append("v_and_b32 %s, 15, v0" % vr(t0))
    st.append("v_lshlrev_b32 %s, 5, %s" % (vr(t1), vr(t3)))
    st.append("v_lshl_add_u32 %s, %s, 3, %s" % (vr(vst), vr(t0), vr(t1)))
    st.append("v_add_u32 %s, 16384, %s" % (vr(l16b), vr(l16)))
    st += ["s_lshl_b32 s%d, s%d, 3" % (s_t, s_rt2),
           "s_add_u32 s%d, s%d, s%d" % (s_t, s_t, s_cb),
           "s_lshl_b32 s%d, s%d, 11" % (s_h, s_t),
           "s_add_u32 s%d, s%d, 0x%x" % (s_h, s_h, WS_H),
           "s_lshl_b32 s%d, s%d, 7" % (s_t, s_t),
           "s_add_u32 s%d, s%d, 0x%x" % (s_st, s_t, WS_ST),
           "s_lshl_b32 s%d, s%d, 7" % (s_t, s_rb2),
           "s_add_u32 s%d, s%d, 0x%x" % (s_t, s_t, WS_FA),
           "v_lshlrev_b32 %s, 5, %s" % (vr(t2), vr(l128))]
    G2B = opt("g2b", 7)
    bl = [([], "buffer_load_dwordx2 %s, %s, %s, s%d offen offset:%d ;@bias" % (vr(BR + 2 * u, 2), vr(t3), sr(SB1, 4), s_w1b, 32 * u)) for u in range(7)]
    BL = opt("bl", 0)
    if BL == 3:
        BL = 0
        bl = []
    if BL:
        st.append("v_mov_b32 %s, %s" % (vr(l128), vr(t3)))
        bl = [(a, b.replace(", %s, " % vr(t3), ", %s, " % vr(l128))) for a, b in bl]
    q = mall(opt("md", 0)) + W1Q[:G2B] + ([] if BL else bl)
    W1Q = W1Q[G2B:]
    if LW:
        SBW = opt("sbw", 0)
        st = st + ["WAITVM wo\ns_barrier"] + wr_late[:128 - SBW]
        wr_late = wr_late[128 - SBW:]
    SB = opt("sb", 0)
    if opt("bf", 0):
        q = bl + q[:len(q) - 7]
    qb = q[len(q) - SB:]
    q = q[:len(q) - SB]
    W = Weave(st)
    left = W.every(q, 1, max(2, len(st) // max(1, len(q))))
    e(W.out())
    e(flat(left))
    NA = (28 - len(W1Q)) // 7
    k.stamp("g2_iss")
    if SB:
        e("s_mov_b32 exec_hi, 0")
        e(poll_load(t2, SWS, "s%d" % s_t, vP, imm=64) + " ;@pb")
        e("s_mov_b64 exec, -1")
        W = Weave(wr_late if LW else [])
        left = W.every(qb, 1, max(2, len(W.main) // len(qb)))
        e(W.out())
        e(flat(left))
        e("WAITVM pb")
    if PZ_:
        assert not SB and LW
        e("WAITVM pb")
        poll(t2, 32, SWS, "s%d" % s_pz, first=vP, imm=PZO)
    else:
        poll(t2, 32, SWS, "s%d" % s_t, imm=64, first=vP if SB else None)
    k.stamp("pollB")
    ol = [([], "buffer_load_dwordx4 %s, %s, %s, s%d offen offset:%d sc1 ;@o%d" % (vr(OF + 4 * ks, 4), vr(l16), sr(SWS, 4), s_b[ks >> 2], (ks & 3) * 1024, ks))
          for ks in range(16)]
    P2N = opt("p2n", 10)
    W = Weave(flat(ol[:P2N]))
    bc = []
    for j in range(14):
        bc.append("v_lshlrev_b32 %s, 16, %s" % (vr(BF + 2 * j), vr(BR + j)))
        bc.append("v_and_b32 %s, 0xffff0000, %s" % (vr(BF + 2 * j + 1), vr(BR + j)))
    bc.append("v_lshrrev_b32 %s, 1, %s" % (vr(t3), vr(l16)))
    bc[0] = ("WAITLG bs\n" if bsl else "WAITVM bias\n") + bc[0]
    W.fill(bc[-1:] if BL else bc, opt("bcp", 3), cap=6)
    if PZ_:
        W.fill(wr_late, 1, cap=opt("pzc", 8))
    e(W.out())
    if (SB or PZ_) and NA:
        e("WAITVM w1g%d" % (NA - 1))
    if LW:
        assert len(W1Q) >= 7
        e("s_waitcnt lgkmcnt(0)")
    e("s_barrier")
    mm = []
    for ks in range(16):
        for nt in range(4):
            x = mfma32(XF + 4 * nt, WF + 16 * ks + 4 * nt, OF + 4 * ks)
            if nt == 0:
                x = "WAITVM o%d\n" % ks + x
            mm.append(x)
    W = Weave(mm)
    G3Z = opt("g3z", 7)
    left = W.every(ol[P2N:] + mall(opt("my", 0)) + W1Q[:G3Z] + mall(opt("mz", 0)) + (bl if BL == 1 else []), 2, opt("g3s", 4))
    assert not left
    W1Q = W1Q[G3Z:]
    slow = []
    if PZ_:
        ck = []
        for ks in range(16):
            ck.append("v_max3_u32 %s, %s, %s, %s" % (vr(vP), vr(OF + 4 * ks), vr(OF + 4 * ks + 1), vr(vP) if ks else "0"))
            ck.append("v_max3_u32 %s, %s, %s, %s" % (vr(vP), vr(OF + 4 * ks + 2), vr(OF + 4 * ks + 3), vr(vP)))
            W.at(4 * ks + 1, ck[-2])
            W.at(4 * ks + 2, ck[-1])
        ck.append("v_cmp_eq_u32 vcc, -1, %s" % vr(vP))
        W.at(63, ck[-1])
        slow += ["L_slowB:", "s_mov_b32 s%d, %d" % (s_to, 20000 if FINE else TIMEOUT), "L_slowB1:"]
        slow += [x[1].split(";@")[0] + ";@cond" for x in ol]
        slow += ["s_waitcnt vmcnt(0)"] + ck
        slow += ["s_cbranch_vccz L_slowB2", "s_sub_u32 s%d, s%d, 1" % (s_to, s_to), "s_cbranch_scc0 L_slowB1", "L_slowB2:"]
        for j in range(8):
            slow.append("v_lshlrev_b32 %s, 16, %s" % (vr(XF + 2 * j), vr(HB + j)))
            slow.append("v_and_b32 %s, 0xffff0000, %s" % (vr(XF + 2 * j + 1), vr(HB + j)))
        slow += [x.split("\n")[-1] for x in mm]
        slow += ["s_nop 15", "s_nop 15", "s_branch L_backB"]
    e(W.out())
    if PZ_:
        k.stamp("p2_f")
        e("s_cbranch_vccnz L_slowB")
        e("L_backB:")
    k.stamp("p2_mm")
    for j in range(8):
        e("v_cvt_pk_bf16_f32 %s, %s, %s" % (vr(HB + j), vr(XF + 2 * j), vr(XF + 2 * j + 1)))
        if j & 3 == 3:
            e("buffer_store_dwordx4 %s, %s, %s, s%d offen offset:%d sc1 ;@hst" % (vr(HB + j - 3, 4), vr(l16), sr(SWS, 4), s_h, (j >> 2) * 1024))
    k.stamp("h_st")
    st = []
    for q in range(2):
        st.append("v_dot2_f32_bf16 %s, %s, %s, 0" % (vr(SS + 2 * q), vr(HB + q), vr(ones)))
        st.append("v_dot2_f32_bf16 %s, %s, %s, 0" % (vr(SS + 2 * q + 1), vr(HB + q), vr(HB + q)))
    for j in range(2, 8):
        q = j & 1
        st.append("v_dot2_f32_bf16 %s, %s, %s, %s" % (vr(SS + 2 * q), vr(HB + j), vr(ones), vr(SS + 2 * q)))
        st.append("v_dot2_f32_bf16 %s, %s, %s, %s" % (vr(SS + 2 * q + 1), vr(HB + j), vr(HB + j), vr(SS + 2 * q + 1)))
    st.append("v_pk_add_f32 %s, %s, %s" % (vr(SS, 2), vr(SS, 2), vr(SS + 2, 2)))

    def xg_reduce(regs, tmp):
        o = []
        for sw in ("v_permlane16_swap_b32", "v_permlane32_swap_b32"):
            for j, r in enumerate(regs):
                o.append("v_mov_b32 %s, %s" % (vr(tmp + j), vr(r)))
            for j, r in enumerate(regs):
                o.append("%s %s, %s" % (sw, vr(r), vr(tmp + j)))
            for j, r in enumerate(regs):
                o.append("v_add_f32 %s, %s, %s" % (vr(r), vr(r), vr(tmp + j)))
        return o
    st += xg_reduce([SS, SS + 1], t0)
    st.append("v_or_b32 %s, 0x80000000, %s" % (vr(SS + 1), vr(SS + 1)))

    def w2_dma(n):
        kd = KS4[n]
        o = []
        for i in range(4):
            pre = []
            if i == 0:
                if kd[0] == "r":
                    pre.append("s_add_u32 s%d, s%d, %d" % (s_t2, s_w2c[kd[1]], kd[2] * 32768))
                else:
                    pre.append("s_add_u32 s%d, s%d, %d" % (s_t2, s_w2c[2 * kd[1]], 6 * 16384))
                pre.append("s_mov_b32 m0, s%d" % s_s2 if n % 3 == 2 else "s_add_u32 m0, s%d, %d" % (s_w8, (n % 3) * 4096))
                if n >= 2:
                    pre.append("WAITLG r2_%d" % (n - 3) if n > 2 else "WAITLG cf")
            if i == 2 and kd[0] == "s":
                pre.append("s_add_u32 s%d, s%d, %d" % (s_t2, s_w2c[2 * kd[1] + 1], 5 * 16384))
            o.append((pre, "buffer_load_dwordx4 %s, %s, s%d offen offset:%d lds ;@w2_%d_%d" % (vr(VD + i), sr(SW2, 4), s_t2, i * 1024, n, i)))
        return o

    W2R = {}
    for n in range(8):
        W2R[n] = [A0 + 128 + 16 * n + 4 * nt for nt in range(4)]
    W2R[8], W2R[9], W2R[10] = Q[6:10], Q[10:14], Q[14:18]
    W2R[11], W2R[12] = Q[20:24], Q[24:28]
    W2R[13] = Q[18:20] + Q[46:48]
    AC4 = Q[0:4] + Q[34:46]
    SG = Q[28:34] + Q[4:6]

    def w2_rd(n, wait=True):
        addr = TA2 if n % 3 == 2 else TA
        off = 0 if n % 3 == 2 else 32768 + (n % 3) * 4096
        o = ["ds_read_b64_tr_b16 %s, %s offset:%d" % (vr(W2R[n][nt] + 2 * hf, 2), vr(addr + nt), off + hf * 2048)
             for nt in range(4) for hf in range(2)]
        o[-1] += " ;@r2_%d" % n
        if wait:
            o[0] = "WAITVM w2_%d_3\n" % n + o[0]
        return o

    CS = ACC

    def w1pos(t):
        p = L_W1[t >> 2] + (t & 3) * 7168
        return p >> 16, p & 0xffff

    CB = WB

    def colsum(ta, tb):
        cr = {}
        for t in range(ta, tb):
            b, off = w1pos(t)
            cr[t] = [("ds_read_b64_tr_b16 %s, %s offset:%d ;@cs%d" % (vr(CB + 8 * (t % 6) + 4 * c + 2 * hf, 2), vr(vc + 2 * b + c), off + hf * 3584, t))
                     for c in range(2) for hf in range(2)]
        o = []
        for t in range(ta, min(tb, ta + 3)):
            o += cr[t]
        for t in range(ta, tb):
            z = "0" if t == 0 else None
            o.append("WAITLG cs%d\n" % t + mfma32(CS, CB + 8 * (t % 6), ones, z))
            if t + 3 < tb:
                o += cr[t + 3][:2]
            o.append(mfma32(CS + 4, CB + 8 * (t % 6) + 4, ones, z))
            if t + 3 < tb:
                o += cr[t + 3][2:]
        return o

    s_rt3 = s_a[0]
    CS1 = min(4 * NA, opt("cs1", 16))
    st += colsum(0, CS1)
    st += ["s_lshl_b32 s%d, s%d, 2" % (s_rt3, s_g3),
           "s_add_u32 s%d, s%d, s%d" % (s_rt3, s_rt3, s_w),
           "s_lshl_b32 s%d, s%d, 11" % (s_t, s_rt3),
           "s_add_u32 s%d, s%d, 0x%x" % (s_t, s_t, WS_ST),
           "s_lshl_b32 s%d, s%d, 3" % (s_b[0], s_rt3),
           "s_add_u32 s%d, s%d, s%d" % (s_b[0], s_b[0], s_r),
           "s_lshl_b32 s%d, s%d, 12" % (s_b[0], s_b[0]),
           "s_add_u32 s%d, s%d, 0x%x" % (s_b[0], s_b[0], WS_H)]
    for p in range(1, 4):
        st.append("s_xor_b32 s%d, s%d, 0x%x" % (s_b[p], s_b[0], p << 12))
    W2Q = sum([w2_dma(n) for n in range(14)], [])
    G3A = opt("g3a", 7)
    q = W1Q[:G3A] + mall(opt("me", 0))
    W1Q = W1Q[G3A:]
    W = Weave(st)
    left = W.every(q, 1, max(2, min(10, len(st) // max(len(q), 1))))
    e(W.out())
    e(flat(left))
    e("WAITVM hst")
    e("s_mov_b64 exec, 0xffff")
    e("buffer_store_dwordx2 %s, %s, %s, s%d offen sc1" % (vr(SS, 2), vr(t3), sr(SWS, 4), s_st))
    e("s_mov_b64 exec, -1")
    k.stamp("flagC")
    k.flush()
    e(flat((bl if BL == 2 else []) + W1Q + mall(opt("mf", 0))))
    R1 = opt("r1", 8)
    e(flat(W2Q[:R1]))
    W2Q = W2Q[R1:]
    if CS1 < 4 * NA:
        e(colsum(CS1, 4 * NA))
    fs = (lambda n: k.stamp(n)) if opt("fs", 0) else (lambda n: None)
    fs("r1")
    if NA < 4:
        e("WAITVM w1g3")
        fs("g3")
        e("s_barrier")
        fs("g3b")
        e(colsum(4 * NA, 16))
    fs("cs")
    e("s_mov_b32 exec_lo, 0x000f000f")
    e("s_mov_b32 exec_hi, 0x000f000f")
    e("ds_write_b128 %s, %s" % (vr(vcw), vr(CS, 4)))
    e("ds_write_b128 %s, %s offset:256" % (vr(vcw), vr(CS + 4, 4)))
    e("s_mov_b64 exec, -1")
    s_ac0, s_ac1, s_fd = s_a[1], s_a[2], s_a[3]
    e(["s_lshl_b32 s%d, s%d, 4" % (s_to, s_rt3),
       "s_add_u32 s%d, s%d, s%d" % (s_to, s_to, s_cb3),
       "s_mul_i32 s%d, s%d, 7168" % (s_ac0, s_to),
       "s_add_u32 s%d, s%d, 0x%x" % (s_ac0, s_ac0, WS_ACT),
       "s_add_u32 s%d, s%d, 3072" % (s_ac1, s_ac0),
       "s_lshl_b32 s%d, s%d, 7" % (s_fd, s_to),
       "s_add_u32 s%d, s%d, 0x%x" % (s_fd, s_fd, WS_FD)])
    e("s_waitcnt lgkmcnt(0)")
    e("s_barrier")
    fs("cfb")
    e(["ds_read_b128 %s, %s offset:%d ;@cf" % (vr(CF + 4 * u, 4), vr(vcr), u * 64) for u in range(7)])

    def w1reads(t, sg):
        b, off = w1pos(t)
        us = (0, 1, 2, 3) if sg == 0 else (4, 5, 6)
        return ["ds_read_b64_tr_b16 %s, %s offset:%d ;@a%d_%d" % (vr(w1buf(t, u) + 2 * hf, 2), vr(va + b), off + 32 * u + hf * 3584, sg, t)
                for u in us for hf in range(2)]

    def w1buf(t, u):
        return WB + 16 * (t % 3) + 4 * u if u < 4 else WB + 12 * (t % 4) + 4 * (u - 4)
    e(w1reads(0, 0) + w1reads(1, 0))
    VA, VS, vrw, vrr = V1, V1 + 4, vc, vc + 2
    vD = vc + 5
    s_ap = s_c[0:4]
    st = []
    st.append("v_add_u32 %s, s%d, %s" % (vr(vrw), s_w8, vr(l16)))
    st.append("v_add_u32 %s, s%d, %s" % (vr(vrw + 1), s_s2, vr(l16)))
    st.append("v_xor_b32 %s, 0x%x, %s" % (vr(vrr), 1 << 13, vr(vrw)))
    st.append("v_xor_b32 %s, 0x%x, %s" % (vr(vrr + 1), 2 << 13, vr(vrw)))
    st.append("s_xor_b32 s%d, s%d, 3" % (s_to, s_w))
    st.append("s_lshl_b32 s%d, s%d, 15" % (s_to, s_to))
    st.append("s_cmp_eq_u32 s%d, 0\ns_cselect_b32 s%d, 0x20000, s%d" % (s_w, s_to, s_to))
    st.append("s_add_u32 s%d, s%d, 28672" % (s_to, s_to))
    st.append("v_add_u32 %s, s%d, %s" % (vr(vrr + 2), s_to, vr(l16)))
    for v in range(4):
        st.append("s_xor_b32 s%d, s%d, %d" % (s_to, s_wt, v))
        st.append("s_lshr_b32 s%d, s%d, 1" % (s_fp, s_to))
        st.append("s_mul_i32 s%d, s%d, %d" % (s_fp, s_fp, 16 * 7168))
        if v & 1 == 0:
            st.append("v_add_u32 %s, s%d, %s" % (vr(VS + (v >> 1)), s_fp, vr(l16)))
            st.append("v_add_u32 %s, 6144, %s" % (vr(VS + (v >> 1)), vr(VS + (v >> 1))))
        st.append("s_and_b32 s%d, s%d, 1" % (s_to, s_to))
        st.append("s_mul_i32 s%d, s%d, 3072" % (s_to, s_to))
        st.append("s_add_u32 s%d, s%d, s%d" % (s_fp, s_fp, s_to))
        st.append("v_add_u32 %s, s%d, %s" % (vr(VA + v), s_fp, vr(l16)))
    st.append("s_lshl_b32 s%d, s%d, 3" % (s_fp, s_rb2))
    st.append("s_add_u32 s%d, s%d, s%d" % (s_fp, s_fp, s_w))
    st.append("s_lshl_b32 s%d, s%d, 2" % (s_fp, s_fp))
    for p in range(4):
        st.append("s_xor_b32 s%d, s%d, %d" % (s_to, s_r, p))
        st.append("s_add_u32 s%d, s%d, s%d" % (s_to, s_to, s_fp))
        st.append("s_mul_i32 s%d, s%d, 7168" % (s_to, s_to))
        st.append("s_add_u32 s%d, s%d, 0x%x" % (s_ap[p], s_to, WS_ACT))
    st.append("s_lshl_b32 s%d, s%d, 7" % (s_fp, s_fp))
    st.append("s_add_u32 s%d, s%d, 0x%x" % (s_fp, s_fp, WS_FD))
    st.append("v_bfe_u32 %s, v0, 2, 1" % vr(t0))
    st.append("v_lshlrev_b32 %s, 11, %s" % (vr(t0), vr(t0)))
    st.append("v_and_b32 %s, 3, v0" % vr(t1))
    st.append("v_lshl_add_u32 %s, %s, 7, %s" % (vr(t0), vr(t1), vr(t0)))
    st.append("v_bfe_u32 %s, v0, 3, 2" % vr(t1))
    st.append("v_lshl_add_u32 %s, %s, 17, %s" % (vr(vD), vr(t1), vr(t0)))
    SU = opt("su", 0)
    st4 = st
    if not SU:
        e(st)
    fs("su")
    nrd = 0
    R2 = opt("r2", 12)
    stl = ["buffer_load_dwordx2 %s, %s, %s, s%d offen offset:%d sc1" % (vr(STR + 4 * rt + 2 * i, 2), vr(vst), sr(SWS, 4), s_t, rt * 1024 + i * 128)
           for rt in range(2) for i in range(2)]
    if R2:
        assert R1 == 8
        e(flat(W2Q[:4]))
        e(w2_rd(0) + w2_rd(1))
        nrd = 2
        SE = opt("se", 0)
        e(flat(W2Q[4:R2 - SE]))
        if SE:
            e([x + " ;@sc" for x in stl])
            e(flat(W2Q[R2 - SE:R2]))
        W2Q = W2Q[R2:]
    if BL:
        e(bc[:-1])
    k.stamp("cs_done")
    e("s_mov_b32 s%d, %d" % (s_to, 20000 if FINE else TIMEOUT))
    if opt("se", 0):
        e("WAITVM sc")
        e("s_branch L_chkC")
    e("L_pollC:")
    e([x + " ;@cond" for x in stl])
    e("s_waitcnt vmcnt(0)")
    e("L_chkC:")
    e("v_min3_u32 %s, %s, %s, %s" % (vr(t0), vr(STR + 1), vr(STR + 3), vr(STR + 5)))
    e("v_min_u32 %s, %s, %s" % (vr(t0), vr(t0), vr(STR + 7)))
    e("v_cmp_eq_u32 vcc, 0, %s" % vr(t0))
    e("s_cbranch_vccz L_okC")
    e("s_sub_u32 s%d, s%d, 1" % (s_to, s_to))
    e("s_cbranch_scc0 L_pollC")
    e("L_okC:")
    k.stamp("pollC")
    HF = A0
    hl = []
    for t in range(16):
        for rt in range(2):
            hl.append(([], "buffer_load_dwordx4 %s, %s, %s, s%d offen offset:%d sc1 ;@h%d" % (vr(HF + 8 * t + 4 * rt, 4), vr(l16b if rt else l16), sr(SWS, 4), s_b[t >> 2], (t & 3) * 1024, t)))
    sv = []
    for rt in range(2):
        sv.append("v_pk_add_f32 %s, %s, %s" % (vr(STR + 4 * rt, 2), vr(STR + 4 * rt, 2), vr(STR + 4 * rt + 2, 2)))
    sv += xg_reduce([STR, STR + 1, STR + 4, STR + 5], tmp4)
    for op in range(8):
        for rt in range(2):
            a, b, c = STR + 4 * rt, STR + 4 * rt + 1, STR + 4 * rt + 2
            sv.append(["v_mul_f32 %s, %s, %s" % (vr(a), f32(-1.0 / 512), vr(a)),
                       "v_mul_f32 %s, %s, %s" % (vr(b), f32(-1.0 / 512), vr(b)),
                       "v_fma_f32 %s, -%s, %s, %s" % (vr(b), vr(a), vr(a), vr(b)),
                       "v_max_f32 %s, 0, %s" % (vr(b), vr(b)),
                       "v_add_f32 %s, %s, %s" % (vr(b), f32(1e-5), vr(b)),
                       "v_rsq_f32 %s, %s" % (vr(c), vr(b)),
                       "v_mul_f32 %s, %s, %s" % (vr(b), vr(b), vr(c)),
                       "v_mul_f32 %s, %s, %s" % (vr(c), f32(LOG2E), vr(c))][op])
    first = True
    for u in range(7):
        for op in range(2):
            for rt in range(2):
                for hp in range(2):
                    a = ACC + 8 * u + 4 * rt + 2 * hp
                    if op == 0:
                        x = "v_pk_mul_f32 %s, %s, %s op_sel:[0,1] op_sel_hi:[1,1]" % (vr(a, 2), vr(BF + 4 * u + 2 * hp, 2), vr(STR + 4 * rt, 2))
                    else:
                        x = "v_pk_fma_f32 %s, %s, %s, %s op_sel_hi:[1,0,1]" % (vr(a, 2), vr(CF + 4 * u + 2 * hp, 2), vr(STR + 4 * rt, 2), vr(a, 2))
                        if first:
                            x = "WAITLG cf\n" + x
                            first = False
                    sv.append(x)
    P3N = opt("p3n", 10)
    W = Weave(flat(hl[:P3N]))
    W.fill(sv, opt("sv0", 3), cap=opt("svc", 12))
    e(W.out())
    mm = []
    for t in range(16):
        x = [mfma32(ACC + 8 * u + 4 * rt, w1buf(t, u), HF + 8 * t + 4 * rt) for u in range(4) for rt in range(2)]
        pre = "WAITVM h%d\nWAITLG a0_%d\n" % (t, t)
        if t in (0, 8):
            pre += k.stamp_text("t%d" % t) + "\n"
        x[0] = pre + x[0]
        mm += x
    W = Weave(mm)
    for t in range(14):
        for i, r in enumerate(w1reads(t + 2, 0)):
            W.at(8 * t + i + 1, r)
    q = hl[P3N:]
    W.every(q, 2, 4)
    niss = (56 - len(W2Q)) // 4
    rds = []
    while nrd < niss:
        rds += w2_rd(nrd, False)
        nrd += 1
    pos = W.fill(rds, 1, cap=2)
    R3 = opt("r3", 8)
    left = W.every(W2Q[:R3], max(pos + 8, 2 + 4 * len(q)), 4)
    W2Q = left + W2Q[R3:]
    if SU:
        assert W.fill(st4, SU, cap=opt("suc", 2)) < 8 * 15
    W.fill(["\n".join(["s_bitcmp1_b32 s%d, 0" % s_wt] + ["s_cselect_b32 s%d, s%d, s%d" % (s_b[c], s_ap[c ^ 1], s_ap[c]) for c in range(4)])], 8 * 15 + 2)
    e(W.out())
    k.stamp("p3a")
    tm = BR

    def mish(u, rt, ob):
        R = STR + 4 * rt + 2
        o = []
        for hp in range(2):
            a = ACC + 8 * u + 4 * rt + 2 * hp
            E = tm + 4 * hp + 2
            o.append("v_pk_mul_f32 %s, %s, %s op_sel_hi:[1,0]" % (vr(a, 2), vr(a, 2), vr(R, 2)))
            o.append("v_exp_f32 %s, %s" % (vr(E), vr(a)))
            o.append("v_exp_f32 %s, %s" % (vr(E + 1), vr(a + 1)))
        for hp in range(2):
            C, E = tm + 4 * hp, tm + 4 * hp + 2
            o.append("v_pk_fma_f32 %s, %s, -0.5, -1.0 op_sel_hi:[1,0,0]" % (vr(C, 2), vr(E, 2)))
            o.append("v_pk_fma_f32 %s, %s, %s, -1.0 op_sel_hi:[1,1,0]" % (vr(C, 2), vr(E, 2), vr(C, 2)))
            o.append("v_rcp_f32 %s, %s" % (vr(C), vr(C)))
            o.append("v_rcp_f32 %s, %s" % (vr(C + 1), vr(C + 1)))
        for hp in range(2):
            a = ACC + 8 * u + 4 * rt + 2 * hp
            C = tm + 4 * hp
            o.append("v_pk_fma_f32 %s, %s, %s, %s" % (vr(a, 2), vr(C, 2), vr(a, 2), vr(a, 2)))
        for hp in range(2):
            a = ACC + 8 * u + 4 * rt + 2 * hp
            o.append("v_cvt_pk_bf16_f32 %s, %s, %s" % (vr(ob + hp), vr(a), vr(a + 1)))
        return o

    def piece(pc):
        if pc is None:
            ob = ACC + 48
            return mish(6, 0, ob) + mish(6, 1, ob + 2) + [
                "buffer_store_dwordx4 %s, %s, %s, s%d offen offset:3072 sc1 ;@ast2" % (vr(ob, 4), vr(l16), sr(SWS, 4), s_ac1)]
        rt, a = pc
        ob = ACC + 16 * a + 4 * rt
        return mish(2 * a, rt, ob) + mish(2 * a + 1, rt, ob + 2) + [
            "buffer_store_dwordx4 %s, %s, %s, s%d offen offset:%d sc1 ;@ast%d" % (vr(ob, 4), vr(l16), sr(SWS, 4), (s_ac0, s_ac1)[rt], a * 1024, a)]

    body = piece((0, 0)) + piece((1, 0)) + piece((0, 1)) + piece((1, 1))
    W = Weave(body)
    W.fill(w1reads(0, 1) + w1reads(1, 1) + w1reads(2, 1), len(body) - 40, cap=1)
    e(W.out())
    k.stamp("epi_a")
    k.flush()
    mm = []
    for t in range(16):
        x = [mfma32(ACC + 8 * u + 4 * rt, w1buf(t, u), HF + 8 * t + 4 * rt) for u in range(4, 7) for rt in range(2)]
        x[0] = "WAITLG a1_%d\n" % t + x[0]
        mm += x
    W = Weave(mm)
    for t in range(13):
        for i, r in enumerate(w1reads(t + 3, 1)):
            W.at(6 * t + i + 1, r)

    def fstore(i, wait):
        return "\n".join(["WAITVM " + wait, "s_mov_b64 exec, 1",
                          "buffer_store_dword %s, off, %s, s%d sc1" % (vr(vone), sr(SWS, 4), s_fd),
                          "s_mov_b64 exec, -1", "s_add_u32 s%d, s%d, 0x%x" % (s_fd, s_fd, FDS), k.stamp_text("flagD%d" % i)])
    if NFD == 3:
        W.at(opt("fd0", 16), fstore(0, "ast0"), cost=4)
    W.at(opt("fd1", 44), fstore(1, "ast1"), cost=4)
    w2s = [W2Q, nrd]

    def place(W, spec, step, cap):
        pos = 1
        for sp in spec.split(","):
            if not sp:
                continue
            if sp[0] == "@":
                pos = max(pos, int(sp[1:]))
            elif sp[0] == "R":
                assert w2s[1] < (56 - len(w2s[0])) // 4
                pos = W.fill(w2_rd(w2s[1]), pos, cap=cap) + 1
                w2s[1] += 1
            else:
                n = int(sp[1:])
                left = W.every(w2s[0][:n], pos + 1, step)
                W.at(len(W.main), flat(left))
                w2s[0] = w2s[0][n:]
                pos += step * n
    place(W, opt_s("p3b", "L4,R,R,L8,@62,R,L4"), 4, 2)
    e(W.out())
    k.stamp("p3b")
    body = piece((0, 2)) + piece((1, 2)) + piece(None)
    print("epi_b body", len(body), len(piece(None)))
    W = Weave(body)
    place(W, opt_s("epb", "R,R,L8,@70,R,L4"), opt("eps", 5), 1)
    W.at(len(body) - opt("pds", 40), "\n".join(["s_mov_b64 exec, 0x%x" % (0xff if NFD == 2 else 0xffff), poll_load(vD, SWS, "s%d" % s_fp, vP) + " ;@pd", "s_mov_b64 exec, -1"]))
    PE = opt("pe", 0)
    WE = W
    if not PE:
        e(W.out())
        k.stamp("epi_b")
        k.flush()
        W = Weave([])
        place(W, opt_s("g4a", ""), 0, 99)
        e(W.out())

    def pollD(i, first, e=e):
        n = npoll[0]
        npoll[0] += 1
        e("s_mov_b64 exec, 0x%x" % (0xff << (8 * i)))
        e("s_mov_b32 s%d, %d" % (s_to, 20000 if FINE else TIMEOUT))
        e("v_cmp_eq_u32 vcc, 0, %s" % vr(first))
        e("s_cbranch_vccz L_ok%d" % n)
        e("L_poll%d:" % n)
        e(poll_load(vD, SWS, "s%d" % s_fp, t1) + " ;@cond")
        e("s_waitcnt vmcnt(0)")
        e("v_cmp_eq_u32 vcc, 0, %s" % vr(t1))
        e("s_cbranch_vccz L_ok%d" % n)
        e("s_sub_u32 s%d, s%d, 1" % (s_to, s_to))
        e("s_cbranch_scc0 L_poll%d" % n)
        e("L_ok%d:" % n)
        e("s_mov_b64 exec, -1")
        e(k.stamp_text("pollD%d" % i))

    if not PE:
        e("WAITVM pd")
        pollD(0, vP)
    OA = opt("oa", 4)
    if NFD == 3:
        seq = [(v, n) for v in (2, 3, 1, 0) for n in range(4)] + [(v, n) for v in (2, 3, 1, 0) for n in range(4, 8)]
    else:
        seq = [(v, n) for v in (2, 3, 1, 0) for n in range(8)]
    lseq = list(seq)
    seq = [x for x in seq if x[0] or x[1] < OA]
    NSA = len(seq)
    seq += [(v, n) for v in (2, 3, 1) for n in range(8, 14)]
    NSB = len(seq)
    seq += [(0, n) for n in range(OA, 14)]
    AF = {}
    la, lb = [], []
    for i, (v, n) in enumerate(lseq):
        _, c, a = KS4[n]
        AF[(v, n)] = A0 + 4 * i
        la.append(([], "buffer_load_dwordx4 %s, %s, %s, s%d offen offset:%d sc1 ;@x%d_%d" % (vr(AF[(v, n)], 4), vr(VA + v), sr(SWS, 4), s_ap[c], a * 1024, v, n)))
    free = [AF[x] for x in seq[:NSA]]
    minpos = []
    for v in (2, 3, 1, 0):
        for n in range(8, 14):
            kd = KS4[n]
            if kd[0] == "r":
                _, c, a = kd
                minpos.append(4 * (NSA - len(free)) + 4)
                AF[(v, n)] = free.pop(0)
                lb.append(([], "buffer_load_dwordx4 %s, %s, %s, s%d offen offset:%d sc1 ;@x%d_%d" % (vr(AF[(v, n)], 4), vr(VA + v), sr(SWS, 4), s_ap[c], a * 1024, v, n)))
            elif v in (2, 1):
                ee, pp = kd[1], v >> 1
                for ab in range(2):
                    minpos.append(0)
                    AF[(2 * pp + ab, n)] = SG[4 * ee + 2 * pp + ab]
                    lb.append(([], "buffer_load_dwordx4 %s, %s, %s, s%d offen sc1 ;@x%d_%d" % (vr(AF[(2 * pp + ab, n)], 4), vr(VS + pp), sr(SWS, 4), s_b[2 * ee + ab], v, n)))
    if NFD == 3:
        pt = []
        pollD(1, vP, e=pt.append)
        la[16] = (["\n".join(pt)], la[16][1])
    N0 = opt("p4n0", 12)
    PEN = 0
    if PE:
        assert PE < opt("pds", 40)
        pt = ["WAITVM pd"]
        pollD(0, vP, e=pt.append)
        WE.at(len(body) - PE, "\n".join(x for x in pt if x))
        PEN = opt("pen", 6)
        left = WE.every(la[:PEN], len(body) - PE + 1, opt("pes", 5))
        PEN -= len(left)
        e(WE.out())
        k.stamp("epi_b")
        k.flush()
    W = Weave(flat(la[PEN:N0]))
    FDN = opt("fdn", -1)
    if FDN >= 0:
        W.at(FDN, fstore(2, "ast2"))
    e(W.out())
    W = Weave([])
    place(W, opt_s("g4b", ""), 0, 99)
    e(W.out())
    assert w2s[1] >= 8
    FD2 = opt("fd2", 0)
    mm = []
    started = set()
    waited = set()
    for i, (v, n) in enumerate(seq):
        kd = KS4[n]
        x = [mfma32(AC4[4 * v + nt], W2R[n][nt], AF[(v, n)], None if v in started else "0") for nt in range(4)]
        started.add(v)
        pre = []
        if kd[0] == "r" or v in (2, 1):
            pre.append("WAITVM x%d_%d" % (v, n))
        if n not in waited and (n == 0 or n >= 8):
            pre.append("WAITLG r2_%d" % max(n, 7))
        waited.add(n)
        if kd[0] == "s" and v in (2, 1):
            ee, pp = kd[1], v >> 1
            A, B = SG[4 * ee + 2 * pp], SG[4 * ee + 2 * pp + 1]
            lbl = "%d_%d" % (ee, pp)
            pre += ["s_bitcmp1_b32 s%d, 0" % s_wt, "s_cbranch_scc1 L_odd" + lbl,
                    "v_swap_b32 %s, %s" % (vr(A + 2), vr(B)), "v_swap_b32 %s, %s" % (vr(A + 3), vr(B + 1)),
                    "s_branch L_sw" + lbl, "L_odd%s:" % lbl,
                    "v_swap_b32 %s, %s" % (vr(A + 0), vr(B + 2)), "v_swap_b32 %s, %s" % (vr(A + 1), vr(B + 3)),
                    "L_sw%s:" % lbl, "s_nop 1"]
        if i in (0, NSA, NSB):
            pre.append("STAMP%d" % i)
        x[0] = "\n".join(pre + [x[0]])
        mm += x
    mm[0] = mm[0].replace("STAMP0", k.stamp_text("y0"))
    W = Weave(mm)
    if FDN < 0:
        W.at(FD2, fstore(2, "ast2"), cost=4)
    nown = 32 - NSA
    if NFD == 3:
        assert OA >= 4
    q = la[N0:32 - nown]
    left = W.every(q, 2, 4)
    assert not left
    pos = 2 + 4 * len(q)
    lb = lb[:20] + la[32 - nown:] + lb[20:]
    minpos = minpos[:20] + [0] * nown + minpos[20:]
    PB = opt("pb", 4 * NSA - 44)
    PS = opt("ps", 36)
    W.at(PB - PS, "\n".join(["s_mov_b64 exec, 0x%x" % (0xff << (8 * (NFD - 1))), poll_load(vD, SWS, "s%d" % s_fp, vP) + " ;@pe", "s_mov_b64 exec, -1"]), cost=3)
    pt = ["WAITVM pe"]
    pollD(NFD - 1, vP, e=pt.append)
    W.at(PB, "\n".join(pt), cost=6)
    W.main[4 * NSA] = W.main[4 * NSA].replace("STAMP%d" % NSA, k.stamp_text("yb"))
    W.main[4 * NSB] = W.main[4 * NSB].replace("STAMP%d" % NSB, k.stamp_text("yo"))
    pos = max(pos, PB + 1)
    NB0 = opt("nb0", 6)
    for i, it in enumerate(lb):
        assert pos >= minpos[i], (pos, minpos[i])
        W.every([it], pos, 4)
        pos += 1 if i < NB0 else 4
    place(W, opt_s("p4s", "@60,R,R,R"), 4, 2)
    assert w2s[1] == 14
    ROFF = {1: (0, 0), 2: (0, 4096), 3: (1, 0)}
    for i, v in enumerate((2, 3, 1)):
        for nt in range(4):
            W.at(4 * NSA + 24 * (i + 1) + 3 + 4 * nt, "ds_write_b128 %s, %s offset:%d" % (vr(vrw + ROFF[v][0]), vr(AC4[4 * v + nt], 4), ROFF[v][1] + nt * 1024), cost=2)
    XR_ = [SG[x] + j for x in (2, 3, 6, 7) for j in range(4)]
    cl = t2
    unp = ["v_mov_b32 %s, %s" % (vr(cl), f32(LN2))]
    for j in range(8):
        unp.append("v_lshlrev_b32 %s, 16, %s" % (vr(XR_[2 * j]), vr(HB + j)))
        unp.append("v_and_b32 %s, 0xffff0000, %s" % (vr(XR_[2 * j + 1]), vr(HB + j)))
    W.fill(unp, 4 * NSA + 48 + 2, cap=2)
    YB = 4 * NSB + opt("yb", 18)
    W.at(YB, "s_waitcnt lgkmcnt(0)\ns_barrier\n" + k.stamp_text("red_bar"))
    rl = ["ds_read_b128 %s, %s offset:%d ;@p%d" % (vr(AC4[4 * v + nt], 4), vr(vrr + v - 1), ROFF[v][1] + nt * 1024, v) for v in (1, 2, 3) for nt in range(4)]
    pos = W.fill(rl, YB, cap=3)
    ad = []
    for v in (1, 2, 3):
        for j in range(16):
            x = "v_fmac_f32 %s, %s, %s" % (vr(XR_[j]), vr(AC4[4 * v + (j >> 2)] + (j & 3)), vr(cl))
            if j == 0:
                x = "WAITLG p%d\n" % v + x
            ad.append(x)
    W.fill(ad, pos + 4, cap=2)
    e(W.out())
    k.stamp("y_done")
    for j in range(8):
        for x in (2 * j, 2 * j + 1):
            e("v_fmac_f32 %s, %s, %s" % (vr(XR_[x]), vr(AC4[x >> 2] + (x & 3)), vr(cl)))
        e("v_cvt_pk_bf16_f32 %s, %s, %s" % (vr(HB + j), vr(XR_[2 * j]), vr(XR_[2 * j + 1])))
        if j & 3 == 3:
            P = j >> 2
            e("v_permlane16_swap_b32 %s, %s" % (vr(HB + 4 * P), vr(HB + 4 * P + 2)))
            e("v_permlane16_swap_b32 %s, %s" % (vr(HB + 4 * P + 1), vr(HB + 4 * P + 3)))
            e("buffer_store_dwordx4 %s, %s, %s, s%d offen offset:%d" % (vr(HB + 4 * P, 4), vr(vxo), sr(SOUT, 4), s_xo, P * 64))
    if FINE:
        k.stamp("issued")
        e("s_waitcnt vmcnt(0)")
        k.stamp("drained")
        k.flush()
        e("v_lshlrev_b32 %s, 2, v0" % vr(t0))
        e("s_lshl_b32 s%d, s2, 10" % s_t)
        e("s_add_u32 s%d, s%d, 0x%x" % (s_t, s_t, WS_STAMP))
        e("buffer_store_dword v255, %s, %s, s%d offen" % (vr(t0), sr(SWS, 4), s_t))
        open(OUT + ".txt", "w").write(" ".join(k.stamps))
    if slow:
        e("s_endpgm")
        e(slow)
    e("L_done:\ns_endpgm")
    return k


def main():
    k = build()
    L = []
    L.append("; generated by tools/gen4.py : LN + linear attention block + mish MLP, one persistent kernel")
    L.append("; @launch grid=(256,1,1) block=(256,1,1) lds=163840")
    L.append('.amdgcn_target "amdgcn-amd-amdhsa--gfx950"')
    L.append(".text")
    L += hz.fix(resolve(k.L))
    L.append("L_code_end:")
    L.append('.section .rodata,"a"')
    L.append(".p2align 6\n.amdhsa_kernel %s" % NAME)
    L.append("  .amdhsa_next_free_vgpr 512\n  .amdhsa_next_free_sgpr 102\n  .amdhsa_accum_offset 256")
    L.append("  .amdhsa_group_segment_fixed_size 0\n  .amdhsa_kernarg_size 80\n  .amdhsa_user_sgpr_count 2\n"
             "  .amdhsa_user_sgpr_kernarg_segment_ptr 1\n  .amdhsa_system_sgpr_workgroup_id_x 1\n.end_amdhsa_kernel")
    print("max vgpr", k.maxv, "lines", len(L))
    open(OUT, "w").write("\n".join(L) + "\n")


main()
```
